```python
import torch

def _softmax(x, axis=-1):
    return torch.softmax(x, dim=axis)
def _gelu(x):
    return torch.nn.functional.gelu(x, approximate="tanh")
def _silu(x):
    return torch.nn.functional.silu(x)
def _sigmoid(x):
    return torch.sigmoid(x)
def _layernorm(x, axis=-1, eps=1e-5):
    m = x.mean(dim=axis, keepdim=True)
    v = x.var(dim=axis, keepdim=True, unbiased=False)
    return (x - m) / torch.sqrt(v + eps)
def _scatter_add(tgt, idx, src, axis=0):
    return tgt.clone().index_add_(axis, idx, src)
def _segment_sum(src, seg, n):
    out = torch.zeros((n,) + src.shape[1:], dtype=src.dtype)
    return out.index_add_(0, seg, src)
def _pad(x, pw):
    flat = tuple(v for pair in reversed(pw) for v in pair)
    return torch.nn.functional.pad(x, flat)

kernel_name = 'standalone__kv_cache_quant_int4_int2_kv_with_per_channel_or_per_token_scales__decode'

def setup_inputs():

    _w = (lambda a: (lambda t: t.to(torch.bfloat16) if t.is_floating_point() else t)(torch.as_tensor(a)))
    B = 2
    Sq = 1
    Skv = 32768
    Hq = 32
    Hkv = 16
    Dh = 128
    bits = 2
    G = -1
    if G <= 0 or G >= Skv:
        G = max(1, Skv // 2)
    Skv = (Skv // G) * G
    ngk = Skv // G
    qmax = (1 << bits) - 1
    return {
        "q": _w((lambda *s: torch.randn(*s, dtype=torch.bfloat16) * 3.2)(B, Hq, Sq, Dh)),
        "qk": _w(torch.randint(0, qmax + 1, (B, Hkv, Skv, Dh)).to(torch.int32)),
        "qv": _w(torch.randint(0, qmax + 1, (B, Hkv, Skv, Dh)).to(torch.int32)),
        "k_scales": _w(torch.abs((lambda *s: torch.randn(*s, dtype=torch.bfloat16) * 3.2)(B, Hkv, ngk, Dh)) * 0.05 + 0.02),
        "k_zeros": _w((lambda *s: torch.randn(*s, dtype=torch.bfloat16) * 3.2)(B, Hkv, ngk, Dh) + float(qmax) / 2.0),
        "v_scales": _w(torch.abs((lambda *s: torch.randn(*s, dtype=torch.bfloat16) * 0.05)(B, Hkv, Skv, 1)) * 0.05 + 0.02),
        "v_zeros": _w((lambda *s: torch.randn(*s, dtype=torch.bfloat16) * 0.05)(B, Hkv, Skv, 1) + float(qmax) / 2.0),
    }

def reference(q, qk, qv, k_scales, k_zeros, v_scales, v_zeros):
    B, Hq, Sq, Dh = q.shape
    Hkv, Skv = qk.shape[1], qk.shape[2]
    ngk = k_scales.shape[2]
    G = Skv // ngk
    ks = (lambda x, n, axis: torch.repeat_interleave(x, n, dim=axis))(k_scales, G, axis=2)
    kz = (lambda x, n, axis: torch.repeat_interleave(x, n, dim=axis))(k_zeros, G, axis=2)
    k = ((lambda x, dt: x.to(dt))(qk, q.dtype) - kz) * ks
    v = ((lambda x, dt: x.to(dt))(qv, q.dtype) - v_zeros) * v_scales
    rep = Hq // Hkv
    if rep > 1:
        k = (lambda x, n, axis: torch.repeat_interleave(x, n, dim=axis))(k, rep, axis=1)
        v = (lambda x, n, axis: torch.repeat_interleave(x, n, dim=axis))(v, rep, axis=1)
    scale = float(Dh) ** -0.5
    logits = torch.einsum("bhqd,bhkd->bhqk", q, k) * scale
    p = _softmax(logits, axis=-1)
    o = torch.einsum("bhqk,bhkd->bhqd", p, v)
    return o
```

```python
import sys, argparse, math, struct

NAME = "standalone__kv_cache_quant_int4_int2_kv_with_per_channel_or_per_token_scales__decode"

HEADER = """; Kernarg layout for this problem (80 bytes, ptrs only, base s[0:1]):
"""

def f32bits(x):
    return struct.unpack("<I", struct.pack("<f", x))[0]

class Gen:
    def __init__(self):
        self.lines = []
    def __call__(self, s):
        self.lines.append("    " + s)
    def label(self, s):
        self.lines.append(s + ":")
    def c(self, s):
        self.lines.append("    ; " + s)
    def text(self):
        return "\n".join(self.lines) + "\n"

def vr(a, n=1):
    return f"v{a}" if n == 1 else f"v[{a}:{a+n-1}]"
def sr(a, n=1):
    return f"s{a}" if n == 1 else f"s[{a}:{a+n-1}]"

def build(cfg):
    WPW = cfg.wpw
    NWG = cfg.nwg
    WGPU = NWG // 64
    WPU = WGPU * WPW
    TPW = 512 // WPU
    assert WGPU * 64 == NWG and TPW * WPU == 512
    NP = 2 * WGPU
    MLBASE = 64 * NP * 512
    WSBYTES = MLBASE + 64 * NP * 8
    ntK = " nt" if cfg.nt else ""
    g = Gen()
    vK, vV, vS, vM, vL, vT0, vT1 = 1, 2, 3, 4, 5, 6, 7
    CI = 8
    Q = 12
    SA, SB = 28, 32
    X = 36
    U = 44
    WP = 52
    VS = 56
    VZ = 60
    KR = 64
    VR = 128
    O = 192
    CORR = 224
    TV = 228
    TK = 244
    NV = 252
    sK, sV, sVS, sVZ, sQ, sKS, sKZ, sWS = 24, 28, 32, 36, 40, 44, 48, 52
    sWave, sUnit, sSub, sOff, sOffS, sN, sThr, sTmp, sTmp2, sBH = 56, 57, 58, 59, 60, 61, 62, 63, 64, 65
    sMask = 66
    sHi = 68
    sC = 69
    sExec = 70
    NS = 72

    g.label(f"{NAME}_kernel")
    g(f"s_cmp_ge_u32 s2, {NWG}")
    g("s_cbranch_scc1 L_end")
    g("s_load_dwordx8 s[4:11], s[0:1], 0")
    g("s_load_dwordx8 s[12:19], s[0:1], 32")
    g("s_load_dwordx4 s[20:23], s[0:1], 64")
    g("v_and_b32 v10, 63, v0")
    g("v_lshrrev_b32 v11, 6, v0")
    g("v_and_b32 v12, 15, v10")
    g("v_lshrrev_b32 v13, 4, v10")
    g(f"v_readfirstlane_b32 {sr(sWave)}, v11")
    g("v_lshrrev_b32 v14, 2, v12")
    g("v_and_b32 v15, 3, v12")
    g("v_lshl_add_u32 v14, v14, 3, v15")
    g("v_lshlrev_b32 v14, 9, v14")
    g(f"v_lshl_add_u32 {vr(vK)}, v13, 4, v14")
    g("v_lshlrev_b32 v14, 12, v13")
    g(f"v_lshl_add_u32 {vr(vV)}, v12, 4, v14")
    g(f"v_lshlrev_b32 {vr(vS)}, 4, v13")
    g("v_lshlrev_b32 v17, 3, v13")
    g("v_and_b32 v16, 1, v12")
    g("v_lshl_add_u32 v16, v16, 8, v17")
    g("v_and_b32 v14, 2, v12")
    g(f"v_cmp_ne_u32 {sr(sMask,2)}, 0, v14")
    if cfg.unit_major:
        g(f"s_lshr_b32 {sr(sUnit)}, s2, {int(math.log2(WGPU))}")
        g(f"s_and_b32 {sr(sSub)}, s2, {WGPU-1}")
    else:
        g(f"s_and_b32 {sr(sUnit)}, s2, 63")
        g(f"s_lshr_b32 {sr(sSub)}, s2, 6")
    g(f"s_lshr_b32 {sr(sBH)}, {sr(sUnit)}, 1")
    if cfg.order == "inter":
        g(f"s_mul_i32 {sr(sTmp)}, {sr(sSub)}, {WPW}")
        g(f"s_add_u32 {sr(sTmp)}, {sr(sTmp)}, {sr(sWave)}")
        stride = WPU
    elif cfg.order == "wgblk":
        g(f"s_mul_i32 {sr(sTmp)}, {sr(sSub)}, {512//WGPU}")
        g(f"s_add_u32 {sr(sTmp)}, {sr(sTmp)}, {sr(sWave)}")
        stride = WPW
    elif cfg.order == "blk":
        g(f"s_mul_i32 {sr(sTmp)}, {sr(sSub)}, {WPW}")
        g(f"s_add_u32 {sr(sTmp)}, {sr(sTmp)}, {sr(sWave)}")
        g(f"s_mul_i32 {sr(sTmp)}, {sr(sTmp)}, {TPW}")
        stride = 1
    g(f"s_lshl_b32 {sr(sTmp2)}, {sr(sUnit)}, 9")
    g(f"s_add_u32 {sr(sTmp)}, {sr(sTmp)}, {sr(sTmp2)}")
    g(f"s_lshl_b32 {sr(sOff)}, {sr(sTmp)}, 14")
    g(f"s_lshl_b32 {sr(sOffS)}, {sr(sTmp)}, 6")
    g(f"s_mov_b32 {sr(sHi)}, 0xffff0000")
    g(f"s_mov_b32 {sr(sC)}, 0x{f32bits((128.0 ** -0.5) * math.log2(math.e)):08x}")
    g(f"s_mov_b32 {sr(sThr)}, 0xff7fffff")
    g(f"s_mov_b32 {sr(sN)}, 0")
    g("s_waitcnt lgkmcnt(0)")
    def srd(d, p, nbytes):
        g(f"s_mov_b32 {sr(d)}, {sr(p)}")
        g(f"s_and_b32 {sr(d+1)}, {sr(p+1)}, 0xffff")
        g(f"s_mov_b32 {sr(d+2)}, 0x{nbytes:x}")
        g(f"s_mov_b32 {sr(d+3)}, 0x00020000")
    srd(sK, 6, 0x20000000)
    def loadK(k2, soff):
        half, p = k2 // 8, k2 % 8
        g(f"buffer_load_dwordx4 {vr(KR+4*k2,4)}, {vr(vK)}, {sr(sK,4)}, {sr(soff)} offen offset:{half*2048+p*64}{ntK}")
    def loadV(k2, soff):
        half, e = k2 // 8, k2 % 8
        g(f"buffer_load_dwordx4 {vr(VR+4*k2,4)}, {vr(vV)}, {sr(sV,4)}, {sr(soff)} offen offset:{e*512+half*256}{ntK}")
    for k2 in range(16):
        loadK(k2, sOff)
    srd(sQ, 4, 16384)
    srd(sKS, 10, 16384)
    srd(sKZ, 12, 16384)
    srd(sV, 8, 0x20000000)
    srd(sVS, 14, 0x200000)
    srd(sVZ, 16, 0x200000)
    srd(sWS, 22, WSBYTES)
    RQ, RS, RZ = 192, 208, 224
    g(f"s_lshl_b32 {sr(sTmp)}, {sr(sBH)}, 9")
    g(f"s_lshl_b32 {sr(sTmp2)}, {sr(sUnit)}, 8")
    for p in range(8):
        g(f"buffer_load_dwordx2 {vr(RQ+2*p,2)}, v16, {sr(sQ,4)}, {sr(sTmp)} offen offset:{32*p}")
        g(f"buffer_load_dwordx2 {vr(RS+2*p,2)}, v17, {sr(sKS,4)}, {sr(sTmp2)} offen offset:{32*p}")
        g(f"buffer_load_dwordx2 {vr(RZ+2*p,2)}, v17, {sr(sKZ,4)}, {sr(sTmp2)} offen offset:{32*p}")
    g(f"buffer_load_dwordx4 {vr(VS,4)}, {vr(vS)}, {sr(sVS,4)}, {sr(sOffS)} offen")
    g(f"buffer_load_dwordx4 {vr(VZ,4)}, {vr(vS)}, {sr(sVZ,4)}, {sr(sOffS)} offen")
    for k2 in range(16):
        loadV(k2, sOff)
    g("s_waitcnt vmcnt(18)")
    g(f"v_mov_b32 {vr(vT0)}, 0")
    a0, a1, b0, b1, z0, z1, H, h0, h1 = range(28, 37)
    for w in range(16):
        g(f"v_lshlrev_b32 v{a0}, 16, {vr(RQ+w)}")
        g(f"v_and_b32 v{a1}, {sr(sHi)}, {vr(RQ+w)}")
        g(f"v_lshlrev_b32 v{b0}, 16, {vr(RS+w)}")
        g(f"v_and_b32 v{b1}, {sr(sHi)}, {vr(RS+w)}")
        g(f"v_lshlrev_b32 v{z0}, 16, {vr(RZ+w)}")
        g(f"v_and_b32 v{z1}, {sr(sHi)}, {vr(RZ+w)}")
        g(f"v_mul_f32 v{a0}, v{a0}, v{b0}")
        g(f"v_mul_f32 v{a1}, v{a1}, v{b1}")
        g(f"v_mul_f32 v{a0}, {sr(sC)}, v{a0}")
        g(f"v_mul_f32 v{a1}, {sr(sC)}, v{a1}")
        g(f"v_fmac_f32 {vr(vT0)}, v{a0}, v{z0}")
        g(f"v_fmac_f32 {vr(vT0)}, v{a1}, v{z1}")
        g(f"v_cvt_pk_bf16_f32 v{H}, v{a0}, v{a1}")
        g(f"v_lshlrev_b32 v{h0}, 16, v{H}")
        g(f"v_and_b32 v{h1}, {sr(sHi)}, v{H}")
        g(f"v_sub_f32 v{a0}, v{a0}, v{h0}")
        g(f"v_sub_f32 v{a1}, v{a1}, v{h1}")
        g(f"v_cvt_pk_bf16_f32 v{b0}, v{a0}, v{a1}")
        g(f"v_cndmask_b32 {vr(Q+w)}, v{H}, v{b0}, {sr(sMask,2)}")
    def xreduce(op, v, t):
        g(f"v_mov_b32 {vr(t)}, {vr(v)}")
        g("s_nop 1")
        g(f"v_permlane16_swap_b32 {vr(v)}, {vr(t)}")
        g("s_nop 1")
        g(f"{op} {vr(v)}, {vr(v)}, {vr(t)}")
        g(f"v_mov_b32 {vr(t)}, {vr(v)}")
        g("s_nop 1")
        g(f"v_permlane32_swap_b32 {vr(v)}, {vr(t)}")
        g("s_nop 1")
        g(f"{op} {vr(v)}, {vr(v)}, {vr(t)}")
    xreduce("v_add_f32", vT0, vT1)
    for r in range(4):
        g(f"v_mul_f32 {vr(CI+r)}, -0.5, {vr(vT0)}")
    g(f"v_mov_b32 {vr(vM)}, 0")
    g(f"v_mov_b32 {vr(vL)}, 0")
    for r in range(36):
        g(f"v_mov_b32 {vr(O+r)}, 0")
    g.label("L_loop")
    g(f"s_add_u32 {sr(sN)}, {sr(sN)}, 1")
    g(f"s_add_u32 {sr(sOff)}, {sr(sOff)}, {stride*16384}")
    g(f"s_add_u32 {sr(sOffS)}, {sr(sOffS)}, {stride*64}")
    g(f"s_cmp_lt_u32 {sr(sN)}, {TPW}")
    g(f"s_cselect_b32 {sr(sOff)}, {sr(sOff)}, 0x20000000")
    g(f"s_cselect_b32 {sr(sOffS)}, {sr(sOffS)}, 0x20000000")
    for k in range(8):
        half, s = k // 4, k % 4
        T = TK + 4 * (k & 1)
        S = SA if half == 0 else SB
        g("s_waitcnt vmcnt(32)")
        if not cfg.nocompute:
            for i in range(8):
                g(f"v_cvt_f32_i32 {vr(KR+8*k+i)}, {vr(KR+8*k+i)}")
            for i in range(4):
                g(f"v_cvt_pk_bf16_f32 {vr(T+i)}, {vr(KR+8*k+2*i)}, {vr(KR+8*k+2*i+1)}")
        loadK(2*k, sOff)
        loadK(2*k+1, sOff)
        if not cfg.nocompute:
            g(f"v_mfma_f32_16x16x32_bf16 {vr(S,4)}, {vr(T,4)}, {vr(Q+4*s,4)}, {vr(CI if s == 0 else S,4)}")
    g("s_waitcnt vmcnt(33)")
    for i in range(4):
        g(f"v_lshlrev_b32 {vr(U+2*i)}, 16, {vr(VS+i)}")
        g(f"v_and_b32 {vr(U+2*i+1)}, {sr(sHi)}, {vr(VS+i)}")
    g(f"buffer_load_dwordx4 {vr(VS,4)}, {vr(vS)}, {sr(sVS,4)}, {sr(sOffS)} offen")
    for e in range(8):
        g(f"v_add_f32_dpp {vr(X+e)}, {vr(SA+e)}, {vr(SA+e)} quad_perm:[2,3,0,1] row_mask:0xf bank_mask:0xf")
    g(f"v_max3_f32 {vr(vT0)}, {vr(X)}, {vr(X+1)}, {vr(X+2)}")
    g(f"v_max3_f32 {vr(vT1)}, {vr(X+3)}, {vr(X+4)}, {vr(X+5)}")
    g(f"v_max3_f32 {vr(vT0)}, {vr(vT0)}, {vr(X+6)}, {vr(X+7)}")
    g(f"v_max_f32 {vr(vT0)}, {vr(vT0)}, {vr(vT1)}")
    g(f"v_cmp_lt_f32 vcc, {sr(sThr)}, {vr(vT0)}")
    g("s_cbranch_vccnz L_rare")
    g.label("L_back")
    for e in range(8):
        g(f"v_exp_f32 {vr(X+e)}, {vr(X+e)}")
    g("s_waitcnt vmcnt(33)")
    for e in range(8):
        g(f"v_mul_f32 {vr(U+e)}, {vr(X+e)}, {vr(U+e)}")
    for i in range(4):
        g(f"v_cvt_pk_bf16_f32 {vr(WP+i)}, {vr(U+2*i)}, {vr(U+2*i+1)}")
    g(f"v_add_f32 {vr(X)}, {vr(X)}, {vr(X+1)}")
    g(f"v_add_f32 {vr(X+2)}, {vr(X+2)}, {vr(X+3)}")
    g(f"v_mfma_f32_16x16x32_bf16 {vr(CORR,4)}, {vr(VZ,4)}, {vr(WP,4)}, {vr(CORR,4)}")
    g(f"v_add_f32 {vr(X+4)}, {vr(X+4)}, {vr(X+5)}")
    g(f"v_add_f32 {vr(X+6)}, {vr(X+6)}, {vr(X+7)}")
    g(f"v_add_f32 {vr(X)}, {vr(X)}, {vr(X+2)}")
    g(f"v_add_f32 {vr(X+4)}, {vr(X+4)}, {vr(X+6)}")
    g(f"buffer_load_dwordx4 {vr(VZ,4)}, {vr(vS)}, {sr(sVZ,4)}, {sr(sOffS)} offen")
    g(f"v_add_f32 {vr(X)}, {vr(X)}, {vr(X+4)}")
    g(f"v_add_f32 {vr(vL)}, {vr(vL)}, {vr(X)}")
    for k in range(8):
        half, i = k // 4, k % 4
        g("s_waitcnt vmcnt(32)")
        if not cfg.nocompute:
            for x in range(8):
                g(f"v_cvt_f32_i32 {vr(VR+8*k+x)}, {vr(VR+8*k+x)}")
            for c in range(4):
                g(f"v_cvt_pk_bf16_f32 {vr(TV+4*c+i)}, {vr(VR+8*k+c)}, {vr(VR+8*k+4+c)}")
        loadV(2*k, sOff)
        loadV(2*k+1, sOff)
        if i == 3 and not cfg.nocompute:
            for c in range(4):
                acc = O + (half*4+c)*4
                g(f"v_mfma_f32_16x16x32_bf16 {vr(acc,4)}, {vr(TV+4*c,4)}, {vr(WP,4)}, {vr(acc,4)}")
    g(f"s_cmp_lt_u32 {sr(sN)}, {TPW}")
    g("s_cbranch_scc1 L_loop")
    g("s_waitcnt vmcnt(0)")
    g("s_nop 7")
    g("s_nop 7")
    xreduce("v_add_f32", vL, vT1)
    g("v_and_b32 v10, 63, v0")
    g("v_and_b32 v12, 15, v10")
    g("v_lshrrev_b32 v13, 4, v10")
    g(f"s_lshl_b32 {sr(sTmp)}, {sr(sWave)}, 10")
    g("v_lshlrev_b32 v14, 9, v12")
    g("v_lshl_add_u32 v14, v13, 6, v14")
    g(f"v_add_u32 v14, {sr(sTmp)}, v14")
    g(f"s_lshl_b32 {sr(sTmp)}, {sr(sWave)}, 4")
    g(f"s_add_u32 {sr(sTmp)}, {sr(sTmp)}, {WPW*1024}")
    g("v_lshlrev_b32 v15, 3, v12")
    g(f"v_add_u32 v15, {sr(sTmp)}, v15")
    g("v_cmp_gt_u32 vcc, 2, v12")
    g(f"s_and_saveexec_b64 {sr(sExec,2)}, vcc")
    for half in range(2):
        for r in range(4):
            T = TV + 4*((half*4+r) % 4)
            for c in range(4):
                g(f"v_sub_f32 {vr(T+c)}, {vr(O+(half*4+c)*4+r)}, {vr(CORR)}")
            g(f"ds_write_b128 v14, {vr(T,4)} offset:{half*256+r*16}")
    g(f"ds_write_b64 v15, {vr(vM,2)}")
    g(f"s_mov_b64 exec, {sr(sExec,2)}")
    g("s_waitcnt lgkmcnt(0)")
    g("s_barrier")
    if WPW > 4:
        g(f"s_cmp_ge_u32 {sr(sWave)}, 4")
        g("s_cbranch_scc1 L_end")
    if WPW < 4:
        raise SystemExit("WPW>=4 assumed")
    g("v_lshrrev_b32 v10, 7, v0")
    g("v_lshlrev_b32 v11, 2, v0")
    g("v_lshlrev_b32 v12, 3, v10")
    ML = 64; OP = 96
    for w in range(WPW):
        g(f"ds_read_b64 {vr(ML+2*w,2)}, v12 offset:{WPW*1024+w*16}")
    for w in range(WPW):
        g(f"ds_read_b32 {vr(OP+w)}, v11 offset:{w*1024}")
    g("s_waitcnt lgkmcnt(0)")
    g(f"v_mov_b32 v20, {vr(ML)}")
    for w in range(1, WPW):
        g(f"v_max_f32 v20, v20, {vr(ML+2*w)}")
    for w in range(WPW):
        g(f"v_sub_f32 {vr(ML+2*w)}, {vr(ML+2*w)}, v20")
    for w in range(WPW):
        g(f"v_exp_f32 {vr(ML+2*w)}, {vr(ML+2*w)}")
    g("v_mov_b32 v21, 0")
    g("v_mov_b32 v22, 0")
    for w in range(WPW):
        g(f"v_fmac_f32 v21, {vr(ML+2*w)}, {vr(ML+2*w+1)}")
        g(f"v_fmac_f32 v22, {vr(ML+2*w)}, {vr(OP+w)}")
    g(f"s_and_b32 {sr(sTmp)}, {sr(sUnit)}, 1")
    g(f"s_mul_i32 {sr(sTmp)}, {sr(sTmp)}, {WGPU}")
    g(f"s_add_u32 {sr(sTmp)}, {sr(sTmp)}, {sr(sSub)}")
    g(f"s_mul_i32 {sr(sTmp2)}, {sr(sBH)}, {2*NP}")
    g(f"s_add_u32 {sr(sTmp)}, {sr(sTmp)}, {sr(sTmp2)}")
    g(f"v_mul_u32_u24 v13, {NP}, v10")
    g(f"v_add_u32 v13, {sr(sTmp)}, v13")
    g("v_and_b32 v14, 127, v0")
    g("v_lshlrev_b32 v14, 2, v14")
    g("v_lshl_add_u32 v14, v13, 9, v14")
    g(f"buffer_store_dword v22, v14, {sr(sWS,4)}, 0 offen")
    g("v_lshlrev_b32 v15, 3, v13")
    g(f"v_add_u32 v15, 0x{MLBASE:x}, v15")
    g("v_and_b32 v16, 127, v0")
    g("v_cmp_eq_u32 vcc, 0, v16")
    g(f"s_and_saveexec_b64 {sr(sExec,2)}, vcc")
    g("s_cbranch_execz L_end")
    g(f"buffer_store_dwordx2 v[20:21], v15, {sr(sWS,4)}, 0 offen")
    g.label("L_end")
    g("s_endpgm")
    g.label("L_rare")
    xreduce("v_max_f32", vT0, vT1)
    g(f"v_max_f32 {vr(vT0)}, {sr(sThr)}, {vr(vT0)}")
    g(f"v_max_f32 {vr(vT1)}, 0, {vr(vT0)}")
    g(f"v_exp_f32 {vr(vT1)}, -{vr(vT1)}")
    for e in range(8):
        g(f"v_sub_f32 {vr(X+e)}, {vr(X+e)}, {vr(vT0)}")
    for r in range(4):
        g(f"v_fma_f32 {vr(CI+r)}, {vr(vT0)}, -0.5, {vr(CI+r)}")
    g(f"v_add_f32 {vr(vM)}, {vr(vM)}, {vr(vT0)}")
    g(f"v_mul_f32 {vr(vL)}, {vr(vL)}, {vr(vT1)}")
    for r in range(36):
        g(f"v_mul_f32 {vr(O+r)}, {vr(O+r)}, {vr(vT1)}")
    g(f"s_mov_b32 {sr(sThr)}, 0")
    g("s_branch L_back")
    main = g.text()

    g = Gen()
    g.label("kvq_combine_kernel")
    g("s_cmp_ge_u32 s2, 64")
    g("s_cbranch_scc1 L_cend")
    g("s_load_dwordx2 s[4:5], s[0:1], 56")
    g("s_load_dwordx2 s[6:7], s[0:1], 72")
    g(f"s_mul_i32 s16, s2, {NP*512}")
    g(f"s_mul_i32 s17, s2, {NP*8}")
    g(f"s_add_u32 s17, s17, 0x{MLBASE:x}")
    g("v_lshlrev_b32 v1, 2, v0")
    g("v_mov_b32 v2, 0")
    g("s_waitcnt lgkmcnt(0)")
    g("s_mov_b32 s8, s6")
    g("s_and_b32 s9, s7, 0xffff")
    g(f"s_mov_b32 s10, 0x{WSBYTES:x}")
    g("s_mov_b32 s11, 0x00020000")
    g("s_mov_b32 s12, s4")
    g("s_and_b32 s13, s5, 0xffff")
    g("s_mov_b32 s14, 16384")
    g("s_mov_b32 s15, 0x00020000")
    ML = 8; OP = ML + 2*NP
    for p in range(NP):
        g(f"buffer_load_dwordx2 {vr(ML+2*p,2)}, v2, s[8:11], s17 offen offset:{8*p}")
    for p in range(NP):
        if p*512 < 4096:
            g(f"buffer_load_dword {vr(OP+p)}, v1, s[8:11], s16 offen offset:{512*p}")
        else:
            if (p*512) % 4096 == 0:
                g("s_add_u32 s16, s16, 4096")
            g(f"buffer_load_dword {vr(OP+p)}, v1, s[8:11], s16 offen offset:{(512*p)%4096}")
    g("s_waitcnt vmcnt(0)")
    g(f"v_mov_b32 v4, {vr(ML)}")
    for p in range(1, NP):
        g(f"v_max_f32 v4, v4, {vr(ML+2*p)}")
    for p in range(NP):
        g(f"v_sub_f32 {vr(ML+2*p)}, {vr(ML+2*p)}, v4")
    for p in range(NP):
        g(f"v_exp_f32 {vr(ML+2*p)}, {vr(ML+2*p)}")
    g("v_mov_b32 v5, 0")
    g("v_mov_b32 v6, 0")
    for p in range(NP):
        g(f"v_fmac_f32 v5, {vr(ML+2*p)}, {vr(ML+2*p+1)}")
        g(f"v_fmac_f32 v6, {vr(ML+2*p)}, {vr(OP+p)}")
    g("v_rcp_f32 v5, v5")
    g("s_nop 0")
    g("v_mul_f32 v6, v6, v5")
    g("v_cvt_pk_bf16_f32 v6, v6, v6")
    g("s_lshl_b32 s18, s2, 8")
    g("v_lshlrev_b32 v1, 1, v0")
    g("buffer_store_short v6, v1, s[12:15], s18 offen")
    g.label("L_cend")
    g("s_endpgm")
    comb = g.text()
    ncv = OP + NP

    lds = WPW*1024 + WPW*16
    out = HEADER
    out += f"; @launch kernel={NAME}_kernel grid=({NWG},1,1) block=({WPW*64},1,1) lds={lds}\n"
    out += f"; @launch kernel=kvq_combine_kernel grid=(64,1,1) block=(128,1,1) lds=0\n"
    out += '.amdgcn_target "amdgcn-amd-amdhsa--gfx950"\n.text\n'
    out += f".globl {NAME}_kernel\n.p2align 8\n.type {NAME}_kernel,@function\n" + main
    out += ".globl kvq_combine_kernel\n.p2align 8\n.type kvq_combine_kernel,@function\n" + comb
    out += '.section .rodata,"a"\n'
    def kd(name, nv, ns):
        acc = (nv + 3) // 4 * 4
        return (f".p2align 6\n.amdhsa_kernel {name}\n  .amdhsa_next_free_vgpr {nv}\n  .amdhsa_next_free_sgpr {ns}\n"
                f"  .amdhsa_accum_offset {acc}\n  .amdhsa_group_segment_fixed_size 0\n  .amdhsa_kernarg_size 80\n"
                "  .amdhsa_user_sgpr_count 2\n  .amdhsa_user_sgpr_kernarg_segment_ptr 1\n"
                "  .amdhsa_system_sgpr_workgroup_id_x 1\n.end_amdhsa_kernel\n")
    out += kd(f"{NAME}_kernel", NV, NS)
    out += kd("kvq_combine_kernel", ncv, 24)
    return out

if __name__ == "__main__":
    ap = argparse.ArgumentParser()
    ap.add_argument("-o", default="/dev/stdout")
    ap.add_argument("--wpw", type=int, default=4)
    ap.add_argument("--nwg", type=int, default=512)
    ap.add_argument("--order", default="wgblk")
    ap.add_argument("--unit-major", type=int, default=1)
    ap.add_argument("--nt", type=int, default=0)
    ap.add_argument("--nocompute", type=int, default=0)
    cfg = ap.parse_args()
    open(cfg.o, "w").write(build(cfg))
```

```python
import sys, argparse, math, struct
from gen import Gen, vr, sr, HEADER, NAME, f32bits

class Q:
    def __init__(self, g):
        self.g = g; self.q = []
    def issue(self, tag):
        self.q.append(tag)
    def wait(self, *tags):
        idx = max(self.q.index(t) for t in tags)
        n = len(self.q) - 1 - idx
        assert n <= 63
        self.g(f"s_waitcnt vmcnt({n})")
        self.q = self.q[idx+1:]
        return n

def build(cfg):
    WPW = cfg.wpw; NWG = cfg.nwg
    WGPU = NWG // 64
    WPU = WGPU * WPW
    TPW = 512 // WPU
    assert WGPU * 64 == NWG and TPW * WPU == 512 and TPW >= 3
    NP = 2 * WGPU
    S_ = cfg.S; NT = S_ // 8
    MLBASE = 32 * NP * 1024
    WSBYTES = MLBASE + 32 * NP * 16
    nt = " nt"
    g = Gen()
    q = Q(g)
    vK, vV, vS, vT0, vM, vL, vT1 = 1, 2, 3, 0, 4, 5, 6
    vLane = 7
    CI = 8; QO = 12; SA = 28; SB = 32
    WP = 36; WP2 = 40; VS = 44; VZ = 48; TK = 52
    CORR = 60
    KR = 64; VR = 128; O = 192; TV = 224
    NV = 256
    sK, sV, sVS, sVZ, sQ, sKS, sKZ, sWS, sDBG, sOUT = 24, 28, 32, 36, 40, 44, 48, 52, 72, 76
    sWave, sUnit, sSub, sOffA, sOffB, sOffS, sN, sThr, sTmp, sTmp2, sBH, sT = 56, 57, 58, 59, 60, 61, 62, 63, 64, 65, 80, 81
    sMask = 66; sHi = 68; sC = 69; sExec = 70
    NS = 84
    pairs = {"q": [(0,4),(2,6),(1,5),(3,7)], "n": [(0,1),(2,3),(4,5),(6,7)], "r": [(0,1),(4,5),(2,3),(6,7)]}[cfg.vord]
    po = {"e": [0,1,2,3], "f": [0,2,1,3]}[cfg.kord]

    g.label(f"{NAME}_kernel")
    g(f"s_cmp_ge_u32 s2, {NWG}")
    g("s_cbranch_scc1 L_end")
    g("s_load_dwordx4 s[4:7], s[0:1], 0")
    g("s_load_dwordx4 s[8:11], s[0:1], 16")
    g("s_load_dwordx8 s[12:19], s[0:1], 32")
    g("s_load_dwordx4 s[20:23], s[0:1], 64")
    g(f"v_and_b32 {vr(vLane)}, 63, v0")
    g("v_lshrrev_b32 v11, 6, v0")
    g(f"v_and_b32 v12, 15, {vr(vLane)}")
    g(f"v_lshrrev_b32 v13, 4, {vr(vLane)}")
    g(f"v_readfirstlane_b32 {sr(sWave)}, v11")
    g("v_lshrrev_b32 v14, 2, v12")
    g("v_and_b32 v15, 3, v12")
    g(f"v_mul_u32_u24 v14, {S_}, v14")
    g("v_add_u32 v14, v14, v15")
    g("v_lshlrev_b32 v14, 9, v14")
    g(f"v_lshl_add_u32 {vr(vK)}, v13, 4, v14")
    g(f"v_mul_u32_u24 v14, {S_*512}, v13")
    g(f"v_lshl_add_u32 {vr(vV)}, v12, 4, v14")
    g(f"v_mul_u32_u24 {vr(vS)}, {2*S_}, v13")
    g("v_lshlrev_b32 v17, 3, v13")
    g("v_and_b32 v16, 1, v12")
    g("v_lshl_add_u32 v16, v16, 8, v17")
    g("v_and_b32 v14, 2, v12")
    g(f"v_cmp_ne_u32 {sr(sMask,2)}, 0, v14")
    g(f"s_lshr_b32 {sr(sUnit)}, s2, {int(math.log2(WGPU))}")
    g(f"s_and_b32 {sr(sSub)}, s2, {WGPU-1}")
    g(f"s_lshr_b32 {sr(sBH)}, {sr(sUnit)}, 1")
    if cfg.order == "inter":
        g(f"s_mul_i32 {sr(sT)}, {sr(sSub)}, {WPW}")
        g(f"s_add_u32 {sr(sT)}, {sr(sT)}, {sr(sWave)}")
        stride = WPU
    elif cfg.order == "wgblk":
        g(f"s_mul_i32 {sr(sT)}, {sr(sSub)}, {512//WGPU}")
        g(f"s_add_u32 {sr(sT)}, {sr(sT)}, {sr(sWave)}")
        stride = WPW
    g(f"s_lshl_b32 {sr(sTmp2)}, {sr(sUnit)}, 9")
    g(f"s_add_u32 {sr(sT)}, {sr(sT)}, {sr(sTmp2)}")
    def tile_off(dst, dsts):
        g(f"s_and_b32 {sr(sTmp)}, {sr(sT)}, {NT-1}")
        g(f"s_sub_u32 {sr(sTmp2)}, {sr(sT)}, {sr(sTmp)}")
        g(f"s_lshl_b32 {sr(sTmp2)}, {sr(sTmp2)}, 2")
        g(f"s_add_u32 {sr(sTmp)}, {sr(sTmp)}, {sr(sTmp2)}")
        g(f"s_lshl_b32 {sr(dst)}, {sr(sTmp)}, 12")
        g(f"s_lshl_b32 {sr(dsts)}, {sr(sTmp)}, 4")
    tile_off(sOffA, sOffS)
    g(f"s_mov_b32 {sr(sHi)}, 0xffff0000")
    g(f"s_mov_b32 {sr(sC)}, 0x{f32bits((128.0 ** -0.5) * math.log2(math.e)):08x}")
    g(f"s_mov_b32 {sr(sThr)}, 0xff7fffff")
    g("s_waitcnt lgkmcnt(0)")
    def srd(d, p, nbytes):
        g(f"s_mov_b32 {sr(d)}, {sr(p)}")
        g(f"s_and_b32 {sr(d+1)}, {sr(p+1)}, 0xffff")
        g(f"s_mov_b32 {sr(d+2)}, 0x{nbytes:x}")
        g(f"s_mov_b32 {sr(d+3)}, 0x00020000")
    srd(sK, 6, 0x20000000)
    def loadK(k, x, soff, tile):
        ab, pp = k % 2, po[k // 2]
        g(f"buffer_load_dwordx4 {vr(KR+8*k+4*x,4)}, {vr(vK)}, {sr(sK,4)}, {sr(soff)} offen offset:{ab*2048+(2*pp+x)*64}{nt}")
        q.issue(("K", tile, k, x))
    def loadV(k, x, soff, tile):
        i, half = k // 2, k % 2
        g(f"buffer_load_dwordx4 {vr(VR+8*k+4*x,4)}, {vr(vV)}, {sr(sV,4)}, {sr(soff)} offen offset:{pairs[i][x]*512+half*256}{nt}")
        q.issue(("V", tile, k, x))
    def loadS(tile):
        g(f"buffer_load_dwordx4 {vr(VS,4)}, {vr(vS)}, {sr(sVS,4)}, {sr(sOffS)} offen")
        q.issue(("vs", tile))
    def loadZ(tile):
        g(f"buffer_load_dwordx4 {vr(VZ,4)}, {vr(vS)}, {sr(sVZ,4)}, {sr(sOffS)} offen")
        q.issue(("vz", tile))
    for k in range(8):
        loadK(k, 0, sOffA, 0); loadK(k, 1, sOffA, 0)
    srd(sQ, 4, 16384)
    srd(sKS, 10, 16384)
    srd(sKZ, 12, 16384)
    srd(sVS, 14, 0x200000)
    srd(sVZ, 16, 0x200000)
    RQ, RS, RZ = 192, 208, 224
    g(f"s_lshl_b32 {sr(sTmp)}, {sr(sBH)}, 9")
    g(f"s_lshl_b32 {sr(sTmp2)}, {sr(sUnit)}, 8")
    for p in range(8):
        g(f"buffer_load_dwordx2 {vr(RQ+2*p,2)}, v16, {sr(sQ,4)}, {sr(sTmp)} offen offset:{32*p}"); q.issue(("sm", p, 0))
        g(f"buffer_load_dwordx2 {vr(RS+2*p,2)}, v17, {sr(sKS,4)}, {sr(sTmp2)} offen offset:{32*p}"); q.issue(("sm", p, 1))
        g(f"buffer_load_dwordx2 {vr(RZ+2*p,2)}, v17, {sr(sKZ,4)}, {sr(sTmp2)} offen offset:{32*p}"); q.issue(("sm", p, 2))
    loadS(0); loadZ(0)
    srd(sV, 8, 0x20000000)
    if cfg.earlyv:
        pass
    srd(sWS, 22, WSBYTES)
    srd(sDBG, 20, 256)
    srd(sOUT, 18, 16384)
    g(f"s_add_u32 {sr(sT)}, {sr(sT)}, {stride}")
    tile_off(sOffB, sOffS)
    q.wait(("sm", 7, 2))
    g(f"v_mov_b32 {vr(vT0)}, 0")
    a0, a1, b0, b1, z0, z1, H, h0, h1 = range(28, 37)
    for w in range(16):
        g(f"v_lshlrev_b32 v{a0}, 16, {vr(RQ+w)}")
        g(f"v_and_b32 v{a1}, {sr(sHi)}, {vr(RQ+w)}")
        g(f"v_lshlrev_b32 v{b0}, 16, {vr(RS+w)}")
        g(f"v_and_b32 v{b1}, {sr(sHi)}, {vr(RS+w)}")
        g(f"v_lshlrev_b32 v{z0}, 16, {vr(RZ+w)}")
        g(f"v_and_b32 v{z1}, {sr(sHi)}, {vr(RZ+w)}")
        g(f"v_mul_f32 v{a0}, v{a0}, v{b0}")
        g(f"v_mul_f32 v{a1}, v{a1}, v{b1}")
        g(f"v_mul_f32 v{a0}, {sr(sC)}, v{a0}")
        g(f"v_mul_f32 v{a1}, {sr(sC)}, v{a1}")
        g(f"v_fmac_f32 {vr(vT0)}, v{a0}, v{z0}")
        g(f"v_fmac_f32 {vr(vT0)}, v{a1}, v{z1}")
        g(f"v_cvt_pk_bf16_f32 v{H}, v{a0}, v{a1}")
        g(f"v_lshlrev_b32 v{h0}, 16, v{H}")
        g(f"v_and_b32 v{h1}, {sr(sHi)}, v{H}")
        g(f"v_sub_f32 v{a0}, v{a0}, v{h0}")
        g(f"v_sub_f32 v{a1}, v{a1}, v{h1}")
        g(f"v_cvt_pk_bf16_f32 v{b0}, v{a0}, v{a1}")
        g(f"v_cndmask_b32 {vr(QO+w)}, v{H}, v{b0}, {sr(sMask,2)}")
    def xreduce(op, v, t):
        g(f"v_mov_b32 {vr(t)}, {vr(v)}")
        g("s_nop 1")
        g(f"v_permlane16_swap_b32 {vr(v)}, {vr(t)}")
        g("s_nop 1")
        g(f"{op} {vr(v)}, {vr(v)}, {vr(t)}")
        g(f"v_mov_b32 {vr(t)}, {vr(v)}")
        g("s_nop 1")
        g(f"v_permlane32_swap_b32 {vr(v)}, {vr(t)}")
        g("s_nop 1")
        g(f"{op} {vr(v)}, {vr(v)}, {vr(t)}")
    xreduce("v_add_f32", vT0, vT1)
    for r in range(4):
        g(f"v_mul_f32 {vr(CI+r)}, -0.5, {vr(vT0)}")
    g(f"v_mov_b32 {vr(vM)}, 0")
    g(f"v_mov_b32 {vr(vL)}, 0")
    for r in range(32):
        g(f"v_mov_b32 {vr(O+r)}, 0")
    for r in range(4):
        g(f"v_mov_b32 {vr(CORR+r)}, 0")

    def stepK(k, tile, soff_next):
        ab, pp = k % 2, po[k // 2]
        T = TK + 4 * (k & 1)
        S = SA if ab == 0 else SB
        if ("K", tile, k, 1) in q.q:
            q.wait(("K", tile, k, 1))
        for i in range(8):
            g(f"v_cvt_f32_i32 {vr(KR+8*k+i)}, {vr(KR+8*k+i)}")
        for i in range(4):
            g(f"v_cvt_pk_bf16_f32 {vr(T+i)}, {vr(KR+8*k+2*i)}, {vr(KR+8*k+2*i+1)}")
        loadK(k, 0, soff_next, tile+1); loadK(k, 1, soff_next, tile+1)
        g(f"v_mfma_f32_16x16x32_bf16 {vr(S,4)}, {vr(T,4)}, {vr(QO+4*pp,4)}, {vr(CI if k < 2 else S,4)}")
    def stepV(k, tile, soff_next, issue=True):
        i, half = k // 2, k % 2
        q.wait(("V", tile, k, 1))
        for x in range(8):
            g(f"v_cvt_f32_i32 {vr(VR+8*k+x)}, {vr(VR+8*k+x)}")
        for c in range(4):
            g(f"v_cvt_pk_bf16_f32 {vr(TV+(half*4+c)*4+i)}, {vr(VR+8*k+c)}, {vr(VR+8*k+4+c)}")
        if issue:
            loadV(k, 0, soff_next, tile+1); loadV(k, 1, soff_next, tile+1)
        elif i == 3:
            g("s_nop 1")
        if i == 3:
            for c in range(4):
                acc = O + (half*4+c)*4
                g(f"v_mfma_f32_16x16x32_bf16 {vr(acc,4)}, {vr(TV+(half*4+c)*4,4)}, {vr(WP,4)}, {vr(acc,4)}")
    rare_sites = []
    def softmax(tile, site, pad):
        U = TK
        if ("vz", tile) in q.q:
            q.wait(("vz", tile))
        for i in range(4):
            g(f"v_lshlrev_b32 {vr(U+2*i)}, 16, {vr(VS+i)}")
            g(f"v_and_b32 {vr(U+2*i+1)}, {sr(sHi)}, {vr(VS+i)}")
        loadS(tile+1)
        if pad: g(f"s_nop {pad-1}")
        for e in range(8):
            g(f"v_add_f32_dpp {vr(SA+e)}, {vr(SA+e)}, {vr(SA+e)} quad_perm:[2,3,0,1] row_mask:0xf bank_mask:0xf")
        X = SA
        g(f"v_max3_f32 {vr(vT0)}, {vr(X)}, {vr(X+1)}, {vr(X+2)}")
        g(f"v_max3_f32 {vr(vT1)}, {vr(X+3)}, {vr(X+4)}, {vr(X+5)}")
        g(f"v_max3_f32 {vr(vT0)}, {vr(vT0)}, {vr(X+6)}, {vr(X+7)}")
        g(f"v_max_f32 {vr(vT0)}, {vr(vT0)}, {vr(vT1)}")
        g(f"v_cmp_lt_f32 vcc, {sr(sThr)}, {vr(vT0)}")
        g(f"s_cbranch_vccnz L_rare{site}")
        g.label(f"L_back{site}")
        rare_sites.append(site)
        for e in range(8):
            g(f"v_exp_f32 {vr(X+e)}, {vr(X+e)}")
        g("s_nop 0")
        for e in range(8):
            g(f"v_mul_f32 {vr(U+e)}, {vr(X+e)}, {vr(U+e)}")
        for i in range(4):
            g(f"v_cvt_pk_bf16_f32 {vr(WP+i)}, {vr(U+pairs[i][0])}, {vr(U+pairs[i][1])}")
        if cfg.vord == "n":
            W2 = WP
        else:
            W2 = WP2
            for i in range(4):
                g(f"v_cvt_pk_bf16_f32 {vr(WP2+i)}, {vr(U+2*i)}, {vr(U+2*i+1)}")
        g(f"v_add_f32 {vr(X)}, {vr(X)}, {vr(X+1)}")
        g(f"v_add_f32 {vr(X+2)}, {vr(X+2)}, {vr(X+3)}")
        g(f"v_mfma_f32_16x16x32_bf16 {vr(CORR,4)}, {vr(VZ,4)}, {vr(W2,4)}, {vr(CORR,4)}")
        g(f"v_add_f32 {vr(X+4)}, {vr(X+4)}, {vr(X+5)}")
        g(f"v_add_f32 {vr(X+6)}, {vr(X+6)}, {vr(X+7)}")
        g(f"v_add_f32 {vr(X)}, {vr(X)}, {vr(X+2)}")
        g(f"v_add_f32 {vr(X+4)}, {vr(X+4)}, {vr(X+6)}")
        loadZ(tile+1)
        g(f"v_add_f32 {vr(X)}, {vr(X)}, {vr(X+4)}")
        g(f"v_add_f32 {vr(vL)}, {vr(vL)}, {vr(X)}")

    for k in range(8):
        stepK(k, 0, sOffB)
        loadV(k, 0, sOffA, 0); loadV(k, 1, sOffA, 0)
    softmax(0, 0, 0)
    g(f"s_mov_b32 {sr(sN)}, 2")
    entry = list(q.q)
    if cfg.align: g(".p2align 6")
    g.label("L_loop")
    g(f"s_mov_b32 {sr(sOffA)}, {sr(sOffB)}")
    g(f"s_add_u32 {sr(sT)}, {sr(sT)}, {stride}")
    tile_off(sOffB, sOffS)
    g(f"s_cmp_lt_u32 {sr(sN)}, {TPW}")
    g(f"s_cselect_b32 {sr(sOffB)}, {sr(sOffB)}, 0x20000000")
    g(f"s_cselect_b32 {sr(sOffS)}, {sr(sOffS)}, 0x20000000")
    for k in range(8):
        stepK(k, 1, sOffB)
        stepV(k, 0, sOffA)
    softmax(1, 1, 0)
    def shift(t):
        return (t[0], t[1]-1) + tuple(t[2:])
    assert [shift(t) for t in q.q] == entry, (q.q, entry)
    g(f"s_add_u32 {sr(sN)}, {sr(sN)}, 1")
    g(f"s_cmp_le_u32 {sr(sN)}, {TPW}")
    g("s_cbranch_scc1 L_loop")
    for k in range(8):
        stepV(k, 1, None, issue=False)
    xreduce("v_add_f32", vL, vT1)
    g(f"v_and_b32 v12, 15, {vr(vLane)}")
    g(f"v_lshrrev_b32 v13, 4, {vr(vLane)}")
    g(f"s_lshl_b32 {sr(sTmp)}, {sr(sWave)}, 10")
    g("v_lshlrev_b32 v14, 9, v12")
    g("v_lshl_add_u32 v14, v13, 6, v14")
    g(f"v_add_u32 v14, {sr(sTmp)}, v14")
    g(f"s_lshl_b32 {sr(sTmp)}, {sr(sWave)}, 4")
    g(f"s_add_u32 {sr(sTmp)}, {sr(sTmp)}, {WPW*1024}")
    g("v_lshlrev_b32 v15, 3, v12")
    g(f"v_add_u32 v15, {sr(sTmp)}, v15")
    g("v_cmp_gt_u32 vcc, 2, v12")
    g(f"s_and_saveexec_b64 {sr(sExec,2)}, vcc")
    for half in range(2):
        for r in range(4):
            T = TV + 4*(half*4+r)
            for c in range(4):
                g(f"v_sub_f32 {vr(T+c)}, {vr(O+(half*4+c)*4+r)}, {vr(CORR)}")
            g(f"ds_write_b128 v14, {vr(T,4)} offset:{half*256+r*16}")
    g(f"ds_write_b64 v15, {vr(vM,2)}")
    g(f"s_mov_b64 exec, {sr(sExec,2)}")
    g("s_waitcnt vmcnt(0) lgkmcnt(0)")
    g("s_barrier")
    g(f"s_cmp_lg_u32 {sr(sWave)}, 0")
    g("s_cbranch_scc1 L_end")
    g(f"v_lshrrev_b32 v10, 5, {vr(vLane)}")
    g(f"v_lshlrev_b32 v11, 4, {vr(vLane)}")
    g("v_lshlrev_b32 v12, 3, v10")
    ML = 64; OP = 96
    def combine(n, ML, OP, M, L, R):
        g(f"v_mov_b32 {vr(M)}, {vr(ML)}")
        for w in range(1, n):
            g(f"v_max_f32 {vr(M)}, {vr(M)}, {vr(ML+2*w)}")
        for w in range(n):
            g(f"v_sub_f32 {vr(ML+2*w)}, {vr(ML+2*w)}, {vr(M)}")
        for w in range(n):
            g(f"v_exp_f32 {vr(ML+2*w)}, {vr(ML+2*w)}")
        g("s_nop 0")
        g(f"v_mul_f32 {vr(L)}, {vr(ML)}, {vr(ML+1)}")
        for c in range(4):
            g(f"v_mul_f32 {vr(R+c)}, {vr(ML)}, {vr(OP+c)}")
        for w in range(1, n):
            g(f"v_fmac_f32 {vr(L)}, {vr(ML+2*w)}, {vr(ML+2*w+1)}")
            for c in range(4):
                g(f"v_fmac_f32 {vr(R+c)}, {vr(ML+2*w)}, {vr(OP+4*w+c)}")
    for w in range(WPW):
        g(f"ds_read_b64 {vr(ML+2*w,2)}, v12 offset:{WPW*1024+w*16}")
    for w in range(WPW):
        g(f"ds_read_b128 {vr(OP+4*w,4)}, v11 offset:{w*1024}")
    g(f"s_and_b32 {sr(sTmp)}, {sr(sUnit)}, 1")
    g(f"s_mul_i32 {sr(sTmp)}, {sr(sTmp)}, {WGPU}")
    g(f"s_add_u32 {sr(sTmp)}, {sr(sTmp)}, {sr(sSub)}")
    g(f"s_mul_i32 {sr(sTmp2)}, {sr(sBH)}, {NP}")
    g(f"s_add_u32 {sr(sTmp)}, {sr(sTmp)}, {sr(sTmp2)}")
    g(f"s_lshl_b32 {sr(sOffA)}, {sr(sTmp)}, 10")
    g(f"s_lshl_b32 {sr(sOffB)}, {sr(sTmp)}, 4")
    g(f"s_add_u32 {sr(sOffB)}, {sr(sOffB)}, 0x{MLBASE:x}")
    g("s_waitcnt lgkmcnt(0)")
    combine(WPW, ML, OP, 20, 21, 24)
    sc = " sc1" if cfg.fused else ""
    g(f"buffer_store_dwordx4 v[24:27], v11, {sr(sWS,4)}, {sr(sOffA)} offen{sc}")
    g(f"v_and_b32 v16, 31, {vr(vLane)}")
    g("v_cmp_eq_u32 vcc, 0, v16")
    g(f"s_and_saveexec_b64 {sr(sExec,2)}, vcc")
    g(f"buffer_store_dwordx2 v[20:21], v12, {sr(sWS,4)}, {sr(sOffB)} offen{sc}")
    if cfg.fused:
        g(f"v_cmp_eq_u32 vcc, 0, {vr(vLane)}")
        g("s_and_b64 exec, exec, vcc")
        g("v_mov_b32 v16, 1")
        g("v_mov_b32 v17, 0")
        g(f"s_lshl_b32 {sr(sTmp)}, {sr(sBH)}, 2")
        g("s_waitcnt vmcnt(0)")
        g(f"buffer_atomic_add v16, v17, {sr(sDBG,4)}, {sr(sTmp)} offen sc0")
        g("s_waitcnt vmcnt(0)")
        g(f"v_readfirstlane_b32 {sr(sTmp)}, v16")
        g("s_mov_b64 exec, -1")
        g(f"s_cmp_lg_u32 {sr(sTmp)}, {NP-1}")
        g("s_cbranch_scc1 L_end")
        g(f"s_lshl_b32 {sr(sOffA)}, {sr(sTmp2)}, 10")
        g(f"s_lshl_b32 {sr(sOffB)}, {sr(sTmp2)}, 4")
        g(f"s_add_u32 {sr(sOffB)}, {sr(sOffB)}, 0x{MLBASE:x}")
        ML2 = 64; OP2 = 64 + 2*NP
        for p in range(NP):
            g(f"buffer_load_dwordx2 {vr(ML2+2*p,2)}, v12, {sr(sWS,4)}, {sr(sOffB)} offen offset:{16*p} sc1")
        for p in range(NP):
            if p and p % 4 == 0:
                g(f"s_add_u32 {sr(sOffA)}, {sr(sOffA)}, 4096")
            g(f"buffer_load_dwordx4 {vr(OP2+4*p,4)}, v11, {sr(sWS,4)}, {sr(sOffA)} offen offset:{1024*(p%4)} sc1")
        g("s_waitcnt vmcnt(0)")
        combine(NP, ML2, OP2, 20, 21, 24)
        g("v_rcp_f32 v21, v21")
        g(f"s_lshl_b32 {sr(sTmp)}, {sr(sBH)}, 9")
        for c in range(4):
            g(f"v_mul_f32 v{24+c}, v{24+c}, v21")
        g("v_cvt_pk_bf16_f32 v24, v24, v25")
        g("v_cvt_pk_bf16_f32 v25, v26, v27")
        g(f"v_lshlrev_b32 v11, 3, {vr(vLane)}")
        g(f"buffer_store_dwordx2 v[24:25], v11, {sr(sOUT,4)}, {sr(sTmp)} offen")
    g.label("L_end")
    g("s_endpgm")
    for site in rare_sites:
        g.label(f"L_rare{site}")
        xreduce("v_max_f32", vT0, vT1)
        g(f"v_max_f32 {vr(vT0)}, {sr(sThr)}, {vr(vT0)}")
        g(f"v_max_f32 {vr(vT1)}, 0, {vr(vT0)}")
        g(f"v_exp_f32 {vr(vT1)}, -{vr(vT1)}")
        for e in range(8):
            g(f"v_sub_f32 {vr(SA+e)}, {vr(SA+e)}, {vr(vT0)}")
        for r in range(4):
            g(f"v_fma_f32 {vr(CI+r)}, {vr(vT0)}, -0.5, {vr(CI+r)}")
        g(f"v_add_f32 {vr(vM)}, {vr(vM)}, {vr(vT0)}")
        g(f"v_mul_f32 {vr(vL)}, {vr(vL)}, {vr(vT1)}")
        for r in range(32):
            g(f"v_mul_f32 {vr(O+r)}, {vr(O+r)}, {vr(vT1)}")
        for r in range(4):
            g(f"v_mul_f32 {vr(CORR+r)}, {vr(CORR+r)}, {vr(vT1)}")
        g(f"s_mov_b32 {sr(sThr)}, 0")
        g(f"s_branch L_back{site}")
    main = g.text()

    comb = ""
    if not cfg.fused:
        g = Gen()
        g.label("kvq_combine_kernel")
        g("s_cmp_ge_u32 s2, 32")
        g("s_cbranch_scc1 L_cend")
        g("s_load_dwordx2 s[4:5], s[0:1], 56")
        g("s_load_dwordx2 s[6:7], s[0:1], 72")
        g(f"s_mul_i32 s16, s2, {NP*1024}")
        g(f"s_mul_i32 s17, s2, {NP*16}")
        g(f"s_add_u32 s17, s17, 0x{MLBASE:x}")
        g("v_lshrrev_b32 v10, 5, v0")
        g("v_lshlrev_b32 v11, 4, v0")
        g("v_lshlrev_b32 v12, 3, v10")
        g("s_waitcnt lgkmcnt(0)")
        g("s_mov_b32 s8, s6"); g("s_and_b32 s9, s7, 0xffff"); g(f"s_mov_b32 s10, 0x{WSBYTES:x}"); g("s_mov_b32 s11, 0x00020000")
        g("s_mov_b32 s12, s4"); g("s_and_b32 s13, s5, 0xffff"); g("s_mov_b32 s14, 16384"); g("s_mov_b32 s15, 0x00020000")
        ML2 = 32; OP2 = 32 + 2*NP
        for p in range(NP):
            g(f"buffer_load_dwordx2 {vr(ML2+2*p,2)}, v12, s[8:11], s17 offen offset:{16*p}")
        for p in range(NP):
            if p and p % 4 == 0:
                g("s_add_u32 s16, s16, 4096")
            g(f"buffer_load_dwordx4 {vr(OP2+4*p,4)}, v11, s[8:11], s16 offen offset:{1024*(p%4)}")
        g("s_waitcnt vmcnt(0)")
        combine(NP, ML2, OP2, 20, 21, 24)
        g("v_rcp_f32 v21, v21")
        g("s_lshl_b32 s18, s2, 9")
        for c in range(4):
            g(f"v_mul_f32 v{24+c}, v{24+c}, v21")
        g("v_cvt_pk_bf16_f32 v24, v24, v25")
        g("v_cvt_pk_bf16_f32 v25, v26, v27")
        g("v_lshlrev_b32 v11, 3, v0")
        g("buffer_store_dwordx2 v[24:25], v11, s[12:15], s18 offen")
        g.label("L_cend")
        g("s_endpgm")
        comb = g.text()
        ncv = OP2 + 4*NP

    lds = WPW*1024 + WPW*16
    out = HEADER
    if cfg.fused:
        out += f"; @launch grid=({NWG},1,1) block=({WPW*64},1,1) lds={lds}\n"
    else:
        out += f"; @launch kernel={NAME}_kernel grid=({NWG},1,1) block=({WPW*64},1,1) lds={lds}\n"
        out += f"; @launch kernel=kvq_combine_kernel grid=(32,1,1) block=(64,1,1) lds=0\n"
    out += '.amdgcn_target "amdgcn-amd-amdhsa--gfx950"\n.text\n'
    out += f".globl {NAME}_kernel\n.p2align 8\n.type {NAME}_kernel,@function\n" + main
    if comb:
        out += ".globl kvq_combine_kernel\n.p2align 8\n.type kvq_combine_kernel,@function\n" + comb
    out += '.section .rodata,"a"\n'
    def kd(name, nv, ns):
        acc = (nv + 3) // 4 * 4
        return (f".p2align 6\n.amdhsa_kernel {name}\n  .amdhsa_next_free_vgpr {nv}\n  .amdhsa_next_free_sgpr {ns}\n"
                f"  .amdhsa_accum_offset {acc}\n  .amdhsa_group_segment_fixed_size 0\n  .amdhsa_kernarg_size 80\n"
                "  .amdhsa_user_sgpr_count 2\n  .amdhsa_user_sgpr_kernarg_segment_ptr 1\n"
                "  .amdhsa_system_sgpr_workgroup_id_x 1\n.end_amdhsa_kernel\n")
    out += kd(f"{NAME}_kernel", NV, NS)
    if comb:
        out += kd("kvq_combine_kernel", ncv, 24)
    return out

if __name__ == "__main__":
    ap = argparse.ArgumentParser()
    ap.add_argument("-o", default="/dev/stdout")
    ap.add_argument("--wpw", type=int, default=4)
    ap.add_argument("--nwg", type=int, default=512)
    ap.add_argument("--order", default="wgblk")
    ap.add_argument("--S", type=int, default=64)
    ap.add_argument("--vord", default="q")
    ap.add_argument("--kord", default="f")
    ap.add_argument("--fused", type=int, default=1)
    ap.add_argument("--earlyv", type=int, default=0)
    ap.add_argument("--align", type=int, default=1)
    cfg = ap.parse_args()
    open(cfg.o, "w").write(build(cfg))
```

```python
import sys, argparse, math, struct
from gen import Gen, vr, sr, HEADER, NAME, f32bits

class Q:
    def __init__(self, g):
        self.g = g; self.q = []
    def issue(self, tag):
        self.q.append(tag)
    def wait(self, *tags):
        idx = max(self.q.index(t) for t in tags)
        n = len(self.q) - 1 - idx
        assert n <= 63
        self.g(f"s_waitcnt vmcnt({n})")
        self.q = self.q[idx+1:]
        return n

def build(cfg):
    WPW = cfg.wpw; NWG = cfg.nwg
    WGPU = NWG // 64
    WPU = WGPU * WPW
    TPW = 512 // WPU
    assert WGPU * 64 == NWG and TPW * WPU == 512 and TPW >= 3
    NP = 2 * WGPU
    S_ = cfg.S; NT = S_ // 8
    MLBASE = 32 * NP * 1024
    WSBYTES = MLBASE + 32 * NP * 16
    nt = " nt"
    g = Gen()
    q = Q(g)
    vK, vV, vS, vT0, vM, vL, vT1 = 1, 2, 3, 0, 4, 5, 6
    vLane = 7
    CI = 8; QO = 12; SA = 28; SB = 32
    WP = 36; WP2 = 40; VS = 44; VZ = 48; TK = 52
    CORR = 60
    KR = 64; VR = 128; O = 192; TV = 224
    NV = 256
    sK, sV, sVS, sVZ, sQ, sKS, sKZ, sWS, sDBG, sOUT = 24, 28, 32, 36, 40, 44, 48, 52, 72, 76
    sWave, sUnit, sSub, sOffA, sOffB, sOffS, sN, sThr, sTmp, sTmp2, sBH, sT = 56, 57, 58, 59, 60, 61, 62, 63, 64, 65, 80, 81
    sMask = 66; sHi = 68; sC = 69; sExec = 70
    NS = 92
    pairs = {"q": [(0,4),(2,6),(1,5),(3,7)], "n": [(0,1),(2,3),(4,5),(6,7)], "r": [(0,1),(4,5),(2,3),(6,7)]}[cfg.vord]
    po = {"e": [0,1,2,3], "f": [0,2,1,3]}[cfg.kord]

    g.label(f"{NAME}_kernel")
    g(f"s_cmp_ge_u32 s2, {NWG}")
    g("s_cbranch_scc1 L_end")
    g("s_load_dwordx4 s[4:7], s[0:1], 0")
    g("s_load_dwordx4 s[8:11], s[0:1], 16")
    g("s_load_dwordx8 s[12:19], s[0:1], 32")
    g("s_load_dwordx4 s[20:23], s[0:1], 64")
    if cfg.stamp:
        g("s_memrealtime s[84:85]")
        g("s_getreg_b32 s88, hwreg(HW_REG_XCC_ID)")
    g(f"v_and_b32 {vr(vLane)}, 63, v0")
    g("v_lshrrev_b32 v11, 6, v0")
    g(f"v_and_b32 v12, 15, {vr(vLane)}")
    g(f"v_lshrrev_b32 v13, 4, {vr(vLane)}")
    g(f"v_readfirstlane_b32 {sr(sWave)}, v11")
    g("v_lshrrev_b32 v14, 2, v12")
    g("v_and_b32 v15, 3, v12")
    g(f"v_mul_u32_u24 v14, {S_}, v14")
    g("v_add_u32 v14, v14, v15")
    g("v_lshlrev_b32 v14, 9, v14")
    g(f"v_lshl_add_u32 {vr(vK)}, v13, 4, v14")
    g(f"v_mul_u32_u24 v14, {S_*512}, v13")
    g(f"v_lshl_add_u32 {vr(vV)}, v12, 4, v14")
    g(f"v_mul_u32_u24 {vr(vS)}, {2*S_}, v13")
    g("v_lshlrev_b32 v17, 3, v13")
    g("v_and_b32 v16, 1, v12")
    g("v_lshl_add_u32 v16, v16, 8, v17")
    g("v_and_b32 v14, 2, v12")
    g(f"v_cmp_ne_u32 {sr(sMask,2)}, 0, v14")
    g(f"s_lshr_b32 {sr(sUnit)}, s2, {int(math.log2(WGPU))}")
    g(f"s_and_b32 {sr(sSub)}, s2, {WGPU-1}")
    g(f"s_lshr_b32 {sr(sBH)}, {sr(sUnit)}, 1")
    if cfg.order == "inter":
        g(f"s_mul_i32 {sr(sT)}, {sr(sSub)}, {WPW}")
        g(f"s_add_u32 {sr(sT)}, {sr(sT)}, {sr(sWave)}")
        stride = WPU
    elif cfg.order == "wgblk":
        g(f"s_mul_i32 {sr(sT)}, {sr(sSub)}, {512//WGPU}")
        g(f"s_add_u32 {sr(sT)}, {sr(sT)}, {sr(sWave)}")
        stride = WPW
    g(f"s_lshl_b32 {sr(sTmp2)}, {sr(sUnit)}, 9")
    g(f"s_add_u32 {sr(sT)}, {sr(sT)}, {sr(sTmp2)}")
    def tile_off(dst, dsts):
        g(f"s_and_b32 {sr(sTmp)}, {sr(sT)}, {NT-1}")
        g(f"s_sub_u32 {sr(sTmp2)}, {sr(sT)}, {sr(sTmp)}")
        g(f"s_lshl_b32 {sr(sTmp2)}, {sr(sTmp2)}, 2")
        g(f"s_add_u32 {sr(sTmp)}, {sr(sTmp)}, {sr(sTmp2)}")
        g(f"s_lshl_b32 {sr(dst)}, {sr(sTmp)}, 12")
        g(f"s_lshl_b32 {sr(dsts)}, {sr(sTmp)}, 4")
    tile_off(sOffA, sOffS)
    g(f"s_mov_b32 {sr(sHi)}, 0xffff0000")
    g(f"s_mov_b32 {sr(sC)}, 0x{f32bits((128.0 ** -0.5) * math.log2(math.e)):08x}")
    g(f"s_mov_b32 {sr(sThr)}, 0xff7fffff")
    g("s_waitcnt lgkmcnt(0)")
    def srd(d, p, nbytes):
        g(f"s_mov_b32 {sr(d)}, {sr(p)}")
        g(f"s_and_b32 {sr(d+1)}, {sr(p+1)}, 0xffff")
        g(f"s_mov_b32 {sr(d+2)}, 0x{nbytes:x}")
        g(f"s_mov_b32 {sr(d+3)}, 0x00020000")
    srd(sK, 6, 0x20000000)
    def loadK(k, x, soff, tile):
        ab, pp = k % 2, po[k // 2]
        g(f"buffer_load_dwordx4 {vr(KR+8*k+4*x,4)}, {vr(vK)}, {sr(sK,4)}, {sr(soff)} offen offset:{ab*2048+(2*pp+x)*64}{nt}")
        q.issue(("K", tile, k, x))
    def loadV(k, x, soff, tile):
        i, half = k // 2, k % 2
        g(f"buffer_load_dwordx4 {vr(VR+8*k+4*x,4)}, {vr(vV)}, {sr(sV,4)}, {sr(soff)} offen offset:{pairs[i][x]*512+half*256}{nt}")
        q.issue(("V", tile, k, x))
    def loadS(tile):
        if cfg.novs: return
        g(f"buffer_load_dwordx4 {vr(VS,4)}, {vr(vS)}, {sr(sVS,4)}, {sr(sOffS)} offen")
        q.issue(("vs", tile))
    def loadZ(tile):
        if cfg.novs: return
        g(f"buffer_load_dwordx4 {vr(VZ,4)}, {vr(vS)}, {sr(sVZ,4)}, {sr(sOffS)} offen")
        q.issue(("vz", tile))
    RQ, RS, RZ = 192, 208, 224
    def small_loads():
        srd(sQ, 4, 16384)
        srd(sKS, 10, 16384)
        srd(sKZ, 12, 16384)
        g(f"s_lshl_b32 {sr(sTmp)}, {sr(sBH)}, 9")
        g(f"s_lshl_b32 {sr(sTmp2)}, {sr(sUnit)}, 8")
        for p in range(8):
            g(f"buffer_load_dwordx2 {vr(RQ+2*p,2)}, v16, {sr(sQ,4)}, {sr(sTmp)} offen offset:{32*p}"); q.issue(("sm", p, 0))
            g(f"buffer_load_dwordx2 {vr(RS+2*p,2)}, v17, {sr(sKS,4)}, {sr(sTmp2)} offen offset:{32*p}"); q.issue(("sm", p, 1))
            g(f"buffer_load_dwordx2 {vr(RZ+2*p,2)}, v17, {sr(sKZ,4)}, {sr(sTmp2)} offen offset:{32*p}"); q.issue(("sm", p, 2))
    if cfg.earlyv:
        srd(sV, 8, 0x20000000)
        if cfg.earlyv == 1:
            small_loads()
        for k in range(8):
            loadK(k, 0, sOffA, 0); loadK(k, 1, sOffA, 0)
            loadV(k, 0, sOffA, 0); loadV(k, 1, sOffA, 0)
            if cfg.earlyv == 2 and k == 1:
                small_loads()
        srd(sVS, 14, 0x200000)
        srd(sVZ, 16, 0x200000)
        loadS(0); loadZ(0)
    else:
        for k in range(8):
            loadK(k, 0, sOffA, 0); loadK(k, 1, sOffA, 0)
        small_loads()
        srd(sVS, 14, 0x200000)
        srd(sVZ, 16, 0x200000)
        loadS(0); loadZ(0)
        srd(sV, 8, 0x20000000)
    srd(sWS, 22, WSBYTES if not cfg.stamp else 0x2000000)
    srd(sDBG, 20, 256)
    srd(sOUT, 18, 16384)
    g(f"s_add_u32 {sr(sT)}, {sr(sT)}, {stride}")
    tile_off(sOffB, sOffS)
    q.wait(("sm", 7, 2))
    g(f"v_mov_b32 {vr(vT0)}, 0")
    a0, a1, b0, b1, z0, z1, H, h0, h1 = range(28, 37)
    for w in range(16):
        g(f"v_lshlrev_b32 v{a0}, 16, {vr(RQ+w)}")
        g(f"v_and_b32 v{a1}, {sr(sHi)}, {vr(RQ+w)}")
        g(f"v_lshlrev_b32 v{b0}, 16, {vr(RS+w)}")
        g(f"v_and_b32 v{b1}, {sr(sHi)}, {vr(RS+w)}")
        g(f"v_lshlrev_b32 v{z0}, 16, {vr(RZ+w)}")
        g(f"v_and_b32 v{z1}, {sr(sHi)}, {vr(RZ+w)}")
        g(f"v_mul_f32 v{a0}, v{a0}, v{b0}")
        g(f"v_mul_f32 v{a1}, v{a1}, v{b1}")
        g(f"v_mul_f32 v{a0}, {sr(sC)}, v{a0}")
        g(f"v_mul_f32 v{a1}, {sr(sC)}, v{a1}")
        g(f"v_fmac_f32 {vr(vT0)}, v{a0}, v{z0}")
        g(f"v_fmac_f32 {vr(vT0)}, v{a1}, v{z1}")
        g(f"v_cvt_pk_bf16_f32 v{H}, v{a0}, v{a1}")
        g(f"v_lshlrev_b32 v{h0}, 16, v{H}")
        g(f"v_and_b32 v{h1}, {sr(sHi)}, v{H}")
        g(f"v_sub_f32 v{a0}, v{a0}, v{h0}")
        g(f"v_sub_f32 v{a1}, v{a1}, v{h1}")
        g(f"v_cvt_pk_bf16_f32 v{b0}, v{a0}, v{a1}")
        g(f"v_cndmask_b32 {vr(QO+w)}, v{H}, v{b0}, {sr(sMask,2)}")
    def xreduce(op, v, t):
        g(f"v_mov_b32 {vr(t)}, {vr(v)}")
        g("s_nop 1")
        g(f"v_permlane16_swap_b32 {vr(v)}, {vr(t)}")
        g("s_nop 1")
        g(f"{op} {vr(v)}, {vr(v)}, {vr(t)}")
        g(f"v_mov_b32 {vr(t)}, {vr(v)}")
        g("s_nop 1")
        g(f"v_permlane32_swap_b32 {vr(v)}, {vr(t)}")
        g("s_nop 1")
        g(f"{op} {vr(v)}, {vr(v)}, {vr(t)}")
    xreduce("v_add_f32", vT0, vT1)
    for r in range(4):
        g(f"v_mul_f32 {vr(CI+r)}, -0.5, {vr(vT0)}")
    g(f"v_mov_b32 {vr(vM)}, 0")
    g(f"v_mov_b32 {vr(vL)}, 0")
    for r in range(32):
        g(f"v_mov_b32 {vr(O+r)}, 0")
    for r in range(4):
        g(f"v_mov_b32 {vr(CORR+r)}, 0")

    def stepK(k, tile, soff_next):
        ab, pp = k % 2, po[k // 2]
        T = TK + 4 * (k & 1)
        S = SA if ab == 0 else SB
        if ("K", tile, k, 1) in q.q:
            q.wait(("K", tile, k, 1))
        for i in range(8):
            if not cfg.nocvt: g(f"v_cvt_f32_i32 {vr(KR+8*k+i)}, {vr(KR+8*k+i)}")
        for i in range(4):
            if not cfg.nocvt: g(f"v_cvt_pk_bf16_f32 {vr(T+i)}, {vr(KR+8*k+2*i)}, {vr(KR+8*k+2*i+1)}")
        loadK(k, 0, soff_next, tile+1); loadK(k, 1, soff_next, tile+1)
        g(f"v_mfma_f32_16x16x32_bf16 {vr(S,4)}, {vr(T,4)}, {vr(QO+4*pp,4)}, {vr(CI if k < 2 else S,4)}")
    def stepV(k, tile, soff_next, issue=True):
        i, half = k // 2, k % 2
        if ("V", tile, k, 1) in q.q:
            q.wait(("V", tile, k, 1))
        for x in range(8):
            if not cfg.nocvt: g(f"v_cvt_f32_i32 {vr(VR+8*k+x)}, {vr(VR+8*k+x)}")
        for c in range(4):
            if not cfg.nocvt: g(f"v_cvt_pk_bf16_f32 {vr(TV+(half*4+c)*4+i)}, {vr(VR+8*k+c)}, {vr(VR+8*k+4+c)}")
        if issue:
            loadV(k, 0, soff_next, tile+1); loadV(k, 1, soff_next, tile+1)
        elif i == 3:
            g("s_nop 1")
        if i == 3:
            for c in range(4):
                acc = O + (half*4+c)*4
                g(f"v_mfma_f32_16x16x32_bf16 {vr(acc,4)}, {vr(TV+(half*4+c)*4,4)}, {vr(WP,4)}, {vr(acc,4)}")
    rare_sites = []
    def softmax(tile, site, pad):
        U = TK
        if ("vz", tile) in q.q:
            q.wait(("vz", tile))
        for i in range(4):
            g(f"v_lshlrev_b32 {vr(U+2*i)}, 16, {vr(VS+i)}")
            g(f"v_and_b32 {vr(U+2*i+1)}, {sr(sHi)}, {vr(VS+i)}")
        loadS(tile+1)
        if pad: g(f"s_nop {pad-1}")
        for e in range(8):
            g(f"v_add_f32_dpp {vr(SA+e)}, {vr(SA+e)}, {vr(SA+e)} quad_perm:[2,3,0,1] row_mask:0xf bank_mask:0xf")
        X = SA
        g(f"v_max3_f32 {vr(vT0)}, {vr(X)}, {vr(X+1)}, {vr(X+2)}")
        g(f"v_max3_f32 {vr(vT1)}, {vr(X+3)}, {vr(X+4)}, {vr(X+5)}")
        g(f"v_max3_f32 {vr(vT0)}, {vr(vT0)}, {vr(X+6)}, {vr(X+7)}")
        g(f"v_max_f32 {vr(vT0)}, {vr(vT0)}, {vr(vT1)}")
        g(f"v_cmp_lt_f32 vcc, {sr(sThr)}, {vr(vT0)}")
        g(f"s_cbranch_vccnz L_rare{site}")
        g.label(f"L_back{site}")
        rare_sites.append(site)
        for e in range(8):
            g(f"v_exp_f32 {vr(X+e)}, {vr(X+e)}")
        g("s_nop 0")
        for e in range(8):
            g(f"v_mul_f32 {vr(U+e)}, {vr(X+e)}, {vr(U+e)}")
        for i in range(4):
            g(f"v_cvt_pk_bf16_f32 {vr(WP+i)}, {vr(U+pairs[i][0])}, {vr(U+pairs[i][1])}")
        if cfg.vord == "n":
            W2 = WP
        else:
            W2 = WP2
            for i in range(4):
                g(f"v_cvt_pk_bf16_f32 {vr(WP2+i)}, {vr(U+2*i)}, {vr(U+2*i+1)}")
        g(f"v_add_f32 {vr(X)}, {vr(X)}, {vr(X+1)}")
        g(f"v_add_f32 {vr(X+2)}, {vr(X+2)}, {vr(X+3)}")
        g(f"v_mfma_f32_16x16x32_bf16 {vr(CORR,4)}, {vr(VZ,4)}, {vr(W2,4)}, {vr(CORR,4)}")
        g(f"v_add_f32 {vr(X+4)}, {vr(X+4)}, {vr(X+5)}")
        g(f"v_add_f32 {vr(X+6)}, {vr(X+6)}, {vr(X+7)}")
        g(f"v_add_f32 {vr(X)}, {vr(X)}, {vr(X+2)}")
        g(f"v_add_f32 {vr(X+4)}, {vr(X+4)}, {vr(X+6)}")
        loadZ(tile+1)
        g(f"v_add_f32 {vr(X)}, {vr(X)}, {vr(X+4)}")
        g(f"v_add_f32 {vr(vL)}, {vr(vL)}, {vr(X)}")

    for k in range(8):
        stepK(k, 0, sOffB)
        if not cfg.earlyv:
            loadV(k, 0, sOffA, 0); loadV(k, 1, sOffA, 0)
    softmax(0, 0, 0)
    g(f"s_mov_b32 {sr(sN)}, 2")
    def body(t, site):
        g(f"s_mov_b32 {sr(sOffA)}, {sr(sOffB)}")
        g(f"s_add_u32 {sr(sT)}, {sr(sT)}, {stride}")
        tile_off(sOffB, sOffS)
        g(f"s_cmp_lt_u32 {sr(sN)}, {TPW}")
        g(f"s_cselect_b32 {sr(sOffB)}, {sr(sOffB)}, 0x20000000")
        g(f"s_cselect_b32 {sr(sOffS)}, {sr(sOffS)}, 0x20000000")
        for k in range(8):
            stepK(k, t+1, sOffB)
            stepV(k, t, sOffB if cfg.nolag else sOffA)
        softmax(t+1, site, 0)
        g(f"s_add_u32 {sr(sN)}, {sr(sN)}, 1")
    tb = 0
    if cfg.earlyv:
        body(0, 2)
        tb = 1
    entry = list(q.q)
    if cfg.align: g(".p2align 6")
    g.label("L_loop")
    body(tb, 1)
    def shift(t):
        return (t[0], t[1]-1) + tuple(t[2:])
    assert [shift(t) for t in q.q] == entry, (q.q, entry)
    g(f"s_cmp_le_u32 {sr(sN)}, {TPW}")
    g("s_cbranch_scc1 L_loop")
    for k in range(8):
        stepV(k, tb+1, None, issue=False)
    xreduce("v_add_f32", vL, vT1)
    g(f"v_and_b32 v12, 15, {vr(vLane)}")
    g(f"v_lshrrev_b32 v13, 4, {vr(vLane)}")
    g(f"s_lshl_b32 {sr(sTmp)}, {sr(sWave)}, 10")
    g("v_lshlrev_b32 v14, 9, v12")
    g("v_lshl_add_u32 v14, v13, 6, v14")
    g(f"v_add_u32 v14, {sr(sTmp)}, v14")
    g(f"s_lshl_b32 {sr(sTmp)}, {sr(sWave)}, 4")
    g(f"s_add_u32 {sr(sTmp)}, {sr(sTmp)}, {WPW*1024}")
    g("v_lshlrev_b32 v15, 3, v12")
    g(f"v_add_u32 v15, {sr(sTmp)}, v15")
    g("v_cmp_gt_u32 vcc, 2, v12")
    g(f"s_and_saveexec_b64 {sr(sExec,2)}, vcc")
    for half in range(2):
        for r in range(4):
            T = TV + 4*(half*4+r)
            for c in range(4):
                g(f"v_sub_f32 {vr(T+c)}, {vr(O+(half*4+c)*4+r)}, {vr(CORR)}")
            g(f"ds_write_b128 v14, {vr(T,4)} offset:{half*256+r*16}")
    g(f"ds_write_b64 v15, {vr(vM,2)}")
    g(f"s_mov_b64 exec, {sr(sExec,2)}")
    def stamp(slot):
        g("s_memrealtime s[86:87]")
        g(f"s_mul_i32 s89, s2, {WPW}")
        g(f"s_add_u32 s89, s89, {sr(sWave)}")
        g("s_lshl_b32 s89, s89, 4")
        g(f"s_add_u32 s89, s89, 0x{0x1000000 + slot*0x100000:x}")
        g("s_waitcnt lgkmcnt(0)")
        g("v_mov_b32 v28, s84")
        g("v_mov_b32 v29, s86")
        g("v_mov_b32 v30, s88")
        g("v_mov_b32 v31, 0")
        g("v_mov_b32 v32, 0")
        g("s_mov_b64 s[90:91], exec")
        g("s_mov_b64 exec, 1")
        g(f"buffer_store_dwordx4 v[28:31], v32, {sr(sWS,4)}, s89 offen")
        g("s_mov_b64 exec, s[90:91]")
    if cfg.stamp: stamp(0)
    g("s_waitcnt vmcnt(0) lgkmcnt(0)")
    g("s_barrier")
    g(f"s_cmp_lg_u32 {sr(sWave)}, 0")
    g("s_cbranch_scc1 L_end")
    g(f"v_lshrrev_b32 v10, 5, {vr(vLane)}")
    g(f"v_lshlrev_b32 v11, 4, {vr(vLane)}")
    g("v_lshlrev_b32 v12, 3, v10")
    ML = 64; OP = 96
    def combine(n, ML, OP, M, L, R):
        g(f"v_mov_b32 {vr(M)}, {vr(ML)}")
        for w in range(1, n):
            g(f"v_max_f32 {vr(M)}, {vr(M)}, {vr(ML+2*w)}")
        for w in range(n):
            g(f"v_sub_f32 {vr(ML+2*w)}, {vr(ML+2*w)}, {vr(M)}")
        for w in range(n):
            g(f"v_exp_f32 {vr(ML+2*w)}, {vr(ML+2*w)}")
        g("s_nop 0")
        g(f"v_mul_f32 {vr(L)}, {vr(ML)}, {vr(ML+1)}")
        for c in range(4):
            g(f"v_mul_f32 {vr(R+c)}, {vr(ML)}, {vr(OP+c)}")
        for w in range(1, n):
            g(f"v_fmac_f32 {vr(L)}, {vr(ML+2*w)}, {vr(ML+2*w+1)}")
            for c in range(4):
                g(f"v_fmac_f32 {vr(R+c)}, {vr(ML+2*w)}, {vr(OP+4*w+c)}")
    for w in range(WPW):
        g(f"ds_read_b64 {vr(ML+2*w,2)}, v12 offset:{WPW*1024+w*16}")
    for w in range(WPW):
        g(f"ds_read_b128 {vr(OP+4*w,4)}, v11 offset:{w*1024}")
    g(f"s_and_b32 {sr(sTmp)}, {sr(sUnit)}, 1")
    g(f"s_mul_i32 {sr(sTmp)}, {sr(sTmp)}, {WGPU}")
    g(f"s_add_u32 {sr(sTmp)}, {sr(sTmp)}, {sr(sSub)}")
    g(f"s_mul_i32 {sr(sTmp2)}, {sr(sBH)}, {NP}")
    g(f"s_add_u32 {sr(sTmp)}, {sr(sTmp)}, {sr(sTmp2)}")
    g(f"s_lshl_b32 {sr(sOffA)}, {sr(sTmp)}, 10")
    g(f"s_lshl_b32 {sr(sOffB)}, {sr(sTmp)}, 4")
    g(f"s_add_u32 {sr(sOffB)}, {sr(sOffB)}, 0x{MLBASE:x}")
    g("s_waitcnt lgkmcnt(0)")
    combine(WPW, ML, OP, 20, 21, 24)
    sc = " sc1" if cfg.fused else ""
    g(f"buffer_store_dwordx4 v[24:27], v11, {sr(sWS,4)}, {sr(sOffA)} offen{sc}")
    g(f"v_and_b32 v16, 31, {vr(vLane)}")
    g("v_cmp_eq_u32 vcc, 0, v16")
    g(f"s_and_saveexec_b64 {sr(sExec,2)}, vcc")
    g(f"buffer_store_dwordx2 v[20:21], v12, {sr(sWS,4)}, {sr(sOffB)} offen{sc}")
    if cfg.fused:
        g(f"v_cmp_eq_u32 vcc, 0, {vr(vLane)}")
        g("s_and_b64 exec, exec, vcc")
        g("v_mov_b32 v16, 1")
        g("v_mov_b32 v17, 0")
        g(f"s_lshl_b32 {sr(sTmp)}, {sr(sBH)}, 2")
        g("s_waitcnt vmcnt(0)")
        g(f"buffer_atomic_add v16, v17, {sr(sDBG,4)}, {sr(sTmp)} offen sc0")
        g("s_waitcnt vmcnt(0)")
        g(f"v_readfirstlane_b32 {sr(sTmp)}, v16")
        g("s_mov_b64 exec, -1")
        g(f"s_cmp_lg_u32 {sr(sTmp)}, {NP-1}")
        g("s_cbranch_scc1 L_end")
        g(f"s_lshl_b32 {sr(sOffA)}, {sr(sTmp2)}, 10")
        g(f"s_lshl_b32 {sr(sOffB)}, {sr(sTmp2)}, 4")
        g(f"s_add_u32 {sr(sOffB)}, {sr(sOffB)}, 0x{MLBASE:x}")
        ML2 = 64; OP2 = 64 + 2*NP
        for p in range(NP):
            g(f"buffer_load_dwordx2 {vr(ML2+2*p,2)}, v12, {sr(sWS,4)}, {sr(sOffB)} offen offset:{16*p} sc1")
        for p in range(NP):
            if p and p % 4 == 0:
                g(f"s_add_u32 {sr(sOffA)}, {sr(sOffA)}, 4096")
            g(f"buffer_load_dwordx4 {vr(OP2+4*p,4)}, v11, {sr(sWS,4)}, {sr(sOffA)} offen offset:{1024*(p%4)} sc1")
        g("s_waitcnt vmcnt(0)")
        combine(NP, ML2, OP2, 20, 21, 24)
        g("v_rcp_f32 v21, v21")
        g(f"s_lshl_b32 {sr(sTmp)}, {sr(sBH)}, 9")
        for c in range(4):
            g(f"v_mul_f32 v{24+c}, v{24+c}, v21")
        g("v_cvt_pk_bf16_f32 v24, v24, v25")
        g("v_cvt_pk_bf16_f32 v25, v26, v27")
        g(f"v_lshlrev_b32 v11, 3, {vr(vLane)}")
        g(f"buffer_store_dwordx2 v[24:25], v11, {sr(sOUT,4)}, {sr(sTmp)} offen")
        if cfg.stamp:
            g("s_waitcnt vmcnt(0)")
            stamp(1)
    g.label("L_end")
    g("s_endpgm")
    for site in rare_sites:
        g.label(f"L_rare{site}")
        xreduce("v_max_f32", vT0, vT1)
        g(f"v_max_f32 {vr(vT0)}, {sr(sThr)}, {vr(vT0)}")
        g(f"v_max_f32 {vr(vT1)}, 0, {vr(vT0)}")
        g(f"v_exp_f32 {vr(vT1)}, -{vr(vT1)}")
        for e in range(8):
            g(f"v_sub_f32 {vr(SA+e)}, {vr(SA+e)}, {vr(vT0)}")
        for r in range(4):
            g(f"v_fma_f32 {vr(CI+r)}, {vr(vT0)}, -0.5, {vr(CI+r)}")
        g(f"v_add_f32 {vr(vM)}, {vr(vM)}, {vr(vT0)}")
        g(f"v_mul_f32 {vr(vL)}, {vr(vL)}, {vr(vT1)}")
        for r in range(32):
            g(f"v_mul_f32 {vr(O+r)}, {vr(O+r)}, {vr(vT1)}")
        for r in range(4):
            g(f"v_mul_f32 {vr(CORR+r)}, {vr(CORR+r)}, {vr(vT1)}")
        g(f"s_mov_b32 {sr(sThr)}, 0")
        g(f"s_branch L_back{site}")
    main = g.text()

    comb = ""
    if not cfg.fused:
        g = Gen()
        g.label("kvq_combine_kernel")
        g("s_cmp_ge_u32 s2, 32")
        g("s_cbranch_scc1 L_cend")
        g("s_load_dwordx2 s[4:5], s[0:1], 56")
        g("s_load_dwordx2 s[6:7], s[0:1], 72")
        g(f"s_mul_i32 s16, s2, {NP*1024}")
        g(f"s_mul_i32 s17, s2, {NP*16}")
        g(f"s_add_u32 s17, s17, 0x{MLBASE:x}")
        g("v_lshrrev_b32 v10, 5, v0")
        g("v_lshlrev_b32 v11, 4, v0")
        g("v_lshlrev_b32 v12, 3, v10")
        g("s_waitcnt lgkmcnt(0)")
        g("s_mov_b32 s8, s6"); g("s_and_b32 s9, s7, 0xffff"); g(f"s_mov_b32 s10, 0x{WSBYTES:x}"); g("s_mov_b32 s11, 0x00020000")
        g("s_mov_b32 s12, s4"); g("s_and_b32 s13, s5, 0xffff"); g("s_mov_b32 s14, 16384"); g("s_mov_b32 s15, 0x00020000")
        ML2 = 32; OP2 = 32 + 2*NP
        for p in range(NP):
            g(f"buffer_load_dwordx2 {vr(ML2+2*p,2)}, v12, s[8:11], s17 offen offset:{16*p}")
        for p in range(NP):
            if p and p % 4 == 0:
                g("s_add_u32 s16, s16, 4096")
            g(f"buffer_load_dwordx4 {vr(OP2+4*p,4)}, v11, s[8:11], s16 offen offset:{1024*(p%4)}")
        g("s_waitcnt vmcnt(0)")
        combine(NP, ML2, OP2, 20, 21, 24)
        g("v_rcp_f32 v21, v21")
        g("s_lshl_b32 s18, s2, 9")
        for c in range(4):
            g(f"v_mul_f32 v{24+c}, v{24+c}, v21")
        g("v_cvt_pk_bf16_f32 v24, v24, v25")
        g("v_cvt_pk_bf16_f32 v25, v26, v27")
        g("v_lshlrev_b32 v11, 3, v0")
        g("buffer_store_dwordx2 v[24:25], v11, s[12:15], s18 offen")
        g.label("L_cend")
        g("s_endpgm")
        comb = g.text()
        ncv = OP2 + 4*NP

    lds = WPW*1024 + WPW*16
    out = HEADER
    if cfg.fused:
        out += f"; @launch grid=({NWG},1,1) block=({WPW*64},1,1) lds={lds}\n"
    else:
        out += f"; @launch kernel={NAME}_kernel grid=({NWG},1,1) block=({WPW*64},1,1) lds={lds}\n"
        out += f"; @launch kernel=kvq_combine_kernel grid=(32,1,1) block=(64,1,1) lds=0\n"
    out += '.amdgcn_target "amdgcn-amd-amdhsa--gfx950"\n.text\n'
    out += f".globl {NAME}_kernel\n.p2align 8\n.type {NAME}_kernel,@function\n" + main
    if comb:
        out += ".globl kvq_combine_kernel\n.p2align 8\n.type kvq_combine_kernel,@function\n" + comb
    out += '.section .rodata,"a"\n'
    def kd(name, nv, ns):
        acc = (nv + 3) // 4 * 4
        return (f".p2align 6\n.amdhsa_kernel {name}\n  .amdhsa_next_free_vgpr {nv}\n  .amdhsa_next_free_sgpr {ns}\n"
                f"  .amdhsa_accum_offset {acc}\n  .amdhsa_group_segment_fixed_size 0\n  .amdhsa_kernarg_size 80\n"
                "  .amdhsa_user_sgpr_count 2\n  .amdhsa_user_sgpr_kernarg_segment_ptr 1\n"
                "  .amdhsa_system_sgpr_workgroup_id_x 1\n.end_amdhsa_kernel\n")
    out += kd(f"{NAME}_kernel", NV, NS)
    if comb:
        out += kd("kvq_combine_kernel", ncv, 24)
    return out

if __name__ == "__main__":
    ap = argparse.ArgumentParser()
    ap.add_argument("-o", default="/dev/stdout")
    ap.add_argument("--wpw", type=int, default=4)
    ap.add_argument("--nwg", type=int, default=512)
    ap.add_argument("--order", default="wgblk")
    ap.add_argument("--S", type=int, default=64)
    ap.add_argument("--vord", default="q")
    ap.add_argument("--kord", default="f")
    ap.add_argument("--fused", type=int, default=1)
    ap.add_argument("--earlyv", type=int, default=0)
    ap.add_argument("--align", type=int, default=1)
    ap.add_argument("--stamp", type=int, default=0)
    ap.add_argument("--nocvt", type=int, default=0)
    ap.add_argument("--novs", type=int, default=0)
    ap.add_argument("--nolag", type=int, default=0)
    cfg = ap.parse_args()
    open(cfg.o, "w").write(build(cfg))
```

```python
import sys, argparse, math, struct
from gen import Gen, vr, sr, HEADER, NAME, f32bits
from gen2 import Q

def build(cfg):
    WPW = 4; NWG = 256
    WGPU = 4; TPW = 32; NP = 8
    Sg = 64; NT = 8
    MLBASE = 32 * NP * 1024
    WSBYTES = MLBASE + 32 * NP * 16
    nt = " nt"
    g = Gen(); q = Q(g)
    vT0, vKA, vKB, vV0, vV1, vS, vLds, vLane, vM, vL, vT1, vBias = range(12)
    QA = 12; QB = 28; X = 32; XB = 40; DB = 48
    RAW = [64, 128]
    O = 192; TKA = 192; TKB = 200
    CORR = 224; VSZ = [228, 236]; WP = 244; U = 248
    TV = 32; XD = [12, 20]; WP2 = 28
    NV = 256
    sK, sV, sVS, sVZ, sQ, sKS, sKZ, sWS, sDBG, sOUT = 24, 28, 32, 36, 40, 44, 48, 52, 72, 76
    sWave, sUnit, sSub, sOff0, sOff1, sOffS0, sN, sOffS1, sTmp, sTmp2, sBH, sBase = 56, 57, 58, 59, 60, 61, 62, 63, 64, 65, 80, 81
    sMask = 66; sHi = 68; sC = 69; sExec = 70; sJ2 = 82; sHd = 92
    NS = 96
    SLDS = 0
    CLDS = 32768
    pairs = [(0,4),(2,6),(1,5),(3,7)]
    po = [0,2,1,3]

    g.label(f"{NAME}_kernel")
    g(f"s_cmp_ge_u32 s2, {NWG}")
    g("s_cbranch_scc1 L_end")
    g("s_load_dwordx4 s[4:7], s[0:1], 0")
    g("s_load_dwordx4 s[8:11], s[0:1], 16")
    g("s_load_dwordx8 s[12:19], s[0:1], 32")
    g("s_load_dwordx4 s[20:23], s[0:1], 64")
    if cfg.stamp:
        g("s_memrealtime s[84:85]")
        g("s_getreg_b32 s88, hwreg(HW_REG_XCC_ID)")
    g(f"v_and_b32 {vr(vLane)}, 63, v0")
    g("v_lshrrev_b32 v31, 6, v0")
    g(f"v_and_b32 v32, 15, {vr(vLane)}")
    g(f"v_lshrrev_b32 v33, 4, {vr(vLane)}")
    g(f"v_readfirstlane_b32 {sr(sWave)}, v31")
    g("v_lshrrev_b32 v34, 2, v32")
    g("v_and_b32 v35, 3, v32")
    g("v_lshlrev_b32 v36, 15, v34")
    g("v_lshl_add_u32 v37, v35, 9, v36")
    g(f"v_lshl_add_u32 {vr(vKA)}, v33, 4, v37")
    g("v_lshl_add_u32 v37, v33, 2, v35")
    g(f"v_lshl_add_u32 {vr(vKB)}, v37, 4, v36")
    g("v_lshlrev_b32 v36, 15, v33")
    g("v_add_u32 v37, 4, v32")
    g(f"v_lshl_add_u32 {vr(vV0)}, v37, 4, v36")
    g("v_add_u32 v37, 20, v32")
    g("v_and_b32 v37, 31, v37")
    g(f"v_lshl_add_u32 {vr(vV1)}, v37, 4, v36")
    g(f"v_lshlrev_b32 {vr(vS)}, 7, v33")
    g("v_lshlrev_b32 v38, 3, v33")
    g("v_and_b32 v42, 1, v32")
    g("v_lshl_add_u32 v39, v42, 8, v38")
    g("v_lshl_add_u32 v40, v33, 2, v34")
    g("v_lshlrev_b32 v40, 3, v40")
    g("v_lshl_add_u32 v41, v42, 8, v40")
    g("v_lshl_add_u32 v43, v42, 2, v33")
    g("v_lshlrev_b32 v43, 5, v43")
    g(f"v_lshl_add_u32 {vr(vLds)}, v31, 13, v43")
    g("v_and_b32 v43, 2, v32")
    g(f"v_cmp_ne_u32 {sr(sMask,2)}, 0, v43")
    g(f"v_cmp_gt_u32 {sr(sJ2,2)}, 2, v32")
    g(f"v_cmp_ne_u32 {sr(sHd,2)}, 0, v42")
    g(f"s_lshr_b32 {sr(sUnit)}, s2, 2")
    g(f"s_and_b32 {sr(sSub)}, s2, 3")
    g(f"s_lshr_b32 {sr(sBH)}, {sr(sUnit)}, 1")
    g(f"s_lshl_b32 {sr(sBase)}, s2, 9")
    g(f"s_add_u32 {sr(sBase)}, {sr(sBase)}, {sr(sWave)}")
    g(f"s_lshl_b32 {sr(sOff0)}, {sr(sBase)}, 12")
    g(f"s_add_u32 {sr(sOff1)}, {sr(sOff0)}, 0x4000")
    g(f"s_mov_b32 {sr(sHi)}, 0xffff0000")
    g(f"s_mov_b32 {sr(sC)}, 0x{f32bits((128.0 ** -0.5) * math.log2(math.e)):08x}")
    g("s_waitcnt lgkmcnt(0)")
    def srd(d, p, nbytes):
        g(f"s_mov_b32 {sr(d)}, {sr(p)}")
        g(f"s_and_b32 {sr(d+1)}, {sr(p+1)}, 0xffff")
        g(f"s_mov_b32 {sr(d+2)}, 0x{nbytes:x}")
        g(f"s_mov_b32 {sr(d+3)}, 0x00020000")
    def loadA(k, tile):
        ab, pp = k % 2, po[k // 2]
        for x in range(2):
            g(f"buffer_load_dwordx4 {vr(RAW[0]+8*k+4*x,4)}, {vr(vKA)}, {sr(sK,4)}, {sr(sOff0)} offen offset:{ab*2048+(2*pp+x)*64}{nt}")
            q.issue(("K", tile, k, x))
    def loadB(k, tile):
        i, half = k // 2, k % 2
        for x in range(2):
            g(f"buffer_load_dwordx4 {vr(RAW[1]+8*k+4*x,4)}, {vr(vKB)}, {sr(sK,4)}, {sr(sOff1)} offen offset:{pairs[i][x]*512+half*256}{nt}")
            q.issue(("K", tile, k, x))
    def loadV(k, tile):
        b = tile & 1
        i, half = k // 2, k % 2
        for x in range(2):
            g(f"buffer_load_dwordx4 {vr(RAW[b]+8*k+4*x,4)}, {vr(vV1 if half else vV0)}, {sr(sV,4)}, {sr(sOff1 if b else sOff0)} offen offset:{pairs[i][x]*512}{nt}")
            q.issue(("V", tile, k, x))
    def loadS(tile):
        b = tile & 1
        g(f"buffer_load_dwordx4 {vr(VSZ[b],4)}, {vr(vS)}, {sr(sVS,4)}, {sr(sOffS1 if b else sOffS0)} offen")
        q.issue(("vs", tile))
    def loadZ(tile):
        b = tile & 1
        g(f"buffer_load_dwordx4 {vr(VSZ[b]+4,4)}, {vr(vS)}, {sr(sVZ,4)}, {sr(sOffS1 if b else sOffS0)} offen")
        q.issue(("vz", tile))
    RQ, RS, RZ, RQB, RSB = 192, 208, 224, 240, 244
    def small_loads():
        srd(sQ, 4, 16384); srd(sKS, 10, 16384); srd(sKZ, 12, 16384)
        g(f"s_lshl_b32 {sr(sTmp)}, {sr(sBH)}, 9")
        g(f"s_lshl_b32 {sr(sTmp2)}, {sr(sUnit)}, 8")
        for p in range(8):
            g(f"buffer_load_dwordx2 {vr(RQ+2*p,2)}, v39, {sr(sQ,4)}, {sr(sTmp)} offen offset:{32*p}"); q.issue(("sm", p, 0))
            g(f"buffer_load_dwordx2 {vr(RS+2*p,2)}, v38, {sr(sKS,4)}, {sr(sTmp2)} offen offset:{32*p}"); q.issue(("sm", p, 1))
            g(f"buffer_load_dwordx2 {vr(RZ+2*p,2)}, v38, {sr(sKZ,4)}, {sr(sTmp2)} offen offset:{32*p}"); q.issue(("sm", p, 2))
        for h in range(2):
            g(f"buffer_load_dwordx2 {vr(RQB+2*h,2)}, v41, {sr(sQ,4)}, {sr(sTmp)} offen offset:{128*h}"); q.issue(("smb", h, 0))
            g(f"buffer_load_dwordx2 {vr(RSB+2*h,2)}, v40, {sr(sKS,4)}, {sr(sTmp2)} offen offset:{128*h}"); q.issue(("smb", h, 1))
    srd(sK, 6, 0x20000000)
    for k in range(8):
        loadA(k, 0); loadB(k, 1)
        if k == cfg.smallpos:
            small_loads()
    srd(sV, 8, 0x20000000)
    srd(sVS, 14, 0x200000)
    srd(sVZ, 16, 0x200000)
    srd(sWS, 22, WSBYTES if not cfg.stamp else 0x2000000)
    srd(sDBG, 20, 256)
    srd(sOUT, 18, 16384)
    q.wait(("smb", 1, 1))
    g(f"v_mov_b32 {vr(vBias)}, 0")
    a0, a1, b0, b1, z0, z1, H, h0, h1 = range(48, 57)
    def qop(dst, rq, rs, rz):
        g(f"v_lshlrev_b32 v{a0}, 16, {vr(rq)}")
        g(f"v_and_b32 v{a1}, {sr(sHi)}, {vr(rq)}")
        g(f"v_lshlrev_b32 v{b0}, 16, {vr(rs)}")
        g(f"v_and_b32 v{b1}, {sr(sHi)}, {vr(rs)}")
        if rz is not None:
            g(f"v_lshlrev_b32 v{z0}, 16, {vr(rz)}")
            g(f"v_and_b32 v{z1}, {sr(sHi)}, {vr(rz)}")
        g(f"v_mul_f32 v{a0}, v{a0}, v{b0}")
        g(f"v_mul_f32 v{a1}, v{a1}, v{b1}")
        g(f"v_mul_f32 v{a0}, {sr(sC)}, v{a0}")
        g(f"v_mul_f32 v{a1}, {sr(sC)}, v{a1}")
        if rz is not None:
            g(f"v_fmac_f32 {vr(vBias)}, v{a0}, v{z0}")
            g(f"v_fmac_f32 {vr(vBias)}, v{a1}, v{z1}")
        g(f"v_cvt_pk_bf16_f32 v{H}, v{a0}, v{a1}")
        g(f"v_lshlrev_b32 v{h0}, 16, v{H}")
        g(f"v_and_b32 v{h1}, {sr(sHi)}, v{H}")
        g(f"v_sub_f32 v{a0}, v{a0}, v{h0}")
        g(f"v_sub_f32 v{a1}, v{a1}, v{h1}")
        g(f"v_cvt_pk_bf16_f32 v{b0}, v{a0}, v{a1}")
        g(f"v_cndmask_b32 {vr(dst)}, v{H}, v{b0}, {sr(sMask,2)}")
    for w in range(16):
        qop(QA+w, RQ+w, RS+w, RZ+w)
    for w in range(4):
        qop(QB+w, RQB+w, RSB+w, None)
    def xreduce(op, v, t):
        g(f"v_mov_b32 {vr(t)}, {vr(v)}")
        g("s_nop 1")
        g(f"v_permlane16_swap_b32 {vr(v)}, {vr(t)}")
        g("s_nop 1")
        g(f"{op} {vr(v)}, {vr(v)}, {vr(t)}")
        g(f"v_mov_b32 {vr(t)}, {vr(v)}")
        g("s_nop 1")
        g(f"v_permlane32_swap_b32 {vr(v)}, {vr(t)}")
        g("s_nop 1")
        g(f"{op} {vr(v)}, {vr(v)}, {vr(t)}")
    xreduce("v_add_f32", vBias, vT1)
    g(f"v_mov_b32 {vr(vM)}, 0xff7fffff")
    g(f"v_mov_b32 {vr(vL)}, 0")
    g(f"s_mov_b32 {sr(sN)}, 0")

    def wait(tag):
        if tag in q.q: q.wait(tag)
    def cvt8(R):
        for i in range(8):
            g(f"v_cvt_f32_i32 {vr(R+i)}, {vr(R+i)}")
    def stepA(k, tile, nxt):
        ab, pp = k % 2, po[k // 2]
        R = RAW[0] + 8*k
        T = TKA + 4 * (k & 1)
        S = X + 4*ab
        wait(("K", tile, k, 1))
        cvt8(R)
        for i in range(4):
            g(f"v_cvt_pk_bf16_f32 {vr(T+i)}, {vr(R+2*i)}, {vr(R+2*i+1)}")
        nxt(k)
        g(f"v_mfma_f32_16x16x32_bf16 {vr(S,4)}, {vr(T,4)}, {vr(QA+4*pp,4)}, {'0' if k < 2 else vr(S,4)}")
    def redB(i):
        D = [DB + 8*(i & 1), DB + 8*(i & 1) + 4]
        Y = [XB + pairs[i][0], XB + pairs[i][1]]
        dpp = " row_mask:0xf bank_mask:0xf"
        for x in range(2): g(f"v_add_f32_dpp {vr(Y[x])}, {vr(D[x]+1)}, {vr(D[x])} row_ror:12{dpp}")
        for x in range(2): g(f"v_add_f32_dpp {vr(Y[x])}, {vr(D[x]+2)}, {vr(Y[x])} row_ror:8{dpp}")
        for x in range(2): g(f"v_add_f32_dpp {vr(Y[x])}, {vr(D[x]+3)}, {vr(Y[x])} row_ror:4{dpp}")
        g("s_nop 0")
        for x in range(2): g(f"v_add_f32_dpp {vr(Y[x])}, {vr(Y[x])}, {vr(Y[x])} quad_perm:[2,3,0,1]{dpp}")
    def stepB(k, tile, nxt):
        i, half = k // 2, k % 2
        R = RAW[1] + 8*k
        wait(("K", tile, k, 1))
        cvt8(R)
        for x in range(2):
            for y in range(2):
                g(f"v_cvt_pk_bf16_f32 {vr(TKB+4*x+2*half+y)}, {vr(R+4*x+2*y)}, {vr(R+4*x+2*y+1)}")
        nxt(k)
        if half == 1:
            for x in range(2):
                g(f"v_mfma_f32_16x16x32_bf16 {vr(DB+8*(i&1)+4*x,4)}, {vr(TKB+4*x,4)}, {vr(QB,4)}, 0")
        elif i > 0:
            redB(i-1)
    def storeS(Xr, off):
        g(f"v_max3_f32 {vr(vM)}, {vr(vM)}, {vr(Xr)}, {vr(Xr+1)}")
        g(f"v_max3_f32 {vr(vM)}, {vr(vM)}, {vr(Xr+2)}, {vr(Xr+3)}")
        g(f"v_max3_f32 {vr(vM)}, {vr(vM)}, {vr(Xr+4)}, {vr(Xr+5)}")
        g(f"v_max3_f32 {vr(vM)}, {vr(vM)}, {vr(Xr+6)}, {vr(Xr+7)}")
        g(f"s_mov_b64 exec, {sr(sJ2,2)}")
        g(f"ds_write_b128 {vr(vLds)}, {vr(Xr,4)} offset:{off}")
        g(f"ds_write_b128 {vr(vLds)}, {vr(Xr+4,4)} offset:{off+16}")
        g("s_mov_b64 exec, -1")
    def finishA():
        for e in range(8):
            g(f"v_add_f32_dpp {vr(X+e)}, {vr(X+e)}, {vr(X+e)} quad_perm:[2,3,0,1] row_mask:0xf bank_mask:0xf")
        storeS(X, 0)
    def finishB():
        redB(3)
        storeS(XB, 256)
        g(f"v_add_u32 {vr(vLds)}, 512, {vr(vLds)}")
    entry = list(q.q)
    g(".p2align 6")
    g.label("L_kloop")
    g(f"s_add_u32 {sr(sOff0)}, {sr(sOff0)}, 0x20000")
    g(f"s_add_u32 {sr(sOff1)}, {sr(sOff1)}, 0x20000")
    q.q = [("K", t, k, x) for k in range(8) for t in range(2) for x in range(2)]
    steady = list(q.q)
    for k in range(8):
        stepA(k, 0, lambda k: loadA(k, 2))
        stepB(k, 1, lambda k: loadB(k, 3))
    finishA()
    finishB()
    assert [(t[0], t[1]-2) + t[2:] for t in q.q] == steady
    g(f"s_add_u32 {sr(sN)}, {sr(sN)}, 1")
    g(f"s_cmp_lt_u32 {sr(sN)}, 15")
    g("s_cbranch_scc1 L_kloop")
    q.q = list(steady)
    g(f"s_lshl_b32 {sr(sOff0)}, {sr(sBase)}, 12")
    g(f"s_add_u32 {sr(sOff1)}, {sr(sOff0)}, 0x4000")
    g(f"s_lshl_b32 {sr(sOffS0)}, {sr(sBase)}, 4")
    g(f"s_add_u32 {sr(sOffS1)}, {sr(sOffS0)}, 64")
    loadS(0); loadZ(0)
    for k in range(8):
        stepA(k, 0, lambda k: loadV(k, 0))
    loadS(1); loadZ(1)
    for k in range(8):
        stepB(k, 1, lambda k: loadV(k, 1))
        if k == 0: finishA()
    g("s_nop 7")
    finishB()
    if cfg.stamp:
        g("s_memrealtime s[94:95]")
    g(f"v_subrev_u32 {vr(vLds)}, 0x2000, {vr(vLds)}")
    g(f"ds_read_b128 {vr(XD[0],4)}, {vr(vLds)}")
    g(f"ds_read_b128 {vr(XD[0]+4,4)}, {vr(vLds)} offset:16")
    xreduce("v_max_f32", vM, vT1)
    g("s_nop 0")
    g(f"v_readlane_b32 {sr(sTmp)}, {vr(vM)}, 0")
    g(f"v_readlane_b32 {sr(sTmp2)}, {vr(vM)}, 1")
    for r in range(36):
        g(f"v_mov_b32 {vr(O+r)}, 0")
    g(f"v_mov_b32 {vr(vM)}, {sr(sTmp)}")
    g(f"v_mov_b32 {vr(vT1)}, {sr(sTmp2)}")
    g(f"v_cndmask_b32 {vr(vM)}, {vr(vM)}, {vr(vT1)}, {sr(sHd,2)}")
    g(f"s_mov_b32 {sr(sN)}, 0")
    def softmax(tile):
        b = tile & 1
        Xr = XD[b]; VS = VSZ[b]; VZ = VSZ[b] + 4
        wait(("vz", tile))
        for i in range(4):
            g(f"v_lshlrev_b32 {vr(U+2*i)}, 16, {vr(VS+i)}")
            g(f"v_and_b32 {vr(U+2*i+1)}, {sr(sHi)}, {vr(VS+i)}")
        loadS(tile+2)
        g("s_waitcnt lgkmcnt(0)")
        for e in range(8):
            g(f"v_sub_f32 {vr(Xr+e)}, {vr(Xr+e)}, {vr(vM)}")
        g(f"ds_read_b128 {vr(XD[1-b],4)}, {vr(vLds)} offset:{256*(b+1)}")
        g(f"ds_read_b128 {vr(XD[1-b]+4,4)}, {vr(vLds)} offset:{256*(b+1)+16}")
        for e in range(8):
            g(f"v_exp_f32 {vr(Xr+e)}, {vr(Xr+e)}")
        g("s_nop 0")
        for e in range(8):
            g(f"v_mul_f32 {vr(U+e)}, {vr(Xr+e)}, {vr(U+e)}")
        for i in range(4):
            g(f"v_cvt_pk_bf16_f32 {vr(WP+i)}, {vr(U+pairs[i][0])}, {vr(U+pairs[i][1])}")
        for i in range(4):
            g(f"v_cvt_pk_bf16_f32 {vr(WP2+i)}, {vr(U+2*i)}, {vr(U+2*i+1)}")
        g(f"v_add_f32 {vr(Xr)}, {vr(Xr)}, {vr(Xr+1)}")
        g(f"v_add_f32 {vr(Xr+2)}, {vr(Xr+2)}, {vr(Xr+3)}")
        g(f"v_mfma_f32_16x16x32_bf16 {vr(CORR,4)}, {vr(VZ,4)}, {vr(WP2,4)}, {vr(CORR,4)}")
        g(f"v_add_f32 {vr(Xr+4)}, {vr(Xr+4)}, {vr(Xr+5)}")
        g(f"v_add_f32 {vr(Xr+6)}, {vr(Xr+6)}, {vr(Xr+7)}")
        g(f"v_add_f32 {vr(Xr)}, {vr(Xr)}, {vr(Xr+2)}")
        g(f"v_add_f32 {vr(Xr+4)}, {vr(Xr+4)}, {vr(Xr+6)}")
        loadZ(tile+2)
        g(f"v_add_f32 {vr(Xr)}, {vr(Xr)}, {vr(Xr+4)}")
        g(f"v_add_f32 {vr(vL)}, {vr(vL)}, {vr(Xr)}")
    def stepV(k, tile):
        b = tile & 1
        i, half = k // 2, k % 2
        R = RAW[b] + 8*k
        wait(("V", tile, k, 1))
        cvt8(R)
        for c in range(4):
            g(f"v_cvt_pk_bf16_f32 {vr(TV+(half*4+c)*4+i)}, {vr(R+c)}, {vr(R+4+c)}")
        loadV(k, tile+2)
        if i == 3:
            for c in range(4):
                acc = O + (half*4+c)*4
                g(f"v_mfma_f32_16x16x32_bf16 {vr(acc,4)}, {vr(TV+(half*4+c)*4,4)}, {vr(WP,4)}, {vr(acc,4)}")
    vsteady = [("vs", 0), ("vz", 0)] + [("V", 0, k, x) for k in range(8) for x in range(2)] + \
              [("vs", 1), ("vz", 1)] + [("V", 1, k, x) for k in range(8) for x in range(2)]
    assert q.q == vsteady[-len(q.q):]
    q.q = list(vsteady)
    g(".p2align 6")
    g.label("L_vloop")
    g(f"s_add_u32 {sr(sOff0)}, {sr(sOff0)}, 0x20000")
    g(f"s_add_u32 {sr(sOffS0)}, {sr(sOffS0)}, 512")
    g(f"s_cmp_lt_u32 {sr(sN)}, 15")
    g(f"s_cselect_b32 {sr(sOff0)}, {sr(sOff0)}, 0x20000000")
    g(f"s_cselect_b32 {sr(sOffS0)}, {sr(sOffS0)}, 0x20000000")
    g(f"s_add_u32 {sr(sOff1)}, {sr(sOff0)}, 0x4000")
    g(f"s_add_u32 {sr(sOffS1)}, {sr(sOffS0)}, 64")
    for t in range(2):
        softmax(t)
        for k in range(8):
            stepV(k, t)
    g(f"v_add_u32 {vr(vLds)}, 512, {vr(vLds)}")
    assert [(t[0], t[1]-2) + t[2:] for t in q.q] == vsteady
    g(f"s_add_u32 {sr(sN)}, {sr(sN)}, 1")
    g(f"s_cmp_lt_u32 {sr(sN)}, 16")
    g("s_cbranch_scc1 L_vloop")
    g("s_waitcnt lgkmcnt(0)")
    xreduce("v_add_f32", vL, vT1)
    g(f"v_sub_f32 {vr(vM)}, {vr(vM)}, {vr(vBias)}")
    g(f"v_and_b32 v12, 15, {vr(vLane)}")
    g(f"v_lshrrev_b32 v13, 4, {vr(vLane)}")
    g(f"s_lshl_b32 {sr(sTmp)}, {sr(sWave)}, 10")
    g(f"s_add_u32 {sr(sTmp)}, {sr(sTmp)}, {CLDS}")
    g("v_lshlrev_b32 v14, 9, v12")
    g(f"v_add_u32 v14, {sr(sTmp)}, v14")
    g("v_lshlrev_b32 v16, 6, v13")
    g("v_add_u32 v17, 320, v16")
    g("v_and_b32 v17, 511, v17")
    g("v_add_u32 v17, v14, v17")
    g("v_add3_u32 v16, v14, v16, 64")
    g(f"s_lshl_b32 {sr(sTmp)}, {sr(sWave)}, 4")
    g(f"s_add_u32 {sr(sTmp)}, {sr(sTmp)}, {CLDS + WPW*1024}")
    g("v_lshlrev_b32 v15, 3, v12")
    g(f"v_add_u32 v15, {sr(sTmp)}, v15")
    g(f"s_mov_b64 exec, {sr(sJ2,2)}")
    for half in range(2):
        for r in range(4):
            T = TV + 4*(half*4+r)
            for c in range(4):
                g(f"v_sub_f32 {vr(T+c)}, {vr(O+(half*4+c)*4+r)}, {vr(CORR)}")
            g(f"ds_write_b128 v{16+half}, {vr(T,4)} offset:{r*16}")
    g(f"ds_write_b64 v15, {vr(vM,2)}")
    g("s_mov_b64 exec, -1")
    def stamp(slot):
        g("s_memrealtime s[86:87]")
        g(f"s_mul_i32 s89, s2, {WPW}")
        g(f"s_add_u32 s89, s89, {sr(sWave)}")
        g("s_lshl_b32 s89, s89, 4")
        g(f"s_add_u32 s89, s89, 0x{0x1000000 + slot*0x100000:x}")
        g("s_waitcnt lgkmcnt(0)")
        g("v_mov_b32 v28, s84"); g("v_mov_b32 v29, s86"); g("v_mov_b32 v30, s88"); g("v_mov_b32 v31, s94")
        g("v_mov_b32 v27, 0")
        g("s_mov_b64 s[90:91], exec")
        g("s_mov_b64 exec, 1")
        g(f"buffer_store_dwordx4 v[28:31], v27, {sr(sWS,4)}, s89 offen")
        g("s_mov_b64 exec, s[90:91]")
    if cfg.stamp: stamp(0)
    g("s_waitcnt vmcnt(0) lgkmcnt(0)")
    g("s_barrier")
    g(f"s_cmp_lg_u32 {sr(sWave)}, 0")
    g("s_cbranch_scc1 L_end")
    g(f"v_lshrrev_b32 v10, 5, {vr(vLane)}")
    g(f"v_lshlrev_b32 v11, 4, {vr(vLane)}")
    g("v_lshlrev_b32 v12, 3, v10")
    ML = 64; OP = 96
    def combine(n, ML, OP, M, L, R):
        g(f"v_mov_b32 {vr(M)}, {vr(ML)}")
        for w in range(1, n):
            g(f"v_max_f32 {vr(M)}, {vr(M)}, {vr(ML+2*w)}")
        for w in range(n):
            g(f"v_sub_f32 {vr(ML+2*w)}, {vr(ML+2*w)}, {vr(M)}")
        for w in range(n):
            g(f"v_exp_f32 {vr(ML+2*w)}, {vr(ML+2*w)}")
        g("s_nop 0")
        g(f"v_mul_f32 {vr(L)}, {vr(ML)}, {vr(ML+1)}")
        for c in range(4):
            g(f"v_mul_f32 {vr(R+c)}, {vr(ML)}, {vr(OP+c)}")
        for w in range(1, n):
            g(f"v_fmac_f32 {vr(L)}, {vr(ML+2*w)}, {vr(ML+2*w+1)}")
            for c in range(4):
                g(f"v_fmac_f32 {vr(R+c)}, {vr(ML+2*w)}, {vr(OP+4*w+c)}")
    for w in range(WPW):
        g(f"ds_read_b64 {vr(ML+2*w,2)}, v12 offset:{CLDS+WPW*1024+w*16}")
    for w in range(WPW):
        g(f"ds_read_b128 {vr(OP+4*w,4)}, v11 offset:{CLDS+w*1024}")
    g(f"s_and_b32 {sr(sTmp)}, {sr(sUnit)}, 1")
    g(f"s_mul_i32 {sr(sTmp)}, {sr(sTmp)}, {WGPU}")
    g(f"s_add_u32 {sr(sTmp)}, {sr(sTmp)}, {sr(sSub)}")
    g(f"s_mul_i32 {sr(sTmp2)}, {sr(sBH)}, {NP}")
    g(f"s_add_u32 {sr(sTmp)}, {sr(sTmp)}, {sr(sTmp2)}")
    g(f"s_lshl_b32 {sr(sOff0)}, {sr(sTmp)}, 10")
    g(f"s_lshl_b32 {sr(sOff1)}, {sr(sTmp)}, 4")
    g(f"s_add_u32 {sr(sOff1)}, {sr(sOff1)}, 0x{MLBASE:x}")
    g("s_waitcnt lgkmcnt(0)")
    combine(WPW, ML, OP, 20, 21, 24)
    g(f"buffer_store_dwordx4 v[24:27], v11, {sr(sWS,4)}, {sr(sOff0)} offen sc1")
    g(f"v_and_b32 v16, 31, {vr(vLane)}")
    g("v_cmp_eq_u32 vcc, 0, v16")
    g(f"s_and_saveexec_b64 {sr(sExec,2)}, vcc")
    g(f"buffer_store_dwordx2 v[20:21], v12, {sr(sWS,4)}, {sr(sOff1)} offen sc1")
    g("s_mov_b64 exec, 1")
    g("v_mov_b32 v16, 1")
    g("v_mov_b32 v17, 0")
    g(f"s_lshl_b32 {sr(sTmp)}, {sr(sBH)}, 2")
    g("s_waitcnt vmcnt(0)")
    g(f"buffer_atomic_add v16, v17, {sr(sDBG,4)}, {sr(sTmp)} offen sc0")
    g("s_waitcnt vmcnt(0)")
    g(f"v_readfirstlane_b32 {sr(sTmp)}, v16")
    g("s_mov_b64 exec, -1")
    g(f"s_cmp_lg_u32 {sr(sTmp)}, {NP-1}")
    g("s_cbranch_scc1 L_end")
    g(f"s_lshl_b32 {sr(sOff0)}, {sr(sTmp2)}, 10")
    g(f"s_lshl_b32 {sr(sOff1)}, {sr(sTmp2)}, 4")
    g(f"s_add_u32 {sr(sOff1)}, {sr(sOff1)}, 0x{MLBASE:x}")
    ML2 = 64; OP2 = 64 + 2*NP
    for p in range(NP):
        g(f"buffer_load_dwordx2 {vr(ML2+2*p,2)}, v12, {sr(sWS,4)}, {sr(sOff1)} offen offset:{16*p} sc1")
    for p in range(NP):
        if p and p % 4 == 0:
            g(f"s_add_u32 {sr(sOff0)}, {sr(sOff0)}, 4096")
        g(f"buffer_load_dwordx4 {vr(OP2+4*p,4)}, v11, {sr(sWS,4)}, {sr(sOff0)} offen offset:{1024*(p%4)} sc1")
    g("s_waitcnt vmcnt(0)")
    combine(NP, ML2, OP2, 20, 21, 24)
    g("v_rcp_f32 v21, v21")
    g(f"s_lshl_b32 {sr(sTmp)}, {sr(sBH)}, 9")
    for c in range(4):
        g(f"v_mul_f32 v{24+c}, v{24+c}, v21")
    g("v_cvt_pk_bf16_f32 v24, v24, v25")
    g("v_cvt_pk_bf16_f32 v25, v26, v27")
    g(f"v_lshlrev_b32 v11, 3, {vr(vLane)}")
    g(f"buffer_store_dwordx2 v[24:25], v11, {sr(sOUT,4)}, {sr(sTmp)} offen")
    if cfg.stamp:
        g("s_waitcnt vmcnt(0)")
        stamp(1)
    g.label("L_end")
    g("s_endpgm")
    main = g.text()

    lds = CLDS + WPW*1024 + WPW*16
    out = HEADER
    out += f"; @launch grid=({NWG},1,1) block=({WPW*64},1,1) lds={lds}\n"
    out += '.amdgcn_target "amdgcn-amd-amdhsa--gfx950"\n.text\n'
    out += f".globl {NAME}_kernel\n.p2align 8\n.type {NAME}_kernel,@function\n" + main
    out += '.section .rodata,"a"\n'
    out += (f".p2align 6\n.amdhsa_kernel {NAME}_kernel\n  .amdhsa_next_free_vgpr {NV}\n  .amdhsa_next_free_sgpr {NS}\n"
            f"  .amdhsa_accum_offset {NV}\n  .amdhsa_group_segment_fixed_size 0\n  .amdhsa_kernarg_size 80\n"
            "  .amdhsa_user_sgpr_count 2\n  .amdhsa_user_sgpr_kernarg_segment_ptr 1\n"
            "  .amdhsa_system_sgpr_workgroup_id_x 1\n.end_amdhsa_kernel\n")
    return out

if __name__ == "__main__":
    ap = argparse.ArgumentParser()
    ap.add_argument("-o", default="/dev/stdout")
    ap.add_argument("--stamp", type=int, default=0)
    ap.add_argument("--smallpos", type=int, default=0)
    cfg = ap.parse_args()
    open(cfg.o, "w").write(build(cfg))
```

```python
import sys, argparse, math, struct
from gen import Gen, vr, sr, HEADER, NAME, f32bits
from gen2 import Q

def build(cfg):
    WPW = 4; NWG = 256
    WGPU = 4; TPW = 32; NP = 8
    Sg = 64; NT = 8
    MLBASE = 32 * NP * 1024
    cks = [int(x) for x in cfg.cks.split(",")] if cfg.cks else []
    thr = [int(x) for x in cfg.thr.split(",")]
    ckmask = 0
    for c in cks: ckmask |= 1 << c
    GS = cfg.gs; LGS = int(math.log2(GS))
    CBASE = 0x50000; CSTR = 4352
    WSBYTES = CBASE + (256 // GS) * 16 * CSTR + CSTR
    assert len(cks) <= 15
    nt = " nt"
    g = Gen(); q = Q(g)
    vT0, vKA, vKB, vV0, vV1, vS, vLds, vLane, vM, vL, vT1, vBias = range(12)
    QA = 12; QB = 28; X = 32; XB = 40; DB = 48
    RAW = [64, 128]
    O = 192; TKA = 192; TKB = 200
    CORR = 224; VSZ = [228, 236]; WP = 244; U = 248
    TV = 32; XD = [12, 20]; WP2 = 28
    NBA = 208; NBB = 212
    vA0 = vKA; vD96 = vKB; vB = vT0; vZero = vBias
    NV = 256
    sK, sV, sVS, sVZ, sQ, sKS, sKZ, sWS, sDBG, sOUT = 24, 28, 32, 36, 40, 44, 48, 52, 72, 76
    sWave, sUnit, sSub, sOff0, sOff1, sOffS0, sN, sOffS1, sTmp, sTmp2, sBH, sBase = 56, 57, 58, 59, 60, 61, 62, 63, 64, 65, 80, 81
    sMask = 66; sHi = 68; sC = 69; sExec = 70; sJ2 = 82; sHd = 92
    sLM, sLay, sB, sPend, sRank, sCk, sSlot, sRot, sX, sRM = 40, 42, 43, 44, 45, 46, 47, 48, 49, 50
    sCOff = 96; sCn = 97
    NS = 102
    SLDS = 0
    LV = 32768
    CLDS = 49152
    BLDS = CLDS + WPW*1024 + WPW*16
    pairs = [(0,4),(2,6),(1,5),(3,7)]
    po = [0,2,1,3]

    g.label(f"{NAME}_kernel")
    g(f"s_cmp_ge_u32 s2, {NWG}")
    g("s_cbranch_scc1 L_end")
    g("s_load_dwordx4 s[4:7], s[0:1], 0")
    g("s_load_dwordx4 s[8:11], s[0:1], 16")
    g("s_load_dwordx8 s[12:19], s[0:1], 32")
    g("s_load_dwordx4 s[20:23], s[0:1], 64")
    if cfg.stamp:
        g("s_memrealtime s[84:85]")
        g("s_getreg_b32 s88, hwreg(HW_REG_XCC_ID)")
    g(f"v_and_b32 {vr(vLane)}, 63, v0")
    g("v_lshrrev_b32 v31, 6, v0")
    g(f"v_and_b32 v32, 15, {vr(vLane)}")
    g(f"v_lshrrev_b32 v33, 4, {vr(vLane)}")
    g(f"v_readfirstlane_b32 {sr(sWave)}, v31")
    g("v_lshrrev_b32 v34, 2, v32")
    g("v_and_b32 v35, 3, v32")
    g("v_lshlrev_b32 v36, 15, v34")
    g("v_lshl_add_u32 v37, v35, 9, v36")
    g(f"v_lshl_add_u32 {vr(vKA)}, v33, 4, v37")
    g("v_lshl_add_u32 v37, v33, 2, v35")
    g(f"v_lshl_add_u32 {vr(vKB)}, v37, 4, v36")
    g("v_lshlrev_b32 v36, 15, v33")
    g("v_add_u32 v37, 4, v32")
    g(f"v_lshl_add_u32 {vr(vV0)}, v37, 4, v36")
    g("v_add_u32 v37, 20, v32")
    g("v_and_b32 v37, 31, v37")
    g(f"v_lshl_add_u32 {vr(vV1)}, v37, 4, v36")
    g(f"v_lshlrev_b32 {vr(vS)}, 7, v33")
    g(f"v_lshl_add_u32 {vr(vS)}, v31, 4, {vr(vS)}")
    g(f"v_add_u32 {vr(vS)}, {LV}, {vr(vS)}")
    g(f"v_lshlrev_b32 v44, 4, {vr(vLane)}")
    g("v_lshlrev_b32 v38, 3, v33")
    g("v_and_b32 v42, 1, v32")
    g("v_lshl_add_u32 v39, v42, 8, v38")
    g("v_lshl_add_u32 v40, v33, 2, v34")
    g("v_lshlrev_b32 v40, 3, v40")
    g("v_lshl_add_u32 v41, v42, 8, v40")
    g("v_lshl_add_u32 v43, v42, 2, v33")
    g("v_lshlrev_b32 v43, 5, v43")
    g(f"v_lshl_add_u32 {vr(vLds)}, v31, 13, v43")
    g("v_and_b32 v43, 2, v32")
    g(f"v_cmp_ne_u32 {sr(sMask,2)}, 0, v43")
    g(f"v_cmp_gt_u32 {sr(sJ2,2)}, 2, v32")
    g(f"v_cmp_ne_u32 {sr(sHd,2)}, 0, v42")
    g(f"s_lshr_b32 {sr(sUnit)}, s2, 2")
    g(f"s_and_b32 {sr(sSub)}, s2, 3")
    g(f"s_lshr_b32 {sr(sBH)}, {sr(sUnit)}, 1")
    g(f"s_lshl_b32 {sr(sBase)}, s2, 9")
    g(f"s_add_u32 {sr(sBase)}, {sr(sBase)}, {sr(sWave)}")
    g(f"s_lshl_b32 {sr(sOff0)}, {sr(sBase)}, 12")
    g(f"s_add_u32 {sr(sOff1)}, {sr(sOff0)}, 0x4000")
    g(f"s_lshr_b32 {sr(sCOff)}, s2, {LGS}")
    g(f"s_mul_i32 {sr(sCOff)}, {sr(sCOff)}, {16*CSTR}")
    g(f"s_add_u32 {sr(sCOff)}, {sr(sCOff)}, 0x{CBASE:x}")
    g(f"s_mov_b32 {sr(sHi)}, 0xffff0000")
    g(f"s_mov_b32 {sr(sC)}, 0x{f32bits((128.0 ** -0.5) * math.log2(math.e)):08x}")
    g("s_waitcnt lgkmcnt(0)")
    def srd(d, p, nbytes):
        g(f"s_mov_b32 {sr(d)}, {sr(p)}")
        g(f"s_and_b32 {sr(d+1)}, {sr(p+1)}, 0xffff")
        g(f"s_mov_b32 {sr(d+2)}, 0x{nbytes:x}")
        g(f"s_mov_b32 {sr(d+3)}, 0x00020000")
    def loadA(k, tile):
        ab, pp = k % 2, po[k // 2]
        for x in range(2):
            g(f"buffer_load_dwordx4 {vr(RAW[0]+8*k+4*x,4)}, {vr(vKA)}, {sr(sK,4)}, {sr(sOff0)} offen offset:{ab*2048+(2*pp+x)*64}{nt}")
            q.issue(("K", tile, k, x))
    def loadB(k, tile):
        i, half = k // 2, k % 2
        for x in range(2):
            g(f"buffer_load_dwordx4 {vr(RAW[1]+8*k+4*x,4)}, {vr(vKB)}, {sr(sK,4)}, {sr(sOff1)} offen offset:{pairs[i][x]*512+half*256}{nt}")
            q.issue(("K", tile, k, x))
    def loadV(k, tile):
        b = tile & 1
        i, half = k // 2, k % 2
        for x in range(2):
            g(f"buffer_load_dwordx4 {vr(RAW[b]+8*k+4*x,4)}, {vr(vV1 if half else vV0)}, {sr(sV,4)}, {sr(sOff1 if b else sOff0)} offen offset:{pairs[i][x]*512}{nt}")
            q.issue(("V", tile, k, x))
    def readSZ(b, off):
        g(f"ds_read_b128 {vr(VSZ[b],4)}, {vr(vS)} offset:{off}")
        g(f"ds_read_b128 {vr(VSZ[b]+4,4)}, {vr(vS)} offset:{off+8192}")
    def dma_loads():
        srd(sVS, 14, 0x200000)
        srd(sVZ, 16, 0x200000)
        g(f"s_lshl_b32 {sr(sOffS0)}, s2, 13")
        g(f"s_lshl_b32 {sr(sOffS1)}, {sr(sWave)}, 11")
        g(f"s_add_u32 {sr(sOffS0)}, {sr(sOffS0)}, {sr(sOffS1)}")
        g(f"s_add_u32 m0, {sr(sOffS1)}, {LV}")
        g("s_nop 0")
        for x in range(2):
            g(f"buffer_load_dwordx4 v44, {sr(sVS,4)}, {sr(sOffS0)} offen offset:{1024*x} lds"); q.issue(("dma", 0, x))
        g(f"s_add_u32 m0, {sr(sOffS1)}, {LV+8192}")
        g("s_nop 0")
        for x in range(2):
            g(f"buffer_load_dwordx4 v44, {sr(sVZ,4)}, {sr(sOffS0)} offen offset:{1024*x} lds"); q.issue(("dma", 1, x))
    RQ, RS, RZ, RQB, RSB = 192, 208, 224, 240, 244
    def small_loads():
        srd(sQ, 4, 16384); srd(sKS, 10, 16384); srd(sKZ, 12, 16384)
        g(f"s_lshl_b32 {sr(sTmp)}, {sr(sBH)}, 9")
        g(f"s_lshl_b32 {sr(sTmp2)}, {sr(sUnit)}, 8")
        for p in range(8):
            g(f"buffer_load_dwordx2 {vr(RQ+2*p,2)}, v39, {sr(sQ,4)}, {sr(sTmp)} offen offset:{32*p}"); q.issue(("sm", p, 0))
            g(f"buffer_load_dwordx2 {vr(RS+2*p,2)}, v38, {sr(sKS,4)}, {sr(sTmp2)} offen offset:{32*p}"); q.issue(("sm", p, 1))
            g(f"buffer_load_dwordx2 {vr(RZ+2*p,2)}, v38, {sr(sKZ,4)}, {sr(sTmp2)} offen offset:{32*p}"); q.issue(("sm", p, 2))
        for h in range(2):
            g(f"buffer_load_dwordx2 {vr(RQB+2*h,2)}, v41, {sr(sQ,4)}, {sr(sTmp)} offen offset:{128*h}"); q.issue(("smb", h, 0))
            g(f"buffer_load_dwordx2 {vr(RSB+2*h,2)}, v40, {sr(sKS,4)}, {sr(sTmp2)} offen offset:{128*h}"); q.issue(("smb", h, 1))
    srd(sK, 6, 0x20000000)
    for k in range(8):
        loadA(k, 0); loadB(k, 1)
        if k == cfg.smallpos:
            small_loads()
        if k == cfg.dmapos:
            dma_loads()
    srd(sV, 8, 0x20000000)
    srd(sWS, 22, WSBYTES if not cfg.stamp else 0x2000000)
    srd(sDBG, 20, 256)
    srd(sOUT, 18, 16384)
    g(f"s_and_b32 {sr(sTmp)}, s2, {GS-1}")
    g(f"s_or_b32 {sr(sTmp)}, {sr(sTmp)}, {sr(sWave)}")
    g(f"s_cmp_lg_u32 {sr(sTmp)}, 0")
    g("s_cbranch_scc1 L_noinit")
    g(f"v_mul_u32_u24 v45, {CSTR}, {vr(vLane)}")
    g("v_mov_b32 v46, 0")
    g(f"s_mov_b64 exec, 0x{(1 << max(1, len(cks))) - 1:x}")
    g(f"v_add_u32 v45, {CSTR}, v45")
    g(f"buffer_store_dword v46, v45, {sr(sWS,4)}, {sr(sCOff)} offen sc1")
    g("s_mov_b64 exec, -1")
    g.label("L_noinit")
    q.wait(("smb", 1, 1))
    g(f"v_mov_b32 {vr(vBias)}, 0")
    a0, a1, b0, b1, z0, z1, H, h0, h1 = range(48, 57)
    def qop(dst, rq, rs, rz):
        g(f"v_lshlrev_b32 v{a0}, 16, {vr(rq)}")
        g(f"v_and_b32 v{a1}, {sr(sHi)}, {vr(rq)}")
        g(f"v_lshlrev_b32 v{b0}, 16, {vr(rs)}")
        g(f"v_and_b32 v{b1}, {sr(sHi)}, {vr(rs)}")
        if rz is not None:
            g(f"v_lshlrev_b32 v{z0}, 16, {vr(rz)}")
            g(f"v_and_b32 v{z1}, {sr(sHi)}, {vr(rz)}")
        g(f"v_mul_f32 v{a0}, v{a0}, v{b0}")
        g(f"v_mul_f32 v{a1}, v{a1}, v{b1}")
        g(f"v_mul_f32 v{a0}, {sr(sC)}, v{a0}")
        g(f"v_mul_f32 v{a1}, {sr(sC)}, v{a1}")
        if rz is not None:
            g(f"v_fmac_f32 {vr(vBias)}, v{a0}, v{z0}")
            g(f"v_fmac_f32 {vr(vBias)}, v{a1}, v{z1}")
        g(f"v_cvt_pk_bf16_f32 v{H}, v{a0}, v{a1}")
        g(f"v_lshlrev_b32 v{h0}, 16, v{H}")
        g(f"v_and_b32 v{h1}, {sr(sHi)}, v{H}")
        g(f"v_sub_f32 v{a0}, v{a0}, v{h0}")
        g(f"v_sub_f32 v{a1}, v{a1}, v{h1}")
        g(f"v_cvt_pk_bf16_f32 v{b0}, v{a0}, v{a1}")
        g(f"v_cndmask_b32 {vr(dst)}, v{H}, v{b0}, {sr(sMask,2)}")
    for w in range(16):
        qop(QA+w, RQ+w, RS+w, RZ+w)
    for w in range(4):
        qop(QB+w, RQB+w, RSB+w, None)
    def xreduce(op, v, t):
        g(f"v_mov_b32 {vr(t)}, {vr(v)}")
        g("s_nop 1")
        g(f"v_permlane16_swap_b32 {vr(v)}, {vr(t)}")
        g("s_nop 1")
        g(f"{op} {vr(v)}, {vr(v)}, {vr(t)}")
        g(f"v_mov_b32 {vr(t)}, {vr(v)}")
        g("s_nop 1")
        g(f"v_permlane32_swap_b32 {vr(v)}, {vr(t)}")
        g("s_nop 1")
        g(f"{op} {vr(v)}, {vr(v)}, {vr(t)}")
    xreduce("v_add_f32", vBias, vT1)
    for r in range(4):
        g(f"v_mul_f32 {vr(NBA+r)}, -0.5, {vr(vBias)}")
    g(f"v_mul_f32 {vr(NBB)}, 0.5, {vr(NBA)}")
    g(f"v_mul_f32 {vr(NBB)}, 0.5, {vr(NBB)}")
    for r in range(1, 4):
        g(f"v_mov_b32 {vr(NBB+r)}, {vr(NBB)}")
    g(f"v_mov_b32 {vr(vZero)}, 0")
    g(f"v_and_b32 {vr(vT1)}, 15, {vr(vLane)}")
    g(f"v_lshlrev_b32 {vr(vT1)}, 2, {vr(vT1)}")
    g(f"ds_write_b32 {vr(vZero)}, {vr(vZero)} offset:{BLDS}")
    for x in (sLM, sLM+1, sLay, sPend, sSlot):
        g(f"s_mov_b32 {sr(x)}, 0")
    g(f"s_mov_b32 {sr(sCk)}, 0x{ckmask:x}")
    g(f"ds_write_b32 {vr(vT1)}, {vr(vZero)} offset:{BLDS+4}")
    g(f"s_mov_b32 {sr(sCn)}, {BLDS+4}")
    g(f"v_mov_b32 {vr(vM)}, 0xff7fffff")
    g(f"v_mov_b32 {vr(vL)}, 0")
    g(f"s_mov_b32 {sr(sN)}, 0")

    def tlog(m):
        if not cfg.tlog: return
        g("s_memrealtime s[100:101]")
        g("s_waitcnt lgkmcnt(0)")
        g("s_and_b32 s100, s100, 0xfffffffe")
        g(f"s_or_b32 s100, s100, {sr(m)}")
        g(f"v_mov_b32 {vr(TV)}, s100")
        g(f"v_mov_b32 {vr(TV+1)}, s99")
        g(f"ds_write_b32 {vr(TV+1)}, {vr(TV)}")
        g("s_add_u32 s99, s99, 4")
    def wait(tag):
        if tag in q.q: q.wait(tag)
    def cvt8(R):
        for i in range(8):
            g(f"v_cvt_f32_i32 {vr(R+i)}, {vr(R+i)}")
    def stepA(k, tile, nxt):
        ab, pp = k % 2, po[k // 2]
        R = RAW[0] + 8*k
        T = TKA + 4 * (k & 1)
        S = X + 4*ab
        wait(("K", tile, k, 1))
        cvt8(R)
        for i in range(4):
            g(f"v_cvt_pk_bf16_f32 {vr(T+i)}, {vr(R+2*i)}, {vr(R+2*i+1)}")
        nxt(k)
        g(f"v_mfma_f32_16x16x32_bf16 {vr(S,4)}, {vr(T,4)}, {vr(QA+4*pp,4)}, {vr(NBA,4) if k < 2 else vr(S,4)}")
    def redB(i):
        D = [DB + 8*(i & 1), DB + 8*(i & 1) + 4]
        Y = [XB + pairs[i][0], XB + pairs[i][1]]
        dpp = " row_mask:0xf bank_mask:0xf"
        for x in range(2): g(f"v_add_f32_dpp {vr(Y[x])}, {vr(D[x]+1)}, {vr(D[x])} row_ror:12{dpp}")
        for x in range(2): g(f"v_add_f32_dpp {vr(Y[x])}, {vr(D[x]+2)}, {vr(Y[x])} row_ror:8{dpp}")
        for x in range(2): g(f"v_add_f32_dpp {vr(Y[x])}, {vr(D[x]+3)}, {vr(Y[x])} row_ror:4{dpp}")
        g("s_nop 0")
        for x in range(2): g(f"v_add_f32_dpp {vr(Y[x])}, {vr(Y[x])}, {vr(Y[x])} quad_perm:[2,3,0,1]{dpp}")
    def stepB(k, tile, nxt):
        i, half = k // 2, k % 2
        R = RAW[1] + 8*k
        wait(("K", tile, k, 1))
        cvt8(R)
        for x in range(2):
            for y in range(2):
                g(f"v_cvt_pk_bf16_f32 {vr(TKB+4*x+2*half+y)}, {vr(R+4*x+2*y)}, {vr(R+4*x+2*y+1)}")
        nxt(k)
        if half == 1:
            for x in range(2):
                g(f"v_mfma_f32_16x16x32_bf16 {vr(DB+8*(i&1)+4*x,4)}, {vr(TKB+4*x,4)}, {vr(QB,4)}, {vr(NBB,4)}")
        elif i > 0:
            redB(i-1)
    def storeS(Xr, off):
        g(f"v_max3_f32 {vr(vM)}, {vr(vM)}, {vr(Xr)}, {vr(Xr+1)}")
        g(f"v_max3_f32 {vr(vM)}, {vr(vM)}, {vr(Xr+2)}, {vr(Xr+3)}")
        g(f"v_max3_f32 {vr(vM)}, {vr(vM)}, {vr(Xr+4)}, {vr(Xr+5)}")
        g(f"v_max3_f32 {vr(vM)}, {vr(vM)}, {vr(Xr+6)}, {vr(Xr+7)}")
        g(f"s_mov_b64 exec, {sr(sJ2,2)}")
        g(f"ds_write_b128 {vr(vLds)}, {vr(Xr,4)} offset:{off}")
        g(f"ds_write_b128 {vr(vLds)}, {vr(Xr+4,4)} offset:{off+16}")
        g("s_mov_b64 exec, -1")
    def finishA():
        for e in range(8):
            g(f"v_add_f32_dpp {vr(X+e)}, {vr(X+e)}, {vr(X+e)} quad_perm:[2,3,0,1] row_mask:0xf bank_mask:0xf")
        storeS(X, 0)
    def finishB():
        redB(3)
        storeS(XB, 256)
        g(f"v_add_u32 {vr(vLds)}, 512, {vr(vLds)}")
    if ("dma", 1, 1) in q.q:
        q.wait(("dma", 1, 1))
    g(".p2align 6")
    g.label("L_kloop")
    g(f"s_add_u32 {sr(sOff0)}, {sr(sOff0)}, 0x20000")
    g(f"s_add_u32 {sr(sOff1)}, {sr(sOff1)}, 0x20000")
    q.q = [("K", t, k, x) for k in range(8) for t in range(2) for x in range(2)]
    steady = list(q.q)
    for k in range(8):
        stepA(k, 0, lambda k: loadA(k, 2))
        stepB(k, 1, lambda k: loadB(k, 3))
    finishA()
    finishB()
    assert [(t[0], t[1]-2) + t[2:] for t in q.q] == steady
    g(f"s_add_u32 {sr(sN)}, {sr(sN)}, 1")
    g(f"s_cmp_lt_u32 {sr(sN)}, 15")
    g("s_cbranch_scc1 L_kloop")
    q.q = list(steady)
    g(f"s_lshl_b32 {sr(sOff0)}, {sr(sBase)}, 12")
    g(f"s_add_u32 {sr(sOff1)}, {sr(sOff0)}, 0x4000")
    g("s_waitcnt lgkmcnt(0)")
    g("s_barrier")
    for k in range(8):
        stepA(k, 0, lambda k: loadV(k, 0))
    for k in range(8):
        stepB(k, 1, lambda k: loadV(k, 1))
        if k == 0: finishA()
    g("s_nop 7")
    finishB()
    if cfg.stamp:
        g("s_memrealtime s[94:95]")
    g(f"v_subrev_u32 {vr(vLds)}, 0x2000, {vr(vLds)}")
    g(f"ds_read_b128 {vr(XD[0],4)}, {vr(vLds)}")
    g(f"ds_read_b128 {vr(XD[0]+4,4)}, {vr(vLds)} offset:16")
    readSZ(0, 0)
    g(f"ds_read_b32 {vr(vB)}, {vr(vZero)} offset:{BLDS}")
    g(f"v_subrev_u32 {vr(vA0)}, 64, {vr(vV0)}")
    g(f"v_sub_u32 {vr(vD96)}, {vr(vV1)}, {vr(vV0)}")
    xreduce("v_max_f32", vM, vT1)
    g("s_nop 0")
    g(f"v_readlane_b32 {sr(sTmp)}, {vr(vM)}, 0")
    g(f"v_readlane_b32 {sr(sTmp2)}, {vr(vM)}, 1")
    for r in range(36):
        g(f"v_mov_b32 {vr(O+r)}, 0")
    g(f"v_mov_b32 {vr(vM)}, {sr(sTmp)}")
    g(f"v_mov_b32 {vr(vT1)}, {sr(sTmp2)}")
    g(f"v_cndmask_b32 {vr(vM)}, {vr(vM)}, {vr(vT1)}, {sr(sHd,2)}")
    g(f"s_mov_b32 {sr(sN)}, 0")
    def softmax(tile):
        b = tile & 1
        Xr = XD[b]; VS = VSZ[b]; VZ = VSZ[b] + 4
        g(f"s_cmp_lg_u32 {sr(sLM+b)}, {sr(sLay)}")
        g(f"s_cbranch_scc1 L_remap{b}")
        g.label(f"L_rb{b}")
        g("s_waitcnt lgkmcnt(0)")
        g(f"v_readfirstlane_b32 {sr(sB)}, {vr(vB)}")
        for i in range(4):
            g(f"v_lshlrev_b32 {vr(U+2*i)}, 16, {vr(VS+i)}")
            g(f"v_and_b32 {vr(U+2*i+1)}, {sr(sHi)}, {vr(VS+i)}")
        g(f"s_cmp_lt_u32 {sr(sSlot)}, {sr(sB)}")
        g(f"s_cselect_b32 {sr(sLM+b)}, 1, 0")
        g(f"s_cselect_b32 {sr(sRot)}, 0, 64")
        g(f"s_cselect_b32 {sr(sX)}, 0x100, {sr(sRM)}")
        tlog(sLM+b)
        for e in range(8):
            g(f"v_sub_f32 {vr(Xr+e)}, {vr(Xr+e)}, {vr(vM)}")
        g(f"ds_read_b128 {vr(XD[1-b],4)}, {vr(vLds)} offset:{256*(b+1)}")
        g(f"ds_read_b128 {vr(XD[1-b]+4,4)}, {vr(vLds)} offset:{256*(b+1)+16}")
        readSZ(1-b, 512 if b else 64)
        g(f"v_add_u32 {vr(vV0)}, {sr(sRot)}, {vr(vA0)}")
        g(f"v_max_i32 {vr(vV1)}, {sr(sX)}, {vr(vD96)}")
        g(f"v_add_u32 {vr(vV1)}, {vr(vV1)}, {vr(vV0)}")
        g(f"s_bitcmp1_b32 {sr(sCk)}, {sr(sSlot)}")
        g(f"s_cbranch_scc1 L_ck{b}")
        g.label(f"L_nck{b}")
        g(f"s_add_u32 {sr(sSlot)}, {sr(sSlot)}, 1")
        for e in range(8):
            g(f"v_exp_f32 {vr(Xr+e)}, {vr(Xr+e)}")
        g("s_nop 0")
        for e in range(8):
            g(f"v_mul_f32 {vr(U+e)}, {vr(Xr+e)}, {vr(U+e)}")
        for i in range(4):
            g(f"v_cvt_pk_bf16_f32 {vr(WP+i)}, {vr(U+pairs[i][0])}, {vr(U+pairs[i][1])}")
        for i in range(4):
            g(f"v_cvt_pk_bf16_f32 {vr(WP2+i)}, {vr(U+2*i)}, {vr(U+2*i+1)}")
        g(f"v_add_f32 {vr(Xr)}, {vr(Xr)}, {vr(Xr+1)}")
        g(f"v_add_f32 {vr(Xr+2)}, {vr(Xr+2)}, {vr(Xr+3)}")
        g(f"v_mfma_f32_16x16x32_bf16 {vr(CORR,4)}, {vr(VZ,4)}, {vr(WP2,4)}, {vr(CORR,4)}")
        g(f"v_add_f32 {vr(Xr+4)}, {vr(Xr+4)}, {vr(Xr+5)}")
        g(f"v_add_f32 {vr(Xr+6)}, {vr(Xr+6)}, {vr(Xr+7)}")
        g(f"v_add_f32 {vr(Xr)}, {vr(Xr)}, {vr(Xr+2)}")
        g(f"v_add_f32 {vr(Xr+4)}, {vr(Xr+4)}, {vr(Xr+6)}")
        g(f"v_add_f32 {vr(Xr)}, {vr(Xr)}, {vr(Xr+4)}")
        g(f"v_add_f32 {vr(vL)}, {vr(vL)}, {vr(Xr)}")
    def stepV(k, tile):
        b = tile & 1
        i, half = k // 2, k % 2
        R = RAW[b] + 8*k
        wait(("V", tile, k, 1))
        if k == cfg.ctlpos:
            g(f"s_cmp_lg_u32 {sr(sPend)}, 0")
            g(f"s_cbranch_scc1 L_ctl{b}")
            g.label(f"L_cb{b}")
        if k == 7:
            g(f"ds_read_b32 {vr(vB)}, {vr(vZero)} offset:{BLDS}")
        cvt8(R)
        for c in range(4):
            g(f"v_cvt_pk_bf16_f32 {vr(TV+(half*4+c)*4+i)}, {vr(R+c)}, {vr(R+4+c)}")
        loadV(k, tile+2)
        if i == 3:
            for c in range(4):
                acc = O + (half*4+c)*4
                g(f"v_mfma_f32_16x16x32_bf16 {vr(acc,4)}, {vr(TV+(half*4+c)*4,4)}, {vr(WP,4)}, {vr(acc,4)}")
    vsteady = [("V", 0, k, x) for k in range(8) for x in range(2)] + [("V", 1, k, x) for k in range(8) for x in range(2)]
    assert q.q == vsteady[-len(q.q):]
    q.q = list(vsteady)
    g(f"s_mov_b32 {sr(sRM)}, 0xffffff00")
    if cfg.tlog:
        g(f"s_lshl_b32 s99, {sr(sWave)}, 8")
        g(f"s_add_u32 s99, s99, {BLDS+80}")
    g(".p2align 6")
    g.label("L_vloop")
    g(f"s_add_u32 {sr(sOff0)}, {sr(sOff0)}, 0x20000")
    g(f"s_cmp_lt_u32 {sr(sN)}, 15")
    g(f"s_cselect_b32 {sr(sOff0)}, {sr(sOff0)}, 0x20000000")
    g(f"s_add_u32 {sr(sOff1)}, {sr(sOff0)}, 0x4000")
    for t in range(2):
        softmax(t)
        for k in range(8):
            stepV(k, t)
    g(f"v_add_u32 {vr(vLds)}, 512, {vr(vLds)}")
    g(f"v_add_u32 {vr(vS)}, 512, {vr(vS)}")
    assert [(t[0], t[1]-2) + t[2:] for t in q.q] == vsteady
    g(f"s_add_u32 {sr(sN)}, {sr(sN)}, 1")
    g(f"s_cmp_lt_u32 {sr(sN)}, 16")
    g("s_cbranch_scc1 L_vloop")
    g("s_branch L_epi")
    for b in range(2):
        g.label(f"L_remap{b}")
        g(f"s_mov_b32 {sr(sLay)}, {sr(sLM+b)}")
        g(f"s_cmp_lg_u32 {sr(sLay)}, 0")
        g(f"s_cselect_b32 {sr(sTmp)}, 48, 16")
        g(f"s_cselect_b32 {sr(sExec)}, 0, 0xffff")
        g(f"s_cselect_b32 {sr(sExec+1)}, 0xffff0000, 0")
        g(f"v_add_u32 {vr(vT1)}, {sr(sTmp)}, {vr(vLane)}")
        g(f"v_and_b32 {vr(vT1)}, 63, {vr(vT1)}")
        g(f"v_lshlrev_b32 {vr(vT1)}, 2, {vr(vT1)}")
        g("s_nop 7")
        g("s_nop 3")
        g(f"s_mov_b64 exec, {sr(sExec,2)}")
        for r in range(16):
            g(f"v_swap_b32 {vr(O+r)}, {vr(O+16+r)}")
        g("s_mov_b64 exec, -1")
        for r in range(32):
            g(f"ds_bpermute_b32 {vr(O+r)}, {vr(vT1)}, {vr(O+r)}")
        g(f"s_branch L_rb{b}")
        g.label(f"L_ck{b}")
        g(f"v_mov_b32 {vr(TV)}, {sr(sCn)}")
        g(f"v_mov_b32 {vr(TV+1)}, 1")
        g("s_mov_b64 exec, 1")
        g(f"ds_add_rtn_u32 {vr(TV+1)}, {vr(TV)}, {vr(TV+1)}")
        g("s_mov_b64 exec, -1")
        g(f"s_add_u32 {sr(sCn)}, {sr(sCn)}, 4")
        g(f"s_add_u32 {sr(sCOff)}, {sr(sCOff)}, {CSTR}")
        g(f"s_mov_b32 {sr(sRank)}, 1")
        g("s_waitcnt lgkmcnt(0)")
        g(f"v_readfirstlane_b32 {sr(sTmp)}, {vr(TV+1)}")
        g(f"s_cmp_lg_u32 {sr(sTmp)}, {cfg.arr}")
        g(f"s_cbranch_scc1 L_nck{b}")
        g(f"s_atomic_add {sr(sRank)}, s[22:23], {sr(sCOff)} glc")
        g(f"s_mov_b32 {sr(sPend)}, 1")
        g(f"s_branch L_nck{b}")
        g.label(f"L_ctl{b}")
        g(f"s_mov_b32 {sr(sPend)}, 0")
        g(f"s_mov_b32 {sr(sTmp)}, {sr(sSlot)}")
        g("s_waitcnt lgkmcnt(0)")
        for t in thr:
            g(f"s_cmp_ge_u32 {sr(sRank)}, {t}")
            g(f"s_addc_u32 {sr(sTmp)}, {sr(sTmp)}, 0")
        g(f"v_mov_b32 {vr(vT1)}, {sr(sTmp)}")
        g(f"ds_write_b32 {vr(vZero)}, {vr(vT1)} offset:{BLDS}")
        g(f"s_branch L_cb{b}")
    g.label("L_epi")
    tlog(sPend)
    if cfg.tlog:
        g(f"s_lshl_b32 s99, {sr(sWave)}, 8")
        g(f"s_add_u32 s99, s99, {BLDS+80}")
        g(f"v_lshlrev_b32 v253, 2, {vr(vLane)}")
        g("v_add_u32 v254, s99, v253")
        g("ds_read_b32 v255, v254")
        g(f"s_mul_i32 s99, s2, {WPW}")
        g(f"s_add_u32 s99, s99, {sr(sWave)}")
        g("s_lshl_b32 s99, s99, 8")
        g("s_add_u32 s99, s99, 0x1400000")
        g("s_waitcnt lgkmcnt(0)")
        g(f"buffer_store_dword v255, v253, {sr(sWS,4)}, s99 offen")
    g("s_waitcnt lgkmcnt(0)")
    xreduce("v_add_f32", vL, vT1)
    g(f"s_cmp_lg_u32 {sr(sLay)}, 0")
    g(f"s_cselect_b32 {sr(sRot)}, 0, 64")
    g(f"v_and_b32 v12, 15, {vr(vLane)}")
    g(f"v_lshrrev_b32 v13, 4, {vr(vLane)}")
    g(f"s_lshl_b32 {sr(sTmp)}, {sr(sWave)}, 10")
    g(f"s_add_u32 {sr(sTmp)}, {sr(sTmp)}, {CLDS}")
    g("v_lshlrev_b32 v14, 9, v12")
    g(f"v_add_u32 v14, {sr(sTmp)}, v14")
    g(f"v_lshl_add_u32 v16, v13, 6, {sr(sRot)}")
    g("v_add_u32 v17, 256, v16")
    g("v_and_b32 v17, 511, v17")
    g("v_add_u32 v17, v14, v17")
    g("v_add_u32 v16, v14, v16")
    g(f"s_lshl_b32 {sr(sTmp)}, {sr(sWave)}, 4")
    g(f"s_add_u32 {sr(sTmp)}, {sr(sTmp)}, {CLDS + WPW*1024}")
    g("v_lshlrev_b32 v15, 3, v12")
    g(f"v_add_u32 v15, {sr(sTmp)}, v15")
    g(f"s_mov_b64 exec, {sr(sJ2,2)}")
    for half in range(2):
        for r in range(4):
            T = TV + 4*(half*4+r)
            for c in range(4):
                g(f"v_sub_f32 {vr(T+c)}, {vr(O+(half*4+c)*4+r)}, {vr(CORR)}")
            g(f"ds_write_b128 v{16+half}, {vr(T,4)} offset:{r*16}")
    g(f"ds_write_b64 v15, {vr(vM,2)}")
    g("s_mov_b64 exec, -1")
    def stamp(slot):
        g("s_memrealtime s[86:87]")
        g(f"s_mul_i32 s89, s2, {WPW}")
        g(f"s_add_u32 s89, s89, {sr(sWave)}")
        g("s_lshl_b32 s89, s89, 4")
        g(f"s_add_u32 s89, s89, 0x{0x1000000 + slot*0x100000:x}")
        g("s_waitcnt lgkmcnt(0)")
        g("v_mov_b32 v28, s84"); g("v_mov_b32 v29, s86"); g("v_mov_b32 v30, s88"); g("v_mov_b32 v31, s94")
        g("v_mov_b32 v27, 0")
        g("s_mov_b64 s[90:91], exec")
        g("s_mov_b64 exec, 1")
        g(f"buffer_store_dwordx4 v[28:31], v27, {sr(sWS,4)}, s89 offen")
        g("s_mov_b64 exec, s[90:91]")
    if cfg.stamp: stamp(0)
    g("s_waitcnt vmcnt(0) lgkmcnt(0)")
    g("s_barrier")
    g(f"s_cmp_lg_u32 {sr(sWave)}, 0")
    g("s_cbranch_scc1 L_end")
    g(f"v_lshrrev_b32 v10, 5, {vr(vLane)}")
    g(f"v_lshlrev_b32 v11, 4, {vr(vLane)}")
    g("v_lshlrev_b32 v12, 3, v10")
    ML = 64; OP = 96
    def combine(n, ML, OP, M, L, R):
        g(f"v_mov_b32 {vr(M)}, {vr(ML)}")
        for w in range(1, n):
            g(f"v_max_f32 {vr(M)}, {vr(M)}, {vr(ML+2*w)}")
        for w in range(n):
            g(f"v_sub_f32 {vr(ML+2*w)}, {vr(ML+2*w)}, {vr(M)}")
        for w in range(n):
            g(f"v_exp_f32 {vr(ML+2*w)}, {vr(ML+2*w)}")
        g("s_nop 0")
        g(f"v_mul_f32 {vr(L)}, {vr(ML)}, {vr(ML+1)}")
        for c in range(4):
            g(f"v_mul_f32 {vr(R+c)}, {vr(ML)}, {vr(OP+c)}")
        for w in range(1, n):
            g(f"v_fmac_f32 {vr(L)}, {vr(ML+2*w)}, {vr(ML+2*w+1)}")
            for c in range(4):
                g(f"v_fmac_f32 {vr(R+c)}, {vr(ML+2*w)}, {vr(OP+4*w+c)}")
    for w in range(WPW):
        g(f"ds_read_b64 {vr(ML+2*w,2)}, v12 offset:{CLDS+WPW*1024+w*16}")
    for w in range(WPW):
        g(f"ds_read_b128 {vr(OP+4*w,4)}, v11 offset:{CLDS+w*1024}")
    g(f"s_and_b32 {sr(sTmp)}, {sr(sUnit)}, 1")
    g(f"s_mul_i32 {sr(sTmp)}, {sr(sTmp)}, {WGPU}")
    g(f"s_add_u32 {sr(sTmp)}, {sr(sTmp)}, {sr(sSub)}")
    g(f"s_mul_i32 {sr(sTmp2)}, {sr(sBH)}, {NP}")
    g(f"s_add_u32 {sr(sTmp)}, {sr(sTmp)}, {sr(sTmp2)}")
    g(f"s_lshl_b32 {sr(sOff0)}, {sr(sTmp)}, 10")
    g(f"s_lshl_b32 {sr(sOff1)}, {sr(sTmp)}, 4")
    g(f"s_add_u32 {sr(sOff1)}, {sr(sOff1)}, 0x{MLBASE:x}")
    g("s_waitcnt lgkmcnt(0)")
    combine(WPW, ML, OP, 20, 21, 24)
    g(f"buffer_store_dwordx4 v[24:27], v11, {sr(sWS,4)}, {sr(sOff0)} offen sc1")
    g(f"v_and_b32 v16, 31, {vr(vLane)}")
    g("v_cmp_eq_u32 vcc, 0, v16")
    g(f"s_and_saveexec_b64 {sr(sExec,2)}, vcc")
    g(f"buffer_store_dwordx2 v[20:21], v12, {sr(sWS,4)}, {sr(sOff1)} offen sc1")
    g("s_mov_b64 exec, 1")
    g("v_mov_b32 v16, 1")
    g("v_mov_b32 v17, 0")
    g(f"s_lshl_b32 {sr(sTmp)}, {sr(sBH)}, 2")
    g("s_waitcnt vmcnt(0)")
    g(f"buffer_atomic_add v16, v17, {sr(sDBG,4)}, {sr(sTmp)} offen sc0")
    g("s_waitcnt vmcnt(0)")
    g(f"v_readfirstlane_b32 {sr(sTmp)}, v16")
    g("s_mov_b64 exec, -1")
    g(f"s_cmp_lg_u32 {sr(sTmp)}, {NP-1}")
    g("s_cbranch_scc1 L_end")
    g(f"s_lshl_b32 {sr(sOff0)}, {sr(sTmp2)}, 10")
    g(f"s_lshl_b32 {sr(sOff1)}, {sr(sTmp2)}, 4")
    g(f"s_add_u32 {sr(sOff1)}, {sr(sOff1)}, 0x{MLBASE:x}")
    ML2 = 64; OP2 = 64 + 2*NP
    for p in range(NP):
        g(f"buffer_load_dwordx2 {vr(ML2+2*p,2)}, v12, {sr(sWS,4)}, {sr(sOff1)} offen offset:{16*p} sc1")
    for p in range(NP):
        if p and p % 4 == 0:
            g(f"s_add_u32 {sr(sOff0)}, {sr(sOff0)}, 4096")
        g(f"buffer_load_dwordx4 {vr(OP2+4*p,4)}, v11, {sr(sWS,4)}, {sr(sOff0)} offen offset:{1024*(p%4)} sc1")
    g("s_waitcnt vmcnt(0)")
    combine(NP, ML2, OP2, 20, 21, 24)
    g("v_rcp_f32 v21, v21")
    g(f"s_lshl_b32 {sr(sTmp)}, {sr(sBH)}, 9")
    for c in range(4):
        g(f"v_mul_f32 v{24+c}, v{24+c}, v21")
    g("v_cvt_pk_bf16_f32 v24, v24, v25")
    g("v_cvt_pk_bf16_f32 v25, v26, v27")
    g(f"v_lshlrev_b32 v11, 3, {vr(vLane)}")
    g(f"buffer_store_dwordx2 v[24:25], v11, {sr(sOUT,4)}, {sr(sTmp)} offen")
    if cfg.stamp:
        g("s_waitcnt vmcnt(0)")
        stamp(1)
    g.label("L_end")
    g("s_endpgm")
    main = g.text()

    lds = BLDS + 80 + (1024 if cfg.tlog else 0)
    out = HEADER
    out += f"; @launch grid=({NWG},1,1) block=({WPW*64},1,1) lds={lds}\n"
    out += '.amdgcn_target "amdgcn-amd-amdhsa--gfx950"\n.text\n'
    out += f".globl {NAME}_kernel\n.p2align 8\n.type {NAME}_kernel,@function\n" + main
    out += '.section .rodata,"a"\n'
    out += (f".p2align 6\n.amdhsa_kernel {NAME}_kernel\n  .amdhsa_next_free_vgpr {NV}\n  .amdhsa_next_free_sgpr {NS}\n"
            f"  .amdhsa_accum_offset {NV}\n  .amdhsa_group_segment_fixed_size 0\n  .amdhsa_kernarg_size 80\n"
            "  .amdhsa_user_sgpr_count 2\n  .amdhsa_user_sgpr_kernarg_segment_ptr 1\n"
            "  .amdhsa_system_sgpr_workgroup_id_x 1\n.end_amdhsa_kernel\n")
    return out

if __name__ == "__main__":
    ap = argparse.ArgumentParser()
    ap.add_argument("-o", default="/dev/stdout")
    ap.add_argument("--stamp", type=int, default=0)
    ap.add_argument("--smallpos", type=int, default=0)
    ap.add_argument("--dmapos", type=int, default=0)
    ap.add_argument("--tlog", type=int, default=0)
    ap.add_argument("--arr", type=int, default=3)
    ap.add_argument("--ctlpos", type=int, default=5)
    ap.add_argument("--gs", type=int, default=32)
    ap.add_argument("--cks", default="0,8,16,22,26")
    ap.add_argument("--thr", default="20,24,27,29,30,31")
    cfg = ap.parse_args()
    open(cfg.o, "w").write(build(cfg))
```

```python
import sys, argparse, math, struct
from gen import Gen, vr, sr, HEADER, NAME, f32bits

def build(cfg):
    WPW = 4; NWG = 256; NP = 8
    MLBASE = 32 * NP * 1024
    cks = [int(x) for x in cfg.cks.split(",")] if cfg.cks else []
    thr = [int(x) for x in cfg.thr.split(",")]
    ckmask = 0
    for c in cks: ckmask |= 1 << c
    assert len(cks) <= 15
    GS = cfg.gs; LGS = int(math.log2(GS))
    CBASE = 0x50000; CSTR = 4352
    WSBYTES = CBASE + (256 // GS) * 16 * CSTR + CSTR
    D, DB, LA = cfg.d, cfg.db, 8
    assert D <= DB <= LA
    nt = " nt"
    g = Gen()
    vB, vKC, vVA, vNx, vZero, vS, vLds, vLane, vM, vL, vT1, vBias = range(12)
    vSelS, vSelZ, vMa, vMb = 12, 13, 14, 15
    Q = 16
    NB = 32
    TK = 36
    TV = 36
    DK = 52
    X = 68
    VS = 72; VZ = 76; U = 80; P = 84; ZA = 86; WP = 88
    O = 96
    CORR = 128
    RAW = 132
    SM = 196
    TMP = 220
    NV = cfg.nv
    sK, sV, sVS, sVZ, sQ, sKS, sKZ, sWS, sDBG, sOUT, sNx = 24, 28, 32, 36, 40, 44, 48, 52, 72, 76, 96
    sWave, sUnit, sCur, sNOff, sDelta, sN, sTmp, sTmp2, sBH, sBase = 56, 57, 58, 59, 60, 61, 62, 63, 64, 65
    sJ4 = 66; sHi = 68; sC = 69; sExec = 70; sHd = 80; sEp = 82; sCk = 92
    sB, sPend, sRank, sSlot, sCOff, sCn = 40, 41, 42, 43, 100, 101
    NS = 102
    LV = 32768
    CLDS = 49152
    MLDS = CLDS + 8192
    BLDS = MLDS + WPW * 16
    TLDS = BLDS + 80
    dpp = " row_mask:0xf bank_mask:0xf"

    g.label(f"{NAME}_kernel")
    g(f"s_cmp_ge_u32 s2, {NWG}")
    g("s_cbranch_scc1 L_end")
    g("s_load_dwordx4 s[4:7], s[0:1], 0")
    g("s_load_dwordx4 s[8:11], s[0:1], 16")
    g("s_load_dwordx8 s[12:19], s[0:1], 32")
    g("s_load_dwordx4 s[20:23], s[0:1], 64")
    if cfg.stamp:
        g("s_memrealtime s[84:85]")
        g("s_getreg_b32 s88, hwreg(HW_REG_XCC_ID)")
    w_, j_, g_, a_, b_, g1, g2, hd, pr, t0, t1, oS, oQ, l16 = range(TMP, TMP + 14)
    g(f"v_and_b32 {vr(vLane)}, 63, v0")
    g(f"v_lshrrev_b32 {vr(w_)}, 6, v0")
    g(f"v_and_b32 {vr(j_)}, 15, {vr(vLane)}")
    g(f"v_lshrrev_b32 {vr(g_)}, 4, {vr(vLane)}")
    g(f"v_readfirstlane_b32 {sr(sWave)}, {vr(w_)}")
    g(f"v_lshrrev_b32 {vr(a_)}, 2, {vr(j_)}")
    g(f"v_and_b32 {vr(b_)}, 3, {vr(j_)}")
    g(f"v_and_b32 {vr(g1)}, 1, {vr(g_)}")
    g(f"v_lshrrev_b32 {vr(g2)}, 1, {vr(g_)}")
    g(f"v_lshlrev_b32 {vr(t0)}, 15, {vr(a_)}")
    g(f"v_lshl_add_u32 {vr(t0)}, {vr(g2)}, 9, {vr(t0)}")
    g(f"v_lshl_add_u32 {vr(t0)}, {vr(g1)}, 6, {vr(t0)}")
    g(f"v_lshl_add_u32 {vr(vKC)}, {vr(b_)}, 4, {vr(t0)}")
    g(f"v_lshl_add_u32 {vr(oS)}, {vr(g1)}, 2, {vr(a_)}")
    g(f"v_lshlrev_b32 {vr(oS)}, 3, {vr(oS)}")
    g(f"v_and_b32 {vr(hd)}, 1, {vr(j_)}")
    g(f"v_lshl_add_u32 {vr(oQ)}, {vr(hd)}, 8, {vr(oS)}")
    g(f"v_lshlrev_b32 {vr(l16)}, 4, {vr(vLane)}")
    g(f"s_lshr_b32 {sr(sUnit)}, s2, 2")
    g(f"s_lshr_b32 {sr(sBH)}, s2, 3")
    g(f"s_lshl_b32 {sr(sBase)}, s2, 9")
    g(f"s_add_u32 {sr(sBase)}, {sr(sBase)}, {sr(sWave)}")
    g(f"s_lshl_b32 {sr(sBase)}, {sr(sBase)}, 12")
    g(f"s_lshl_b32 {sr(sTmp)}, {sr(sBH)}, 9")
    g(f"s_lshl_b32 {sr(sTmp2)}, {sr(sUnit)}, 8")
    g("s_waitcnt lgkmcnt(0)")
    def srd(d, p, nbytes):
        g(f"s_mov_b32 {sr(d)}, {sr(p)}")
        g(f"s_and_b32 {sr(d+1)}, {sr(p+1)}, 0xffff")
        g(f"s_mov_b32 {sr(d+2)}, 0x{nbytes:x}")
        g(f"s_mov_b32 {sr(d+3)}, 0x00020000")
    def big(n, va, sd, so):
        s_, u = n >> 2, n & 3
        g(f"buffer_load_dwordx4 {vr(RAW+4*n,4)}, {vr(va)}, {sr(sd,4)}, {sr(so)} offen offset:{u*1024+s_*128}{nt}")
    RQ, RKS, RZ = SM, SM + 8, SM + 16
    srd(sK, 6, 0x20000000)
    for n in range(cfg.first):
        big(n, vKC, sK, sBase)
    srd(sQ, 4, 16384); srd(sKS, 10, 16384); srd(sKZ, 12, 16384)
    for s_ in range(4):
        g(f"buffer_load_dwordx2 {vr(RQ+2*s_,2)}, {vr(oQ)}, {sr(sQ,4)}, {sr(sTmp)} offen offset:{64*s_}")
        g(f"buffer_load_dwordx2 {vr(RKS+2*s_,2)}, {vr(oS)}, {sr(sKS,4)}, {sr(sTmp2)} offen offset:{64*s_}")
        g(f"buffer_load_dwordx2 {vr(RZ+2*s_,2)}, {vr(oS)}, {sr(sKZ,4)}, {sr(sTmp2)} offen offset:{64*s_}")
    for n in range(cfg.first, LA):
        big(n, vKC, sK, sBase)
    srd(sVS, 14, 0x200000)
    srd(sVZ, 16, 0x200000)
    g(f"s_lshl_b32 {sr(sTmp)}, s2, 13")
    g(f"s_lshl_b32 {sr(sTmp2)}, {sr(sWave)}, 11")
    g(f"s_add_u32 {sr(sTmp)}, {sr(sTmp)}, {sr(sTmp2)}")
    g(f"s_add_u32 m0, {sr(sTmp2)}, {LV}")
    g("s_nop 0")
    for x in range(2):
        g(f"buffer_load_dwordx4 {vr(l16)}, {sr(sVS,4)}, {sr(sTmp)} offen offset:{1024*x} lds")
    g(f"s_add_u32 m0, {sr(sTmp2)}, {LV+8192}")
    g("s_nop 0")
    for x in range(2):
        g(f"buffer_load_dwordx4 {vr(l16)}, {sr(sVZ,4)}, {sr(sTmp)} offen offset:{1024*x} lds")
    younger = LA - cfg.first + 4
    srd(sV, 8, 0x20000000)
    srd(sNx, 6, 0x20000000)
    srd(sWS, 22, WSBYTES if not cfg.stamp else 0x2000000)
    srd(sDBG, 20, 256)
    srd(sOUT, 18, 16384)
    g(f"s_lshr_b32 {sr(sCOff)}, s2, {LGS}")
    g(f"s_mul_i32 {sr(sCOff)}, {sr(sCOff)}, {16*CSTR}")
    g(f"s_add_u32 {sr(sCOff)}, {sr(sCOff)}, 0x{CBASE:x}")
    g(f"s_and_b32 {sr(sTmp)}, s2, {GS-1}")
    g(f"s_or_b32 {sr(sTmp)}, {sr(sTmp)}, {sr(sWave)}")
    g(f"v_mov_b32 {vr(vZero)}, 0")
    g(f"s_cmp_lg_u32 {sr(sTmp)}, 0")
    g("s_cbranch_scc1 L_noinit")
    g(f"v_mul_u32_u24 {vr(t0)}, {CSTR}, {vr(vLane)}")
    g(f"v_add_u32 {vr(t0)}, {CSTR}, {vr(t0)}")
    g(f"s_mov_b64 exec, 0x{(1 << max(1, len(cks))) - 1:x}")
    g(f"buffer_store_dword {vr(vZero)}, {vr(t0)}, {sr(sWS,4)}, {sr(sCOff)} offen sc1")
    g("s_mov_b64 exec, -1")
    g.label("L_noinit")
    g(f"s_mov_b32 {sr(sHi)}, 0xffff0000")
    g(f"s_mov_b32 {sr(sC)}, 0x{f32bits((128.0 ** -0.5) * math.log2(math.e)):08x}")
    g(f"v_bfe_u32 {vr(pr)}, {vr(j_)}, 1, 1")
    g(f"v_lshrrev_b32 {vr(t0)}, 3, {vr(j_)}")
    g(f"v_and_b32 {vr(t1)}, 7, {vr(j_)}")
    g(f"v_lshlrev_b32 {vr(t1)}, 4, {vr(t1)}")
    g(f"v_lshl_add_u32 {vr(t1)}, {vr(t0)}, 9, {vr(t1)}")
    g(f"v_lshl_add_u32 {vr(vVA)}, {vr(g_)}, 15, {vr(t1)}")
    g(f"v_mov_b32 {vr(vNx)}, {vr(vKC)}")
    g(f"v_mul_u32_u24 {vr(t0)}, 0x020202, {vr(t0)}")
    g(f"v_lshl_add_u32 {vr(t1)}, {vr(t0)}, 8, {vr(t0)}")
    g(f"v_and_b32 {vr(t1)}, 0x02020202, {vr(t1)}")
    g(f"v_or_b32 {vr(t1)}, {vr(t1)}, {vr(t0)}")
    g(f"v_add_u32 {vr(vSelZ)}, 0x05040100, {vr(t1)}")
    g(f"v_mul_u32_u24 {vr(t0)}, 0x0202, {vr(pr)}")
    g(f"v_lshlrev_b32 {vr(t0)}, 16, {vr(t0)}")
    g(f"v_add_u32 {vr(vSelS)}, 0x01000c0c, {vr(t0)}")
    g(f"v_bfe_u32 {vr(t0)}, {vr(j_)}, 2, 1")
    g(f"v_sub_u32 {vr(vMb)}, 0, {vr(t0)}")
    g(f"v_not_b32 {vr(vMa)}, {vr(vMb)}")
    g(f"v_lshlrev_b32 {vr(vS)}, 7, {vr(g_)}")
    g(f"v_lshl_add_u32 {vr(vS)}, {vr(w_)}, 4, {vr(vS)}")
    g(f"v_add_u32 {vr(vS)}, {LV}, {vr(vS)}")
    g(f"v_lshl_add_u32 {vr(t0)}, {vr(g_)}, 2, {vr(b_)}")
    g(f"v_lshlrev_b32 {vr(t0)}, 4, {vr(t0)}")
    g(f"v_lshl_add_u32 {vr(vLds)}, {vr(w_)}, 13, {vr(t0)}")
    g(f"v_cmp_gt_u32 {sr(sJ4,2)}, 4, {vr(j_)}")
    g(f"v_cmp_ne_u32 {sr(sHd,2)}, 0, {vr(hd)}")
    g(f"v_cmp_eq_u32 {sr(sEp,2)}, {vr(pr)}, {vr(g2)}")
    g(f"v_cmp_gt_u32 vcc, 8, {vr(j_)}")
    g(f"v_mov_b32 {vr(t1)}, {sr(sC)}")
    cL = l16
    g(f"v_cndmask_b32 {vr(cL)}, 0, {vr(t1)}, {sr(sEp,2)}")
    g(f"s_and_b64 {sr(sEp,2)}, {sr(sEp,2)}, vcc")
    g(f"v_lshlrev_b32 {vr(t0)}, 2, {vr(j_)}")
    g(f"ds_write_b32 {vr(vZero)}, {vr(vZero)} offset:{BLDS}")
    g(f"ds_write_b32 {vr(t0)}, {vr(vZero)} offset:{BLDS+4}")
    for r in range(36):
        g(f"v_mov_b32 {vr(O+r)}, 0")
    g(f"v_mov_b32 {vr(vBias)}, 0")
    g(f"v_mov_b32 {vr(vM)}, 0xff7fffff")
    g(f"v_mov_b32 {vr(vL)}, 0")
    g(f"v_mov_b32 {vr(vB)}, 0")
    g(f"s_waitcnt lgkmcnt(0)")
    g("s_barrier")
    g(f"s_waitcnt vmcnt({younger})")
    a0, a1, b0, b1, z0, z1, h0, h1 = range(TK, TK + 8)
    for s_ in range(4):
        for y in range(2):
            w = 2 * s_ + y
            qh = Q + (s_ >> 1) * 8 + (s_ & 1) * 2 + y
            ql = qh + 4
            g(f"v_lshlrev_b32 v{a0}, 16, {vr(RQ+w)}")
            g(f"v_and_b32 v{a1}, {sr(sHi)}, {vr(RQ+w)}")
            g(f"v_lshlrev_b32 v{b0}, 16, {vr(RKS+w)}")
            g(f"v_and_b32 v{b1}, {sr(sHi)}, {vr(RKS+w)}")
            g(f"v_lshlrev_b32 v{z0}, 16, {vr(RZ+w)}")
            g(f"v_and_b32 v{z1}, {sr(sHi)}, {vr(RZ+w)}")
            g(f"v_mul_f32 v{a0}, v{a0}, v{b0}")
            g(f"v_mul_f32 v{a1}, v{a1}, v{b1}")
            g(f"v_mul_f32 v{a0}, {vr(cL)}, v{a0}")
            g(f"v_mul_f32 v{a1}, {vr(cL)}, v{a1}")
            g(f"v_cvt_pk_bf16_f32 {vr(qh)}, v{a0}, v{a1}")
            g(f"v_fmac_f32 {vr(vBias)}, v{a0}, v{z0}")
            g(f"v_fmac_f32 {vr(vBias)}, v{a1}, v{z1}")
            g(f"v_lshlrev_b32 v{h0}, 16, {vr(qh)}")
            g(f"v_and_b32 v{h1}, {sr(sHi)}, {vr(qh)}")
            g(f"v_sub_f32 v{a0}, v{a0}, v{h0}")
            g(f"v_sub_f32 v{a1}, v{a1}, v{h1}")
            g(f"v_cvt_pk_bf16_f32 {vr(ql)}, v{a0}, v{a1}")
    def xreduce(op, v, t):
        g(f"v_mov_b32 {vr(t)}, {vr(v)}")
        g("s_nop 1")
        g(f"v_permlane16_swap_b32 {vr(v)}, {vr(t)}")
        g("s_nop 1")
        g(f"{op} {vr(v)}, {vr(v)}, {vr(t)}")
        g(f"v_mov_b32 {vr(t)}, {vr(v)}")
        g("s_nop 1")
        g(f"v_permlane32_swap_b32 {vr(v)}, {vr(t)}")
        g("s_nop 1")
        g(f"{op} {vr(v)}, {vr(v)}, {vr(t)}")
    xreduce("v_add_f32", vBias, vT1)
    g("s_nop 1")
    g(f"v_add_f32_dpp {vr(vBias)}, {vr(vBias)}, {vr(vBias)} row_ror:4{dpp}")
    g("s_nop 1")
    g(f"v_add_f32_dpp {vr(vBias)}, {vr(vBias)}, {vr(vBias)} row_ror:8{dpp}")
    g(f"v_mul_f32 {vr(NB)}, 0xbe800000, {vr(vBias)}")
    for r in range(1, 4):
        g(f"v_mov_b32 {vr(NB+r)}, {vr(NB)}")
    g(f"s_mov_b32 {sr(sCur)}, {sr(sBase)}")
    g(f"s_mov_b32 {sr(sDelta)}, 0x4000")
    g(f"s_mov_b32 {sr(sPend)}, 0")
    g(f"s_mov_b32 {sr(sSlot)}, 0")
    g(f"s_mov_b32 {sr(sCk)}, 0x{ckmask & 0xffffffff:x}")
    g(f"s_mov_b32 {sr(sCk+1)}, 0x{ckmask >> 32:x}")
    g(f"s_mov_b32 {sr(sCn)}, {BLDS+4}")
    if cfg.tlog:
        g(f"s_lshl_b32 s89, {sr(sWave)}, 9")
        g(f"s_add_u32 s89, s89, {TLDS}")

    def tlog():
        if not cfg.tlog: return
        g("s_memrealtime s[90:91]")
        g("s_waitcnt lgkmcnt(0)")
        g("s_and_b32 s90, s90, 0xfffffffe")
        g("s_and_b32 s91, vcc_lo, 1")
        g("s_or_b32 s90, s90, s91")
        g(f"v_mov_b32 {vr(TMP)}, s90")
        g(f"v_mov_b32 {vr(TMP+1)}, s89")
        g(f"ds_write_b32 {vr(TMP+1)}, {vr(TMP)}")
        g("s_add_u32 s89, s89, 4")
    def issue(ph, n, va, sd):
        if DB != D:
            g(f"s_cbranch_vccnz L_{ph}w{n}")
            g(f"s_waitcnt vmcnt({D-1})")
            g.label(f"L_{ph}w{n}")
        g(f"s_waitcnt vmcnt({DB-1})")
        if n < 16 - LA: big(n + LA, va, sd, sCur)
        else: big(n + LA - 16, vNx, sNx, sNOff)
    def top(ph):
        g("s_waitcnt lgkmcnt(0)")
        g(f"v_readfirstlane_b32 {sr(sB)}, {vr(vB)}")
        g(f"s_cmp_lt_u32 {sr(sSlot)}, {sr(sB)}")
        g("s_cselect_b64 vcc, -1, 0")
        tlog()
        g(f"s_bitcmp1_b64 {sr(sCk,2)}, {sr(sSlot)}")
        g(f"s_cbranch_scc1 L_ck{ph}")
        g.label(f"L_nck{ph}")
        g(f"s_add_u32 {sr(sSlot)}, {sr(sSlot)}, 1")
    def ctl_hooks(ph, n):
        if n == cfg.ctlpos:
            g(f"s_cmp_lg_u32 {sr(sPend)}, 0")
            g(f"s_cbranch_scc1 L_ctl{ph}")
            g.label(f"L_cb{ph}")
        if n == cfg.bpos:
            g(f"ds_read_b32 {vr(vB)}, {vr(vZero)} offset:{BLDS}")
    def ctl_blocks(ph):
        g.label(f"L_ck{ph}")
        g(f"v_mov_b32 {vr(TMP)}, {sr(sCn)}")
        g(f"v_mov_b32 {vr(TMP+1)}, 1")
        g("s_mov_b64 exec, 1")
        g(f"ds_add_rtn_u32 {vr(TMP+1)}, {vr(TMP)}, {vr(TMP+1)}")
        g("s_mov_b64 exec, -1")
        g(f"s_add_u32 {sr(sCn)}, {sr(sCn)}, 4")
        g(f"s_add_u32 {sr(sCOff)}, {sr(sCOff)}, {CSTR}")
        g(f"s_mov_b32 {sr(sRank)}, 1")
        g("s_waitcnt lgkmcnt(0)")
        g(f"v_readfirstlane_b32 {sr(sTmp)}, {vr(TMP+1)}")
        g(f"s_cmp_lg_u32 {sr(sTmp)}, {cfg.arr}")
        g(f"s_cbranch_scc1 L_nck{ph}")
        g(f"s_atomic_add {sr(sRank)}, s[22:23], {sr(sCOff)} glc")
        g(f"s_mov_b32 {sr(sPend)}, 1")
        g(f"s_branch L_nck{ph}")
        g.label(f"L_ctl{ph}")
        g(f"s_mov_b32 {sr(sPend)}, 0")
        g(f"s_mov_b32 {sr(sTmp)}, {sr(sSlot)}")
        g("s_waitcnt lgkmcnt(0)")
        for t in thr:
            g(f"s_cmp_ge_u32 {sr(sRank)}, {t}")
            g(f"s_addc_u32 {sr(sTmp)}, {sr(sTmp)}, 0")
        g(f"v_mov_b32 {vr(TMP)}, {sr(sTmp)}")
        g(f"ds_write_b32 {vr(vZero)}, {vr(TMP)} offset:{BLDS}")
        g(f"s_branch L_cb{ph}")
    def cvt4(R):
        for i in range(4):
            g(f"v_cvt_f32_i32 {vr(R+i)}, {vr(R+i)}")
    def kmfma(n):
        s_, u = n >> 2, n & 3
        m = s_ >> 1
        Dd = DK + 4*u; T = TK + 4*u
        g(f"v_mfma_f32_16x16x32_bf16 {vr(Dd,4)}, {vr(T,4)}, {vr(Q+8*m,4)}, {vr(NB,4) if m == 0 else vr(Dd,4)}")
        g(f"v_mfma_f32_16x16x32_bf16 {vr(Dd,4)}, {vr(T,4)}, {vr(Q+8*m+4,4)}, {vr(Dd,4)}")
    def red(u, k):
        Dd = DK + 4*u
        g(f"v_add_f32_dpp {vr(X+u)}, {vr(Dd+1+k)}, {vr(Dd) if k == 0 else vr(X+u)} row_ror:{12-4*k}{dpp}")
    g(".p2align 6")
    g.label("L_kloop")
    g(f"s_add_u32 {sr(sNOff)}, {sr(sCur)}, {sr(sDelta)}")
    g(f"s_xor_b32 {sr(sDelta)}, {sr(sDelta)}, 0x18000")
    g(f"s_cmp_eq_u32 {sr(sSlot)}, 31")
    g("s_cbranch_scc1 L_lastk")
    g.label("L_lastkb")
    top("k")
    for n in range(16):
        s_, u = n >> 2, n & 3
        issue("k", n, vKC, sK)
        if n > 0 and ((n-1) >> 2) & 1: kmfma(n-1)
        ctl_hooks("k", n)
        R = RAW + 4*n
        cvt4(R)
        for y in range(2):
            g(f"v_cvt_pk_bf16_f32 {vr(TK+4*u+2*(s_&1)+y)}, {vr(R+2*y)}, {vr(R+2*y+1)}")
    Dd = DK + 12; T = TK + 12
    red(0, 0); red(1, 0)
    g(f"v_mfma_f32_16x16x32_bf16 {vr(Dd,4)}, {vr(T,4)}, {vr(Q+8,4)}, {vr(Dd,4)}")
    red(0, 1); red(1, 1)
    g(f"v_mfma_f32_16x16x32_bf16 {vr(Dd,4)}, {vr(T,4)}, {vr(Q+12,4)}, {vr(Dd,4)}")
    red(0, 2); red(1, 2); red(2, 0)
    g(f"s_mov_b32 {sr(sCur)}, {sr(sNOff)}")
    g(f"v_max3_f32 {vr(vM)}, {vr(vM)}, {vr(X)}, {vr(X+1)}")
    red(2, 1)
    g("s_nop 1")
    red(2, 2); red(3, 0)
    g("s_nop 1")
    red(3, 1)
    g("s_nop 1")
    red(3, 2)
    g(f"s_mov_b64 exec, {sr(sJ4,2)}")
    g(f"v_max3_f32 {vr(vM)}, {vr(vM)}, {vr(X+2)}, {vr(X+3)}")
    g(f"ds_write_b128 {vr(vLds)}, {vr(X,4)}")
    g("s_mov_b64 exec, -1")
    g(f"v_add_u32 {vr(vLds)}, 256, {vr(vLds)}")
    g(f"s_cmp_lt_u32 {sr(sSlot)}, 32")
    g("s_cbranch_scc1 L_kloop")
    if cfg.stamp:
        g("s_memrealtime s[94:95]")
    def readS():
        g(f"ds_read_b128 {vr(X,4)}, {vr(vLds)}")
        g(f"ds_read_b128 {vr(VS,4)}, {vr(vS)}")
        g(f"ds_read_b128 {vr(VZ,4)}, {vr(vS)} offset:8192")
    g(f"v_subrev_u32 {vr(vLds)}, 0x2000, {vr(vLds)}")
    readS()
    g(f"v_max_f32_dpp {vr(vM)}, {vr(vM)}, {vr(vM)} quad_perm:[2,3,0,1]{dpp}")
    xreduce("v_max_f32", vM, vT1)
    g(f"s_mov_b32 {sr(sDelta)}, 0x4000")
    g(f"v_readlane_b32 {sr(sTmp)}, {vr(vM)}, 0")
    g(f"v_readlane_b32 {sr(sTmp2)}, {vr(vM)}, 1")
    g(f"s_mov_b32 {sr(sN)}, 64")
    g("s_nop 0")
    g(f"v_mov_b32 {vr(vM)}, {sr(sTmp)}")
    g(f"v_mov_b32 {vr(vT1)}, {sr(sTmp2)}")
    g(f"v_cndmask_b32 {vr(vM)}, {vr(vM)}, {vr(vT1)}, {sr(sHd,2)}")
    def vmfma(m):
        for c in range(4):
            acc = O + (m*4+c)*4
            g(f"v_mfma_f32_16x16x32_bf16 {vr(acc,4)}, {vr(TV+4*c,4)}, {vr(WP,4)}, {vr(acc,4)}")
    def soft(n):
        if n == 0:
            for e in range(4): g(f"v_sub_f32 {vr(X+e)}, {vr(X+e)}, {vr(vM)}")
            for e in range(2): g(f"v_exp_f32 {vr(X+e)}, {vr(X+e)}")
        elif n == 1:
            for e in range(2, 4): g(f"v_exp_f32 {vr(X+e)}, {vr(X+e)}")
        elif n == 2:
            for e in range(4): g(f"v_perm_b32 {vr(U+e)}, {vr(VS+e)}, {vr(VS+e)}, {vr(vSelS)}")
            for e in range(4): g(f"v_mul_f32 {vr(U+e)}, {vr(X+e)}, {vr(U+e)}")
        elif n == 3:
            for y in range(2): g(f"v_cvt_pk_bf16_f32 {vr(P+y)}, {vr(U+2*y)}, {vr(U+2*y+1)}")
            for y in range(2): g(f"v_perm_b32 {vr(ZA+y)}, {vr(VZ+2*y+1)}, {vr(VZ+2*y)}, {vr(vSelZ)}")
        elif n == 4:
            for y in range(2): g(f"v_and_b32 {vr(WP+y)}, {vr(vMa)}, {vr(P+y)}")
            for y in range(2): g(f"v_and_b32 {vr(WP+2+y)}, {vr(vMb)}, {vr(P+y)}")
            g(f"v_mfma_f32_16x16x16_bf16 {vr(CORR,4)}, {vr(ZA,2)}, {vr(P,2)}, {vr(CORR,4)}")
        elif n == 5:
            g(f"v_add_f32 {vr(X)}, {vr(X)}, {vr(X+1)}")
            g(f"v_add_f32 {vr(X+2)}, {vr(X+2)}, {vr(X+3)}")
            g(f"v_add_f32 {vr(vL)}, {vr(vL)}, {vr(X)}")
            g(f"v_add_f32 {vr(vL)}, {vr(vL)}, {vr(X+2)}")
        elif n == 6:
            g(f"v_add_u32 {vr(vLds)}, 256, {vr(vLds)}")
            g(f"v_add_u32 {vr(vS)}, {sr(sN)}, {vr(vS)}")
            g(f"s_xor_b32 {sr(sN)}, {sr(sN)}, {64 ^ 448}")
        elif n == cfg.rpos:
            readS()
    g(".p2align 6")
    g.label("L_vloop")
    g(f"s_add_u32 {sr(sNOff)}, {sr(sCur)}, {sr(sDelta)}")
    g(f"s_xor_b32 {sr(sDelta)}, {sr(sDelta)}, 0x18000")
    g(f"s_cmp_lt_u32 {sr(sSlot)}, 63")
    g(f"s_cselect_b32 {sr(sNOff)}, {sr(sNOff)}, 0x20000000")
    top("v")
    for n in range(16):
        s_, u = n >> 2, n & 3
        issue("v", n, vVA, sV)
        if n == 8: vmfma(0)
        ctl_hooks("v", n)
        R = RAW + 4*n
        cvt4(R)
        if u & 1:
            for c in range(4):
                g(f"v_cvt_pk_bf16_f32 {vr(TV+4*c+2*(s_&1)+(u>>1))}, {vr(R-4+c)}, {vr(R+c)}")
        soft(n)
    g(f"s_mov_b32 {sr(sCur)}, {sr(sNOff)}")
    g(f"s_cmp_lt_u32 {sr(sSlot)}, 64")
    vmfma(1)
    g("s_cbranch_scc1 L_vloop")
    g("s_branch L_epi")
    g.label("L_lastk")
    g(f"s_mov_b32 {sr(sNx)}, {sr(sV)}")
    g(f"s_mov_b32 {sr(sNx+1)}, {sr(sV+1)}")
    g(f"s_mov_b32 {sr(sNOff)}, {sr(sBase)}")
    g(f"v_mov_b32 {vr(vNx)}, {vr(vVA)}")
    g("s_barrier")
    g("s_branch L_lastkb")
    ctl_blocks("k")
    ctl_blocks("v")
    g.label("L_epi")
    tlog()
    if cfg.tlog:
        g(f"s_lshl_b32 s89, {sr(sWave)}, 9")
        g(f"s_add_u32 s89, s89, {TLDS}")
        g(f"v_lshlrev_b32 {vr(TMP)}, 3, {vr(vLane)}")
        g(f"v_add_u32 {vr(TMP+1)}, s89, {vr(TMP)}")
        g(f"ds_read_b64 {vr(TMP+2,2)}, {vr(TMP+1)}")
        g(f"s_mul_i32 s89, s2, {WPW}")
        g(f"s_add_u32 s89, s89, {sr(sWave)}")
        g("s_lshl_b32 s89, s89, 9")
        g("s_add_u32 s89, s89, 0x1400000")
        g("s_waitcnt lgkmcnt(0)")
        g(f"buffer_store_dwordx2 {vr(TMP+2,2)}, {vr(TMP)}, {sr(sWS,4)}, s89 offen")
    e0, e1, e2, e3 = Q, Q+1, Q+2, Q+3
    g(f"v_add_f32_dpp {vr(vL)}, {vr(vL)}, {vr(vL)} quad_perm:[2,3,0,1]{dpp}")
    g(f"s_lshl_b32 {sr(sTmp)}, {sr(sWave)}, 11")
    g(f"s_add_u32 {sr(sTmp)}, {sr(sTmp)}, {CLDS}")
    g(f"v_and_b32 {vr(e0)}, 3, {vr(vLane)}")
    g(f"v_lshlrev_b32 {vr(e0)}, 9, {vr(e0)}")
    g(f"v_bfe_u32 {vr(e1)}, {vr(vLane)}, 2, 1")
    g(f"v_lshl_add_u32 {vr(e0)}, {vr(e1)}, 7, {vr(e0)}")
    g(f"v_bfe_u32 {vr(e1)}, {vr(vLane)}, 4, 1")
    g(f"v_lshl_add_u32 {vr(e0)}, {vr(e1)}, 6, {vr(e0)}")
    g(f"v_add_u32 {vr(e0)}, {sr(sTmp)}, {vr(e0)}")
    xreduce("v_add_f32", vL, vT1)
    g(f"s_lshl_b32 {sr(sTmp)}, {sr(sWave)}, 4")
    g(f"s_add_u32 {sr(sTmp)}, {sr(sTmp)}, {MLDS}")
    g(f"v_lshlrev_b32 {vr(e2)}, 3, {vr(vLane)}")
    g(f"v_add_u32 {vr(e2)}, {sr(sTmp)}, {vr(e2)}")
    g(f"s_mov_b64 exec, {sr(sEp,2)}")
    ET = 20
    for m in range(2):
        for r in range(4):
            T = ET + 4*(m*4+r)
            for c in range(4):
                g(f"v_sub_f32 {vr(T+c)}, {vr(O+(m*4+c)*4+r)}, {vr(CORR)}")
            g(f"ds_write_b128 {vr(e0)}, {vr(T,4)} offset:{m*256+r*16}")
    g("s_mov_b64 exec, 3")
    g(f"ds_write_b64 {vr(e2)}, {vr(vM,2)}")
    g("s_mov_b64 exec, -1")
    def stamp(slot):
        g("s_memrealtime s[86:87]")
        g(f"s_mul_i32 s89, s2, {WPW}")
        g(f"s_add_u32 s89, s89, {sr(sWave)}")
        g("s_lshl_b32 s89, s89, 4")
        g(f"s_add_u32 s89, s89, 0x{0x1000000 + slot*0x100000:x}")
        g("s_waitcnt lgkmcnt(0)")
        g(f"v_mov_b32 {vr(TMP)}, s84"); g(f"v_mov_b32 {vr(TMP+1)}, s86"); g(f"v_mov_b32 {vr(TMP+2)}, s88"); g(f"v_mov_b32 {vr(TMP+3)}, s94")
        g("s_mov_b64 s[90:91], exec")
        g("s_mov_b64 exec, 1")
        g(f"buffer_store_dwordx4 {vr(TMP,4)}, off, {sr(sWS,4)}, s89")
        g("s_mov_b64 exec, s[90:91]")
    if cfg.stamp: stamp(0)
    g("s_waitcnt lgkmcnt(0)")
    g("s_barrier")
    g(f"s_cmp_lg_u32 {sr(sWave)}, 0")
    g("s_cbranch_scc1 L_end")
    g(f"v_lshrrev_b32 v10, 5, {vr(vLane)}")
    g(f"v_lshlrev_b32 v11, 4, {vr(vLane)}")
    g("v_lshlrev_b32 v12, 3, v10")
    ML = 28; OP = 48; OQ = 96
    def combine(n, ML, OP, M, L, R):
        g(f"v_mov_b32 {vr(M)}, {vr(ML)}")
        for w in range(1, n):
            g(f"v_max_f32 {vr(M)}, {vr(M)}, {vr(ML+2*w)}")
        for w in range(n):
            g(f"v_sub_f32 {vr(ML+2*w)}, {vr(ML+2*w)}, {vr(M)}")
        for w in range(n):
            g(f"v_exp_f32 {vr(ML+2*w)}, {vr(ML+2*w)}")
        g("s_nop 0")
        g(f"v_mul_f32 {vr(L)}, {vr(ML)}, {vr(ML+1)}")
        for c in range(4):
            g(f"v_mul_f32 {vr(R+c)}, {vr(ML)}, {vr(OP+c)}")
        for w in range(1, n):
            g(f"v_fmac_f32 {vr(L)}, {vr(ML+2*w)}, {vr(ML+2*w+1)}")
            for c in range(4):
                g(f"v_fmac_f32 {vr(R+c)}, {vr(ML+2*w)}, {vr(OP+4*w+c)}")
    for w in range(WPW):
        g(f"ds_read_b64 {vr(ML+2*w,2)}, v12 offset:{MLDS+w*16}")
    for w in range(WPW):
        g(f"ds_read_b128 {vr(OP+4*w,4)}, v11 offset:{CLDS+w*2048}")
        g(f"ds_read_b128 {vr(OQ+4*w,4)}, v11 offset:{CLDS+w*2048+1024}")
    sOff0, sOff1 = sCur, sNOff
    g(f"s_lshl_b32 {sr(sOff0)}, s2, 10")
    g(f"s_lshl_b32 {sr(sOff1)}, s2, 4")
    g(f"s_add_u32 {sr(sOff1)}, {sr(sOff1)}, 0x{MLBASE:x}")
    g("s_waitcnt lgkmcnt(0)")
    for r in range(16):
        g(f"v_add_f32 {vr(OP+r)}, {vr(OP+r)}, {vr(OQ+r)}")
    combine(WPW, ML, OP, 20, 21, 24)
    g(f"buffer_store_dwordx4 v[24:27], v11, {sr(sWS,4)}, {sr(sOff0)} offen sc1")
    g(f"v_and_b32 v16, 31, {vr(vLane)}")
    g("v_cmp_eq_u32 vcc, 0, v16")
    g(f"s_and_saveexec_b64 {sr(sExec,2)}, vcc")
    g(f"buffer_store_dwordx2 v[20:21], v12, {sr(sWS,4)}, {sr(sOff1)} offen sc1")
    g("s_mov_b64 exec, 1")
    g("v_mov_b32 v16, 1")
    g(f"s_lshl_b32 {sr(sTmp)}, {sr(sBH)}, 2")
    g("s_waitcnt vmcnt(0)")
    g(f"buffer_atomic_add v16, off, {sr(sDBG,4)}, {sr(sTmp)} sc0")
    g("s_waitcnt vmcnt(0)")
    g(f"v_readfirstlane_b32 {sr(sTmp)}, v16")
    g("s_mov_b64 exec, -1")
    g(f"s_cmp_lg_u32 {sr(sTmp)}, {NP-1}")
    g("s_cbranch_scc1 L_end")
    g(f"s_lshl_b32 {sr(sOff0)}, {sr(sBH)}, 13")
    g(f"s_lshl_b32 {sr(sOff1)}, {sr(sBH)}, 7")
    g(f"s_add_u32 {sr(sOff1)}, {sr(sOff1)}, 0x{MLBASE:x}")
    ML2 = 64; OP2 = 64 + 2*NP
    for p in range(NP):
        g(f"buffer_load_dwordx2 {vr(ML2+2*p,2)}, v12, {sr(sWS,4)}, {sr(sOff1)} offen offset:{16*p} sc1")
    for p in range(NP):
        if p and p % 4 == 0:
            g(f"s_add_u32 {sr(sOff0)}, {sr(sOff0)}, 4096")
        g(f"buffer_load_dwordx4 {vr(OP2+4*p,4)}, v11, {sr(sWS,4)}, {sr(sOff0)} offen offset:{1024*(p%4)} sc1")
    g("s_waitcnt vmcnt(0)")
    combine(NP, ML2, OP2, 20, 21, 24)
    g("v_rcp_f32 v21, v21")
    g(f"s_lshl_b32 {sr(sTmp)}, {sr(sBH)}, 9")
    for c in range(4):
        g(f"v_mul_f32 v{24+c}, v{24+c}, v21")
    g("v_cvt_pk_bf16_f32 v24, v24, v25")
    g("v_cvt_pk_bf16_f32 v25, v26, v27")
    g(f"v_lshlrev_b32 v11, 3, {vr(vLane)}")
    g(f"buffer_store_dwordx2 v[24:25], v11, {sr(sOUT,4)}, {sr(sTmp)} offen")
    if cfg.stamp:
        g("s_waitcnt vmcnt(0)")
        stamp(1)
    g.label("L_end")
    g("s_endpgm")
    main = g.text()

    lds = TLDS + (2048 if cfg.tlog else 0)
    out = HEADER
    out += f"; @launch grid=({NWG},1,1) block=({WPW*64},1,1) lds={max(lds, cfg.lds)}\n"
    out += '.amdgcn_target "amdgcn-amd-amdhsa--gfx950"\n.text\n'
    out += f".globl {NAME}_kernel\n.p2align 8\n.type {NAME}_kernel,@function\n" + main
    out += '.section .rodata,"a"\n'
    out += (f".p2align 6\n.amdhsa_kernel {NAME}_kernel\n  .amdhsa_next_free_vgpr {NV}\n  .amdhsa_next_free_sgpr {NS}\n"
            f"  .amdhsa_accum_offset {NV}\n  .amdhsa_group_segment_fixed_size 0\n  .amdhsa_kernarg_size 80\n"
            "  .amdhsa_user_sgpr_count 2\n  .amdhsa_user_sgpr_kernarg_segment_ptr 1\n"
            "  .amdhsa_system_sgpr_workgroup_id_x 1\n.end_amdhsa_kernel\n")
    return out

if __name__ == "__main__":
    ap = argparse.ArgumentParser()
    ap.add_argument("-o", default="/dev/stdout")
    ap.add_argument("--stamp", type=int, default=0)
    ap.add_argument("--tlog", type=int, default=0)
    ap.add_argument("--d", type=int, default=5)
    ap.add_argument("--db", type=int, default=7)
    ap.add_argument("--first", type=int, default=2)
    ap.add_argument("--nv", type=int, default=256)
    ap.add_argument("--lds", type=int, default=0)
    ap.add_argument("--arr", type=int, default=3)
    ap.add_argument("--ctlpos", type=int, default=10)
    ap.add_argument("--bpos", type=int, default=14)
    ap.add_argument("--rpos", type=int, default=12)
    ap.add_argument("--gs", type=int, default=32)
    ap.add_argument("--cks", default="46,53,58")
    ap.add_argument("--thr", default="18,18,23,26,28,30,31")
    cfg = ap.parse_args()
    open(cfg.o, "w").write(build(cfg))
```

```python
import sys, argparse, math, struct
from gen import Gen, vr, sr, HEADER, NAME, f32bits

def build(cfg):
    WPW = 4; NWG = 256; NP = 8
    MLBASE = 32 * NP * 1024
    I = cfg.si; LI = int(math.log2(I)); RD = cfg.rd
    syncs = list(range(cfg.s0, 64 - RD, I))
    wmask = sum(1 << c for c in syncs); rmask = sum(1 << (c + RD) for c in syncs)
    assert len(syncs) <= 32 and (wmask & rmask) == 0 and 1 << LI == I
    SU = [1, 3, 5, 7, 29] + ([13, cfg.tlbs] if cfg.tlb else [])
    omask = sum(1 << c for c in SU) | (1 << cfg.fslot)
    assert all(c % 2 == 0 for c in syncs) and RD % 2 == 0 and cfg.fslot % 2 == 1 and cfg.fslot > 32
    CBASE = 0x50000; CSTR = 4352
    ABASE = CBASE + 32 * CSTR
    WSBYTES = ABASE + 32 * CSTR
    D, LA = cfg.d, 8
    assert D + cfg.tiers <= LA
    nt = " nt"
    g = Gen()
    vB, vKC, vVA, vNx, vZero, vS, vLds, vLane, vM, vL, vT1, vBias = range(12)
    vSelS, vSelZ, vMa, vMb = 12, 13, 14, 15
    Q = 16
    NB = 32
    TK = 36
    TV = 36
    DK = 52
    X = 68
    VS = 72; VZ = 76; U = 80; P = 84; ZA = 86; WP = 88
    vA, vOne, vO16, vO8 = 92, 93, 94, 95
    O = 96
    CORR = 128
    RAW = 132
    SM = 196
    TMP = 244
    PT = 204
    NV = 256
    sK, sV, sVS, sVZ, sQ, sKS, sKZ, sWS, sDBG, sOUT, sNx = 24, 28, 32, 36, 40, 44, 48, 52, 72, 76, 96
    sWave, sUnit, sCur, sNOff, sDelta, sN, sTmp, sTmp2, sBH, sBase = 56, 57, 58, 59, 60, 61, 62, 63, 64, 65
    sJ4 = 66; sHi = 68; sC = 69; sExec = 70; sHd = 80; sEp = 82; sCk = 92
    sL, sPend, sSlot, sWOff, sROff = 4, 5, 13, 100, 101
    sTgt, sA, sRate, sPm, sPrev, sOk, sEn, sCr, sFlag = 12, 11, 10, 14, 3, 28, 29, 30, 31
    sOwn0, sOwn1 = 16, 17
    sT, sSy, sSw, sCkW = 40, 42, 44, 46
    NS = 102
    LV = 32768
    CLDS = 49152
    MLDS = CLDS + 8192
    BLDS = MLDS + WPW * 16
    TLDS = BLDS + 16
    dpp = " row_mask:0xf bank_mask:0xf"

    g.label(f"{NAME}_kernel")
    g(f"s_cmp_ge_u32 s2, {NWG}")
    g("s_cbranch_scc1 L_end")
    g("s_load_dwordx4 s[4:7], s[0:1], 0")
    g("s_load_dwordx4 s[8:11], s[0:1], 16")
    g("s_load_dwordx8 s[12:19], s[0:1], 32")
    g("s_load_dwordx4 s[20:23], s[0:1], 64")
    if cfg.stamp:
        g("s_memrealtime s[84:85]")
        g("s_getreg_b32 s88, hwreg(HW_REG_XCC_ID)")
    w_, j_, g_, a_, b_, g1, g2, hd, pr, t0, t1, oS, l8, qa = range(PT, PT + 14)
    g(f"v_and_b32 {vr(vLane)}, 63, v0")
    g(f"v_lshrrev_b32 {vr(w_)}, 6, v0")
    g(f"v_and_b32 {vr(j_)}, 15, {vr(vLane)}")
    g(f"v_lshrrev_b32 {vr(g_)}, 4, {vr(vLane)}")
    g(f"v_readfirstlane_b32 {sr(sWave)}, {vr(w_)}")
    g(f"v_lshrrev_b32 {vr(a_)}, 2, {vr(j_)}")
    g(f"v_and_b32 {vr(b_)}, 3, {vr(j_)}")
    g(f"v_and_b32 {vr(g1)}, 1, {vr(g_)}")
    g(f"v_lshrrev_b32 {vr(g2)}, 1, {vr(g_)}")
    g(f"v_lshlrev_b32 {vr(t0)}, 15, {vr(a_)}")
    g(f"v_lshl_add_u32 {vr(t0)}, {vr(g2)}, 9, {vr(t0)}")
    g(f"v_lshl_add_u32 {vr(t0)}, {vr(g1)}, 6, {vr(t0)}")
    g(f"v_lshl_add_u32 {vr(vKC)}, {vr(b_)}, 4, {vr(t0)}")
    g(f"v_lshlrev_b32 {vr(l8)}, 3, {vr(vLane)}")
    g(f"v_and_b32 {vr(oS)}, 0xff, {vr(l8)}")
    g(f"v_lshlrev_b32 {vr(vO16)}, 4, {vr(vLane)}")
    g(f"s_lshr_b32 {sr(sUnit)}, s2, 2")
    g(f"s_lshr_b32 {sr(sBH)}, s2, 3")
    g(f"s_lshl_b32 {sr(sBase)}, s2, 9")
    g(f"s_add_u32 {sr(sBase)}, {sr(sBase)}, {sr(sWave)}")
    g(f"s_lshl_b32 {sr(sBase)}, {sr(sBase)}, 12")
    g(f"s_lshl_b32 {sr(sTmp)}, {sr(sBH)}, 9")
    g(f"s_lshl_b32 {sr(sTmp2)}, {sr(sUnit)}, 8")
    for d in (sK, sQ, sKS, sKZ, sVS, sVZ, sWS):
        g(f"s_mov_b32 {sr(d+3)}, 0x00020000")
    g(f"s_mov_b32 {sr(sK+2)}, 0x20000000")
    for d in (sQ, sKS, sKZ): g(f"s_mov_b32 {sr(d+2)}, 0x4000")
    for d in (sVS, sVZ): g(f"s_mov_b32 {sr(d+2)}, 0x200000")
    g(f"s_mov_b32 {sr(sWS+2)}, 0x{WSBYTES if not cfg.stamp else 0x2000000:x}")
    g(f"s_lshl_b32 {sr(sN)}, s2, 13")
    g(f"s_lshl_b32 {sr(sDelta)}, {sr(sWave)}, 11")
    g(f"s_add_u32 {sr(sN)}, {sr(sN)}, {sr(sDelta)}")
    g(f"s_add_u32 m0, {sr(sDelta)}, {LV}")
    if cfg.tlog:
        g(f"s_lshl_b32 s89, {sr(sWave)}, 9")
        g(f"s_add_u32 s89, s89, {TLDS}")
    g("s_waitcnt lgkmcnt(0)")
    def pst():
        if not cfg.pst: return
        g("s_memrealtime s[90:91]")
        g("s_waitcnt lgkmcnt(0)")
        g("s_lshl_b32 s90, s90, 7")
        g(f"v_mov_b32 {vr(TMP+2)}, s90")
        g(f"v_mov_b32 {vr(TMP+3)}, s89")
        g(f"ds_write_b32 {vr(TMP+3)}, {vr(TMP+2)}")
        g("s_add_u32 s89, s89, 4")
    pst()
    def srdp(d, p):
        g(f"s_mov_b32 {sr(d)}, {sr(p)}")
        g(f"s_and_b32 {sr(d+1)}, {sr(p+1)}, 0xffff")
    def srd(d, p, nbytes):
        srdp(d, p)
        g(f"s_mov_b32 {sr(d+2)}, 0x{nbytes:x}")
        g(f"s_mov_b32 {sr(d+3)}, 0x00020000")
    def big(n, va, sd, so):
        s_, u = n >> 2, n & 3
        g(f"buffer_load_dwordx4 {vr(RAW+4*n,4)}, {vr(va)}, {sr(sd,4)}, {sr(so)} offen offset:{u*1024+s_*128}{nt}")
    RQ, RKS, RZ = SM, SM + 2, SM + 4
    F = cfg.first
    srdp(sK, 6)
    for n in range(F):
        big(n, vKC, sK, sBase)
    pst()
    srdp(sQ, 4); srdp(sKS, 10); srdp(sKZ, 12)
    g(f"buffer_load_dwordx2 {vr(RQ,2)}, {vr(l8)}, {sr(sQ,4)}, {sr(sTmp)} offen{nt if cfg.dnt > 1 else ''}")
    g(f"buffer_load_dwordx2 {vr(RKS,2)}, {vr(oS)}, {sr(sKS,4)}, {sr(sTmp2)} offen{nt if cfg.dnt > 1 else ''}")
    g(f"buffer_load_dwordx2 {vr(RZ,2)}, {vr(oS)}, {sr(sKZ,4)}, {sr(sTmp2)} offen{nt if cfg.dnt > 1 else ''}")
    srdp(sVS, 14); srdp(sVZ, 16)
    for x in range(2):
        g(f"buffer_load_dwordx4 {vr(vO16)}, {sr(sVS,4)}, {sr(sN)} offen offset:{1024*x}{nt if cfg.dnt else ''} lds")
    g(f"s_add_u32 m0, {sr(sDelta)}, {LV+8192}")
    srdp(sWS, 22)
    for x in range(2):
        g(f"buffer_load_dwordx4 {vr(vO16)}, {sr(sVZ,4)}, {sr(sN)} offen offset:{1024*x}{nt if cfg.dnt else ''} lds")
    pst()
    srd(sNx, 6, 0x20000000)
    g(f"s_mov_b32 {sr(sHi)}, 0xffff0000")
    g(f"s_mov_b32 {sr(sC)}, 0x{f32bits((128.0 ** -0.5) * math.log2(math.e)):08x}")
    g(f"v_and_b32 {vr(hd)}, 1, {vr(j_)}")
    g(f"v_bfe_u32 {vr(pr)}, {vr(j_)}, 1, 1")
    g(f"v_mov_b32 {vr(vNx)}, {vr(vKC)}")
    g(f"v_lshl_add_u32 {vr(t0)}, {vr(g_)}, 2, {vr(b_)}")
    g(f"v_lshlrev_b32 {vr(t0)}, 4, {vr(t0)}")
    g(f"v_lshl_add_u32 {vr(vLds)}, {vr(w_)}, 13, {vr(t0)}")
    g(f"v_xor_b32 {vr(t0)}, {vr(pr)}, {vr(g2)}")
    g(f"v_lshl_add_u32 {vr(qa)}, {vr(g1)}, 2, {vr(a_)}")
    g(f"v_lshl_add_u32 {vr(qa)}, {vr(hd)}, 5, {vr(qa)}")
    g(f"v_lshl_add_u32 {vr(qa)}, {vr(t0)}, 6, {vr(qa)}")
    g(f"v_lshl_add_u32 {vr(qa)}, {vr(w_)}, 7, {vr(qa)}")
    g(f"v_lshlrev_b32 {vr(qa)}, 4, {vr(qa)}")
    g(f"v_add_u32 {vr(qa)}, {CLDS}, {vr(qa)}")
    g(f"v_lshl_add_u32 {vr(l8)}, {vr(w_)}, 11, {vr(vO16)}")
    for r in range(4): g(f"v_mov_b32 {vr(CORR+r)}, 0")
    g(f"v_cmp_gt_u32 {sr(sJ4,2)}, 4, {vr(j_)}")
    g(f"v_cmp_ne_u32 {sr(sHd,2)}, 0, {vr(hd)}")
    g(f"ds_write_b128 {vr(l8)}, {vr(CORR,4)} offset:{CLDS+1024}")
    g(f"v_mov_b32 {vr(vZero)}, 0")
    g(f"ds_write_b32 {vr(CORR)}, {vr(CORR)} offset:{BLDS}")
    g(f"v_mov_b32 {vr(vM)}, 0xff7fffff")
    g(f"s_mov_b32 {sr(sWOff)}, 0x{CBASE:x}")
    g(f"s_mov_b32 {sr(sROff)}, 0x{CBASE:x}")
    def setup(k):
        if k == 0:
            g(f"v_lshrrev_b32 {vr(t0)}, 3, {vr(j_)}")
            g(f"v_mul_u32_u24 {vr(t0)}, 0x0202, {vr(t0)}")
            g(f"v_lshl_add_u32 {vr(t0)}, {vr(t0)}, 16, {vr(t0)}")
            g(f"v_add_u32 {vr(vSelZ)}, 0x05040100, {vr(t0)}")
            g(f"v_mul_u32_u24 {vr(t0)}, 0x0202, {vr(pr)}")
            g(f"v_lshlrev_b32 {vr(t0)}, 16, {vr(t0)}")
            g(f"v_add_u32 {vr(vSelS)}, 0x01000c0c, {vr(t0)}")
            g(f"v_bfe_u32 {vr(t0)}, {vr(j_)}, 2, 1")
            g(f"v_sub_u32 {vr(vMb)}, 0, {vr(t0)}")
            g(f"v_not_b32 {vr(vMa)}, {vr(vMb)}")
            g(f"v_lshlrev_b32 {vr(vS)}, 7, {vr(g_)}")
            g(f"v_lshl_add_u32 {vr(vS)}, {vr(w_)}, 4, {vr(vS)}")
            g(f"v_add_u32 {vr(vS)}, {LV}, {vr(vS)}")
            g(f"v_cmp_eq_u32 {sr(sEp,2)}, {vr(pr)}, {vr(g2)}")
            g(f"v_cmp_gt_u32 vcc, 8, {vr(j_)}")
            g(f"v_mov_b32 {vr(vL)}, 0")
            g(f"s_and_b64 {sr(sEp,2)}, {sr(sEp,2)}, vcc")
            if cfg.wsc:
                g(f"s_and_b32 {sr(sTmp)}, s2, {NP-1}")
                g(f"s_or_b32 {sr(sTmp)}, {sr(sTmp)}, {sr(sWave)}")
                g(f"s_cmp_lg_u32 {sr(sTmp)}, 0")
                g("s_cbranch_scc1 L_nckk")
                g(f"s_mul_i32 {sr(sTmp)}, {sr(sBH)}, {CSTR}")
                g(f"s_add_u32 {sr(sTmp)}, {sr(sTmp)}, 0x{ABASE:x}")
                g("s_mov_b64 exec, 1")
                g(f"buffer_store_dword {vr(CORR)}, off, {sr(sWS,4)}, {sr(sTmp)} sc1")
                g("s_mov_b64 exec, -1")
        elif k in (1, 2):
            if k == 1:
                g(f"v_mov_b32 {vr(vA)}, 1")
                g("s_mov_b64 exec, 1")
                g(f"ds_add_u32 {vr(vZero)}, {vr(vA)} offset:{BLDS}")
                g("s_mov_b64 exec, -1")
            for r in range(16): g(f"v_mov_b32 {vr(O+16*(k-1)+r)}, 0")
        elif k == 5 and cfg.tlb:
            g(f"s_add_u32 {sr(sTmp)}, {sr(sBase)}, 0x1fc000")
            g(f"s_load_dword {sr(sFlag)}, s[6:7], {sr(sTmp)}")
        elif k == 6 and cfg.tlb:
            g(f"s_add_u32 {sr(sTmp)}, {sr(sBase)}, 0x1fc000")
            g(f"s_load_dword {sr(sFlag)}, s[8:9], {sr(sBase)}")
            g(f"s_load_dword {sr(sPm)}, s[8:9], {sr(sTmp)}")
        elif k == 4:
            g(f"ds_read_b32 {vr(vA)}, {vr(vZero)} offset:{BLDS}")
        elif k == 3 and cfg.wsc:
            g(f"s_and_b32 {sr(sTmp)}, s2, {NP-1}")
            g(f"s_or_b32 {sr(sTmp)}, {sr(sTmp)}, {sr(sWave)}")
            g(f"s_cmp_lg_u32 {sr(sTmp)}, 0")
            g("s_cbranch_scc1 L_nckk")
            srd(sDBG, 20, 256)
            g(f"s_lshl_b32 {sr(sTmp)}, {sr(sBH)}, 2")
            g(f"v_mov_b32 {vr(TMP)}, 1")
            g("s_mov_b64 exec, 1")
            g(f"buffer_store_dword {vr(TMP)}, off, {sr(sDBG,4)}, {sr(sTmp)} sc1")
            g("s_mov_b64 exec, -1")
    g(f"s_or_b32 {sr(sTmp)}, s2, {sr(sWave)}")
    g(f"s_cmp_eq_u32 {sr(sTmp)}, 0")
    g("s_cbranch_scc1 L_init")
    g.label("L_noinit")
    g(f"s_mov_b32 {sr(sCur)}, {sr(sBase)}")
    g(f"s_mov_b32 {sr(sDelta)}, 0x4000")
    g(f"s_mov_b32 {sr(sPend)}, 0")
    g(f"s_mov_b32 {sr(sSlot)}, 0")
    for r in (sTgt, sRate, sPrev): g(f"s_mov_b32 {sr(r)}, 0")
    for r in (sOk, sCr, sT): g(f"s_mov_b64 {sr(r,2)}, 0")
    g(f"s_and_b32 {sr(sTmp)}, s2, 0x38")
    g(f"s_lshr_b32 {sr(sTmp2)}, s2, 6")
    g(f"s_xor_b32 {sr(sTmp2)}, {sr(sTmp2)}, {sr(sWave)}")
    g(f"s_or_b32 {sr(sTmp)}, {sr(sTmp)}, {sr(sTmp2)}")
    g(f"s_cmp_eq_u32 {sr(sTmp)}, 0")
    g(f"s_cselect_b32 {sr(sCkW)}, 0x{wmask & 0xffffffff:x}, 0")
    g(f"s_cselect_b32 {sr(sCkW+1)}, 0x{wmask >> 32:x}, 0")
    g(f"s_or_b32 {sr(sCk)}, {sr(sCkW)}, 0x{(rmask | omask) & 0xffffffff:x}")
    g(f"s_or_b32 {sr(sCk+1)}, {sr(sCkW+1)}, 0x{(rmask | omask) >> 32:x}")
    pst()

    def xreduce(op, v, t, both=True):
        g(f"v_mov_b32 {vr(t)}, {vr(v)}")
        g("s_nop 1")
        g(f"v_permlane16_swap_b32 {vr(v)}, {vr(t)}")
        g("s_nop 1")
        g(f"{op} {vr(v)}, {vr(v)}, {vr(t)}")
        if not both: return
        g(f"v_mov_b32 {vr(t)}, {vr(v)}")
        g("s_nop 1")
        g(f"v_permlane32_swap_b32 {vr(v)}, {vr(t)}")
        g("s_nop 1")
        g(f"{op} {vr(v)}, {vr(v)}, {vr(t)}")
    def prep(part):
        a0, a1, b0, b1, z0, z1, h0, h1 = range(VS, VS + 8)
        HL = U
        for y in range(2 if part == 0 else 0):
            g(f"v_lshlrev_b32 v{a0}, 16, {vr(RQ+y)}")
            g(f"v_and_b32 v{a1}, {sr(sHi)}, {vr(RQ+y)}")
            g(f"v_lshlrev_b32 v{b0}, 16, {vr(RKS+y)}")
            g(f"v_and_b32 v{b1}, {sr(sHi)}, {vr(RKS+y)}")
            g(f"v_lshlrev_b32 v{z0}, 16, {vr(RZ+y)}")
            g(f"v_and_b32 v{z1}, {sr(sHi)}, {vr(RZ+y)}")
            g(f"v_mul_f32 v{a0}, v{a0}, v{b0}")
            g(f"v_mul_f32 v{a1}, v{a1}, v{b1}")
            g(f"v_mul_f32 v{a0}, {sr(sC)}, v{a0}")
            g(f"v_mul_f32 v{a1}, {sr(sC)}, v{a1}")
            g(f"v_cvt_pk_bf16_f32 {vr(HL+y)}, v{a0}, v{a1}")
            if y == 0: g(f"v_mul_f32 {vr(vBias)}, v{a0}, v{z0}")
            else: g(f"v_fmac_f32 {vr(vBias)}, v{a0}, v{z0}")
            g(f"v_fmac_f32 {vr(vBias)}, v{a1}, v{z1}")
            g(f"v_lshlrev_b32 v{h0}, 16, {vr(HL+y)}")
            g(f"v_and_b32 v{h1}, {sr(sHi)}, {vr(HL+y)}")
            g(f"v_sub_f32 v{a0}, v{a0}, v{h0}")
            g(f"v_sub_f32 v{a1}, v{a1}, v{h1}")
            g(f"v_cvt_pk_bf16_f32 {vr(HL+2+y)}, v{a0}, v{a1}")
        if part == 0:
            g(f"ds_write_b128 {vr(l8)}, {vr(HL,4)} offset:{CLDS}")
            return
        for m in range(2):
            g(f"ds_read2_b64 {vr(Q+8*m,4)}, {vr(qa)} offset0:{32*m} offset1:{32*m+16}")
            g(f"ds_read2_b64 {vr(Q+8*m+4,4)}, {vr(qa)} offset0:{32*m+1} offset1:{32*m+17}")
        for r in (1, 2, 4, 8):
            g(f"v_add_f32_dpp {vr(vBias)}, {vr(vBias)}, {vr(vBias)} row_ror:{r}{dpp}")
            g("s_nop 1")
        xreduce("v_add_f32", vBias, vT1, both=False)
        g(f"v_mul_f32 {vr(vBias)}, 0xbe800000, {vr(vBias)}")
        g("s_nop 0")
        g(f"v_readlane_b32 {sr(sTmp)}, {vr(vBias)}, 0")
        g(f"v_readlane_b32 {sr(sTmp2)}, {vr(vBias)}, 32")
        g("s_nop 1")
        g(f"v_mov_b32 {vr(NB)}, {sr(sTmp)}")
        g(f"v_mov_b32 {vr(vT1)}, {sr(sTmp2)}")
        g(f"v_cndmask_b32 {vr(NB)}, {vr(NB)}, {vr(vT1)}, {sr(sHd,2)}")
        for r in range(1, 4):
            g(f"v_mov_b32 {vr(NB+r)}, {vr(NB)}")

    def tlog():
        if not cfg.tlog: return
        g("s_memrealtime s[90:91]")
        g("s_waitcnt lgkmcnt(0)")
        g("s_lshl_b32 s90, s90, 7")
        g(f"s_add_u32 s91, {sr(sL)}, 32")
        g("s_and_b32 s91, s91, 127")
        g("s_or_b32 s90, s90, s91")
        g(f"v_mov_b32 {vr(TMP)}, s90")
        g(f"v_mov_b32 {vr(TMP+1)}, s89")
        g(f"ds_write_b32 {vr(TMP+1)}, {vr(TMP)}")
        g("s_add_u32 s89, s89, 4")
    def br4(n): return int(f"{n:04b}"[::-1], 2)
    def issue(ph, n, va, sd):
        for t in range(cfg.tiers, 0, -1):
            g(f"s_cmp_gt_i32 {sr(sL)}, {br4(n) + 16*(t-1)}")
            g(f"s_cbranch_scc1 L_{ph}w{n}_{t}")
        if cfg.slow and br4(n) < cfg.slow:
            g(f"s_cmp_lt_i32 {sr(sL)}, {-br4(n)}")
            g(f"s_cbranch_scc0 L_{ph}w{n}_0")
            g(f"s_waitcnt vmcnt({D-2})")
        for t in range(cfg.tiers + 1):
            g.label(f"L_{ph}w{n}_{t}")
            g(f"s_waitcnt vmcnt({D-1+t})")
        if n < 16 - LA: big(n + LA, va, sd, sCur)
        else: big(n + LA - 16, vNx, sNx, sNOff)
    def top(ph):
        g("s_waitcnt lgkmcnt(0)")
        g(f"s_lshl_b32 {sr(sA)}, {sr(sT)}, 5")
        g(f"s_sub_u32 {sr(sA)}, {sr(sA)}, {sr(sTgt)}")
        g(f"s_add_u32 {sr(sTgt)}, {sr(sTgt)}, {sr(sRate)}")
        g(f"s_and_b32 {sr(sA)}, {sr(sA)}, {sr(sEn)}")
        g(f"s_mov_b32 {sr(sL)}, {cfg.base}")
        for e in cfg.law.split(","):
            th, lv = [int(x) for x in e.split(":")]
            g(f"s_cmp_{'gt' if th > 0 else 'lt'}_i32 {sr(sA)}, {th * 32}")
            g(f"s_cselect_b32 {sr(sL)}, {lv}, {sr(sL)}")
        if cfg.cap:
            cc, cm = [int(x) for x in cfg.cap.split(":")]
            g(f"s_add_u32 {sr(sCr)}, {sr(sCr)}, 1")
            g(f"s_min_u32 {sr(sCr)}, {sr(sCr)}, {cm}")
            g(f"s_cmp_ge_u32 {sr(sCr)}, {cc}")
            g(f"s_cselect_b32 {sr(sTmp2)}, 64, 0")
            g(f"s_min_i32 {sr(sL)}, {sr(sL)}, {sr(sTmp2)}")
            g(f"s_cmp_gt_i32 {sr(sL)}, 0")
            g(f"s_cselect_b32 {sr(sTmp2)}, {cc}, 0")
            g(f"s_sub_u32 {sr(sCr)}, {sr(sCr)}, {sr(sTmp2)}")
        if cfg.law2:
            for e in cfg.law2.split(","):
                th, lv = [int(x) for x in e.split(":")]
                g(f"s_cmp_gt_i32 {sr(sA)}, {th * 32}")
                g(f"s_cselect_b32 {sr(sL)}, {lv}, {sr(sL)}")
        if cfg.diag and ph == cfg.diag[0]:
            g(f"s_bitcmp{cfg.diag[1]}_b32 s2, 7")
            g(f"s_cselect_b32 {sr(sL)}, -4, {sr(sL)}")
        if ph == "v" and cfg.eb:
            for e in cfg.eb.split(","):
                sl, am = e.split(":")
                g(f"s_cmp_ge_u32 {sr(sSlot)}, {sl}")
                g(f"s_cselect_b32 {sr(sA)}, {am}, 0")
                g(f"s_add_u32 {sr(sL)}, {sr(sL)}, {sr(sA)}")
        tlog()
    def ctl_hooks(ph, n):
        if n == 0:
            g(f"s_bitcmp1_b64 {sr(sCk,2)}, {sr(sSlot)}")
            g(f"s_cbranch_scc1 L_ck{ph}")
            g.label(f"L_nck{ph}")
            g(f"s_add_u32 {sr(sSlot)}, {sr(sSlot)}, 1")
        if n == cfg.ctlpos:
            g(f"s_cmp_lg_u32 {sr(sPend)}, 0")
            g(f"s_cbranch_scc1 L_ctl{ph}")
            g.label(f"L_cb{ph}")
        if n == cfg.tpos:
            g(f"s_memrealtime {sr(sT,2)}")
    def ctl_blocks(ph):
        g.label(f"L_ck{ph}")
        g(f"s_bitcmp1_b32 {sr(sSlot)}, 0")
        g(f"s_cbranch_scc1 L_odd{ph}")
        g(f"s_bitcmp1_b64 {sr(sCkW,2)}, {sr(sSlot)}")
        g(f"s_cbranch_scc1 L_pub{ph}")
        g(f"s_load_dwordx2 {sr(sSy,2)}, s[22:23], {sr(sROff)}{' glc' if cfg.rglc else ''}")
        g(f"s_mov_b32 {sr(sPend)}, 1")
        g(f"s_add_u32 {sr(sROff)}, {sr(sROff)}, {CSTR}")
        g(f"s_branch L_nck{ph}")
        g.label(f"L_pub{ph}")
        g(f"s_mov_b32 {sr(sSw)}, 1")
        g(f"s_mov_b32 {sr(sSw+1)}, {sr(sT)}")
        g(f"s_atomic_add_x2 {sr(sSw,2)}, s[22:23], {sr(sWOff)}")
        g(f"s_add_u32 {sr(sWOff)}, {sr(sWOff)}, {CSTR}")
        g(f"s_branch L_nck{ph}")
        g.label(f"L_odd{ph}")
        if ph == "k":
            for k in range(1, len(SU)):
                g(f"s_cmp_eq_u32 {sr(sSlot)}, {SU[k]}")
                g(f"s_cbranch_scc1 L_su{k}")
            for k in range(len(SU)):
                g.label(f"L_su{k}")
                setup(k)
                g(f"s_branch L_nck{ph}")
        else:
            g(f"s_lshl_b32 {sr(sTmp)}, {sr(sBH)}, 2")
            g(f"s_load_dword {sr(sFlag)}, s[20:21], {sr(sTmp)}")
            g(f"s_branch L_nck{ph}")
        g.label(f"L_ctl{ph}")
        g(f"s_mov_b32 {sr(sPend)}, 0")
        g(f"s_lshl_b32 {sr(sTmp)}, {sr(sT)}, 5")
        g(f"s_mov_b32 {sr(sTmp2)}, {sr(sOk)}")
        g("s_waitcnt lgkmcnt(0)")
        g(f"s_sub_u32 {sr(sTmp)}, {sr(sTmp)}, {sr(sSy+1)}")
        g(f"s_cmp_lt_u32 {sr(sTmp)}, {32 * 2000}")
        g(f"s_cselect_b32 {sr(sOk)}, {sr(sSy)}, 0")
        g(f"s_cmp_eq_u32 {sr(sOk)}, 32")
        g(f"s_cselect_b32 {sr(sOk)}, 1, 0")
        g(f"s_sub_u32 {sr(sTmp)}, {sr(sSy+1)}, {sr(sPrev)}")
        g(f"s_mov_b32 {sr(sPrev)}, {sr(sSy+1)}")
        g(f"s_and_b32 {sr(sTmp2)}, {sr(sTmp2)}, {sr(sOk)}")
        g(f"s_cbranch_scc0 L_cb{ph}")
        g(f"s_lshr_b32 {sr(sRate)}, {sr(sTmp)}, {LI}")
        if cfg.radd: g(f"s_add_u32 {sr(sRate)}, {sr(sRate)}, {cfg.radd}")
        g(f"s_mul_i32 {sr(sTmp)}, {sr(sRate)}, {RD + 1}")
        g(f"s_add_u32 {sr(sTgt)}, {sr(sSy+1)}, {sr(sTmp)}")
        g(f"s_mov_b32 {sr(sEn)}, -1")
        g(f"s_branch L_cb{ph}")
    def cvt4(R):
        for i in range(4):
            g(f"v_cvt_f32_i32 {vr(R+i)}, {vr(R+i)}")
    def kmfma(n):
        s_, u = n >> 2, n & 3
        m = s_ >> 1
        Dd = DK + 4*u; T = TK + 4*u
        g(f"v_mfma_f32_16x16x32_bf16 {vr(Dd,4)}, {vr(T,4)}, {vr(Q+8*m,4)}, {vr(NB,4) if m == 0 else vr(Dd,4)}")
        g(f"v_mfma_f32_16x16x32_bf16 {vr(Dd,4)}, {vr(T,4)}, {vr(Q+8*m+4,4)}, {vr(Dd,4)}")
    def red(u, k):
        Dd = DK + 4*u
        g(f"v_add_f32_dpp {vr(X+u)}, {vr(Dd+1+k)}, {vr(Dd) if k == 0 else vr(X+u)} row_ror:{12-4*k}{dpp}")
    def kcvt(n):
        s_, u = n >> 2, n & 3
        R = RAW + 4*n
        cvt4(R)
        for y in range(2):
            g(f"v_cvt_pk_bf16_f32 {vr(TK+4*u+2*(s_&1)+y)}, {vr(R+2*y)}, {vr(R+2*y+1)}")
    assert 5 <= F <= 8
    g("s_waitcnt lgkmcnt(0)")
    g("s_barrier")
    for part in range(2):
        g(f"s_waitcnt vmcnt(4)")
        pst()
        for n in range(F, 8) if part == 0 and cfg.b2b else [F + part] if not cfg.b2b and F + part < 8 else []:
            big(n, vKC, sK, sBase)
        prep(part)
    assert cfg.b2b or F >= 6
    g(".p2align 6")
    g.label("L_kloop")
    g(f"s_add_u32 {sr(sNOff)}, {sr(sCur)}, {sr(sDelta)}")
    g(f"s_xor_b32 {sr(sDelta)}, {sr(sDelta)}, 0x18000")
    g(f"s_cmp_eq_u32 {sr(sSlot)}, 31")
    g("s_cbranch_scc1 L_lastk")
    g.label("L_lastkb")
    top("k")
    for n in range(16):
        issue("k", n, vKC, sK)
        if n > 0 and ((n-1) >> 2) & 1: kmfma(n-1)
        ctl_hooks("k", n)
        kcvt(n)
    Dd = DK + 12; T = TK + 12
    red(0, 0); red(1, 0)
    g(f"v_mfma_f32_16x16x32_bf16 {vr(Dd,4)}, {vr(T,4)}, {vr(Q+8,4)}, {vr(Dd,4)}")
    red(0, 1); red(1, 1)
    g(f"v_mfma_f32_16x16x32_bf16 {vr(Dd,4)}, {vr(T,4)}, {vr(Q+12,4)}, {vr(Dd,4)}")
    red(0, 2); red(1, 2); red(2, 0)
    g(f"s_mov_b32 {sr(sCur)}, {sr(sNOff)}")
    g(f"v_max3_f32 {vr(vM)}, {vr(vM)}, {vr(X)}, {vr(X+1)}")
    red(2, 1)
    g("s_nop 1")
    red(2, 2); red(3, 0)
    g("s_nop 1")
    red(3, 1)
    g("s_nop 1")
    red(3, 2)
    g(f"s_mov_b64 exec, {sr(sJ4,2)}")
    g(f"v_max3_f32 {vr(vM)}, {vr(vM)}, {vr(X+2)}, {vr(X+3)}")
    g(f"ds_write_b128 {vr(vLds)}, {vr(X,4)}")
    g("s_mov_b64 exec, -1")
    g(f"v_add_u32 {vr(vLds)}, 256, {vr(vLds)}")
    g(f"s_cmp_lt_u32 {sr(sSlot)}, 32")
    g("s_cbranch_scc1 L_kloop")
    if cfg.stamp:
        g("s_memrealtime s[94:95]")
    def readS():
        g(f"ds_read_b128 {vr(X,4)}, {vr(vLds)}")
        g(f"ds_read_b128 {vr(VS,4)}, {vr(vS)}")
        g(f"ds_read_b128 {vr(VZ,4)}, {vr(vS)} offset:8192")
    g(f"v_subrev_u32 {vr(vLds)}, 0x2000, {vr(vLds)}")
    readS()
    g(f"v_max_f32_dpp {vr(vM)}, {vr(vM)}, {vr(vM)} quad_perm:[2,3,0,1]{dpp}")
    xreduce("v_max_f32", vM, vT1)
    g(f"s_mov_b32 {sr(sDelta)}, 0x4000")
    g(f"v_readlane_b32 {sr(sTmp)}, {vr(vM)}, 0")
    g(f"v_readlane_b32 {sr(sTmp2)}, {vr(vM)}, 1")
    g(f"s_mov_b32 {sr(sN)}, 64")
    g("s_nop 0")
    g(f"v_mov_b32 {vr(vM)}, {sr(sTmp)}")
    g(f"v_mov_b32 {vr(vT1)}, {sr(sTmp2)}")
    g(f"v_cndmask_b32 {vr(vM)}, {vr(vM)}, {vr(vT1)}, {sr(sHd,2)}")
    def vmfma(m):
        for c in range(4):
            acc = O + (m*4+c)*4
            g(f"v_mfma_f32_16x16x32_bf16 {vr(acc,4)}, {vr(TV+4*c,4)}, {vr(WP,4)}, {vr(acc,4)}")
    def soft(n):
        if n == 0:
            for e in range(4): g(f"v_sub_f32 {vr(X+e)}, {vr(X+e)}, {vr(vM)}")
            for e in range(2): g(f"v_exp_f32 {vr(X+e)}, {vr(X+e)}")
        elif n == 1:
            for e in range(2, 4): g(f"v_exp_f32 {vr(X+e)}, {vr(X+e)}")
        elif n == 2:
            for e in range(4): g(f"v_perm_b32 {vr(U+e)}, {vr(VS+e)}, {vr(VS+e)}, {vr(vSelS)}")
            for e in range(4): g(f"v_mul_f32 {vr(U+e)}, {vr(X+e)}, {vr(U+e)}")
        elif n == 3:
            for y in range(2): g(f"v_cvt_pk_bf16_f32 {vr(P+y)}, {vr(U+2*y)}, {vr(U+2*y+1)}")
            for y in range(2): g(f"v_perm_b32 {vr(ZA+y)}, {vr(VZ+2*y+1)}, {vr(VZ+2*y)}, {vr(vSelZ)}")
        elif n == 4:
            for y in range(2): g(f"v_and_b32 {vr(WP+y)}, {vr(vMa)}, {vr(P+y)}")
            for y in range(2): g(f"v_and_b32 {vr(WP+2+y)}, {vr(vMb)}, {vr(P+y)}")
            g(f"v_mfma_f32_16x16x16_bf16 {vr(CORR,4)}, {vr(ZA,2)}, {vr(P,2)}, {vr(CORR,4)}")
        elif n == 5:
            g(f"v_add_f32 {vr(X)}, {vr(X)}, {vr(X+1)}")
            g(f"v_add_f32 {vr(X+2)}, {vr(X+2)}, {vr(X+3)}")
            g(f"v_add_f32 {vr(vL)}, {vr(vL)}, {vr(X)}")
            g(f"v_add_f32 {vr(vL)}, {vr(vL)}, {vr(X+2)}")
        elif n == 6:
            g(f"v_add_u32 {vr(vLds)}, 256, {vr(vLds)}")
            g(f"v_add_u32 {vr(vS)}, {sr(sN)}, {vr(vS)}")
            g(f"s_xor_b32 {sr(sN)}, {sr(sN)}, {64 ^ 448}")
        elif n == cfg.rpos:
            readS()
    g(".p2align 6")
    g.label("L_vloop")
    g(f"s_add_u32 {sr(sNOff)}, {sr(sCur)}, {sr(sDelta)}")
    g(f"s_xor_b32 {sr(sDelta)}, {sr(sDelta)}, 0x18000")
    g(f"s_cmp_lt_u32 {sr(sSlot)}, 63")
    g(f"s_cselect_b32 {sr(sNOff)}, {sr(sNOff)}, 0x20000000")
    top("v")
    for n in range(16):
        s_, u = n >> 2, n & 3
        issue("v", n, vNx, sNx)
        if n == 8: vmfma(0)
        ctl_hooks("v", n)
        R = RAW + 4*n
        cvt4(R)
        if u & 1:
            for c in range(4):
                g(f"v_cvt_pk_bf16_f32 {vr(TV+4*c+2*(s_&1)+(u>>1))}, {vr(R-4+c)}, {vr(R+c)}")
        soft(n)
    g(f"s_mov_b32 {sr(sCur)}, {sr(sNOff)}")
    g(f"s_cmp_lt_u32 {sr(sSlot)}, 64")
    vmfma(1)
    g("s_cbranch_scc1 L_vloop")
    ML2 = SM; OP2 = SM + 2*NP
    sOff0, sOff1 = sCur, sNOff
    def fetch():
        g(f"s_lshl_b32 {sr(sOff0)}, {sr(sBH)}, 13")
        g(f"s_lshl_b32 {sr(sOff1)}, {sr(sBH)}, 7")
        g(f"s_add_u32 {sr(sOff1)}, {sr(sOff1)}, 0x{MLBASE:x}")
        for p in range(NP):
            g(f"buffer_load_dwordx2 {vr(ML2+2*p,2)}, {vr(vO8)}, {sr(sWS,4)}, {sr(sOff1)} offen offset:{16*p} sc1")
        for p in range(NP):
            if p and p % 4 == 0:
                g(f"s_add_u32 {sr(sOff0)}, {sr(sOff0)}, 4096")
            g(f"buffer_load_dwordx4 {vr(OP2+4*p,4)}, {vr(vO16)}, {sr(sWS,4)}, {sr(sOff0)} offen offset:{1024*(p%4)} sc1")
    tlog()
    if cfg.tlog:
        g(f"s_lshl_b32 s89, {sr(sWave)}, 9")
        g(f"s_add_u32 s89, s89, {TLDS}")
        g(f"v_lshlrev_b32 {vr(TMP)}, 3, {vr(vLane)}")
        g(f"v_add_u32 {vr(TMP+1)}, s89, {vr(TMP)}")
        g(f"ds_read_b64 {vr(TMP+2,2)}, {vr(TMP+1)}")
        g(f"s_mul_i32 s89, s2, {WPW}")
        g(f"s_add_u32 s89, s89, {sr(sWave)}")
        g("s_lshl_b32 s89, s89, 9")
        g("s_add_u32 s89, s89, 0x1400000")
        g("s_waitcnt lgkmcnt(0)")
        g(f"buffer_store_dwordx2 {vr(TMP+2,2)}, {vr(TMP)}, {sr(sWS,4)}, s89 offen")
    e0, e1, e2, e3 = Q, Q+1, Q+2, Q+3
    g(f"v_add_f32_dpp {vr(vL)}, {vr(vL)}, {vr(vL)} quad_perm:[2,3,0,1]{dpp}")
    g(f"s_lshl_b32 {sr(sTmp)}, {sr(sWave)}, 11")
    g(f"s_add_u32 {sr(sTmp)}, {sr(sTmp)}, {CLDS}")
    g(f"v_and_b32 {vr(e0)}, 3, {vr(vLane)}")
    g(f"v_lshlrev_b32 {vr(e0)}, 9, {vr(e0)}")
    g(f"v_bfe_u32 {vr(e1)}, {vr(vLane)}, 2, 1")
    g(f"v_lshl_add_u32 {vr(e0)}, {vr(e1)}, 7, {vr(e0)}")
    g(f"v_bfe_u32 {vr(e1)}, {vr(vLane)}, 4, 1")
    g(f"v_lshl_add_u32 {vr(e0)}, {vr(e1)}, 6, {vr(e0)}")
    g(f"v_add_u32 {vr(e0)}, {sr(sTmp)}, {vr(e0)}")
    xreduce("v_add_f32", vL, vT1)
    g(f"s_lshl_b32 {sr(sTmp)}, {sr(sWave)}, 4")
    g(f"s_add_u32 {sr(sTmp)}, {sr(sTmp)}, {MLDS}")
    g(f"v_lshlrev_b32 {vr(e2)}, 3, {vr(vLane)}")
    g(f"v_add_u32 {vr(e2)}, {sr(sTmp)}, {vr(e2)}")
    g(f"s_mov_b64 exec, {sr(sEp,2)}")
    ET = 20
    for m in range(2):
        for r in range(4):
            T = ET + 4*(m*4+r)
            for c in range(4):
                g(f"v_sub_f32 {vr(T+c)}, {vr(O+(m*4+c)*4+r)}, {vr(CORR)}")
            g(f"ds_write_b128 {vr(e0)}, {vr(T,4)} offset:{m*256+r*16}")
    g("s_mov_b64 exec, 3")
    g(f"ds_write_b64 {vr(e2)}, {vr(vM,2)}")
    g("s_mov_b64 exec, -1")
    def stamp(slot):
        g("s_memrealtime s[86:87]")
        g(f"s_mul_i32 s89, s2, {WPW}")
        g(f"s_add_u32 s89, s89, {sr(sWave)}")
        g("s_lshl_b32 s89, s89, 4")
        g(f"s_add_u32 s89, s89, 0x{0x1000000 + slot*0x100000:x}")
        g("s_waitcnt lgkmcnt(0)")
        g(f"v_mov_b32 {vr(TMP)}, s84"); g(f"v_mov_b32 {vr(TMP+1)}, s86"); g(f"v_mov_b32 {vr(TMP+2)}, s88"); g(f"v_mov_b32 {vr(TMP+3)}, s94")
        g("s_mov_b64 s[90:91], exec")
        g("s_mov_b64 exec, 1")
        g(f"buffer_store_dwordx4 {vr(TMP,4)}, off, {sr(sWS,4)}, s89")
        g("s_mov_b64 exec, s[90:91]")
    if cfg.stamp: stamp(0)
    g("s_waitcnt lgkmcnt(0)")
    g("s_barrier")
    g(f"s_cmp_lg_u32 {sr(sWave)}, 0")
    g("s_cbranch_scc1 L_end")
    g(f"v_lshrrev_b32 {vr(vO8)}, 5, {vr(vLane)}")
    g(f"v_lshlrev_b32 {vr(vO8)}, 3, {vr(vO8)}")
    ML = 28; OP = 48; OQ = 96
    def combine(n, ML, OP, M, L, R):
        g(f"v_max_f32 {vr(M)}, {vr(ML)}, {vr(ML+2)}")
        for w in range(2, n, 2):
            g(f"v_max3_f32 {vr(M)}, {vr(M)}, {vr(ML+2*w)}, {vr(ML+2*w+2)}")
        for w in range(n):
            g(f"v_sub_f32 {vr(ML+2*w)}, {vr(ML+2*w)}, {vr(M)}")
        for w in range(n):
            g(f"v_exp_f32 {vr(ML+2*w)}, {vr(ML+2*w)}")
        g("s_nop 0")
        g(f"v_mul_f32 {vr(L)}, {vr(ML)}, {vr(ML+1)}")
        for c in range(4):
            g(f"v_mul_f32 {vr(R+c)}, {vr(ML)}, {vr(OP+c)}")
        for w in range(1, n):
            g(f"v_fmac_f32 {vr(L)}, {vr(ML+2*w)}, {vr(ML+2*w+1)}")
            for c in range(4):
                g(f"v_fmac_f32 {vr(R+c)}, {vr(ML+2*w)}, {vr(OP+4*w+c)}")
    for w in range(WPW):
        g(f"ds_read_b64 {vr(ML+2*w,2)}, {vr(vO8)} offset:{MLDS+w*16}")
    for w in range(WPW):
        g(f"ds_read_b128 {vr(OP+4*w,4)}, {vr(vO16)} offset:{CLDS+w*2048}")
        g(f"ds_read_b128 {vr(OQ+4*w,4)}, {vr(vO16)} offset:{CLDS+w*2048+1024}")
    g(f"s_lshl_b32 {sr(sOwn0)}, s2, 10")
    g(f"s_lshl_b32 {sr(sOwn1)}, s2, 4")
    g(f"s_add_u32 {sr(sOwn1)}, {sr(sOwn1)}, 0x{MLBASE:x}")
    g("s_waitcnt lgkmcnt(0)")
    for r in range(16):
        g(f"v_add_f32 {vr(OP+r)}, {vr(OP+r)}, {vr(OQ+r)}")
    combine(WPW, ML, OP, 20, 21, 24)
    g(f"buffer_store_dwordx4 v[24:27], {vr(vO16)}, {sr(sWS,4)}, {sr(sOwn0)} offen sc1")
    g("s_mov_b32 exec_lo, 1")
    g("s_mov_b32 exec_hi, 1")
    g(f"buffer_store_dwordx2 v[20:21], {vr(vO8)}, {sr(sWS,4)}, {sr(sOwn1)} offen sc1")
    if True:
        g("s_mov_b64 exec, 1")
        g("v_mov_b32 v16, 1")
        srd(sOUT, 18, 16384)
        if cfg.wsc:
            g.label("L_flag")
            g(f"s_cmp_lg_u32 {sr(sFlag)}, 1")
            g("s_cbranch_scc1 L_wflag")
            g(f"s_mul_i32 {sr(sTmp)}, {sr(sBH)}, {CSTR}")
            g(f"s_add_u32 {sr(sTmp)}, {sr(sTmp)}, 0x{ABASE:x}")
        else:
            srd(sDBG, 20, 256)
            g(f"s_lshl_b32 {sr(sTmp)}, {sr(sBH)}, 3")
        g("s_waitcnt vmcnt(0)")
        g(f"buffer_atomic_add v16, off, {sr(sWS if cfg.wsc else sDBG,4)}, {sr(sTmp)} sc0 sc1")
        g("s_waitcnt vmcnt(0)")
        g(f"v_readfirstlane_b32 {sr(sTmp)}, v16")
        g("s_mov_b64 exec, -1")
        g(f"s_cmp_lg_u32 {sr(sTmp)}, {NP-1}")
        g("s_cbranch_scc1 L_end")
        fetch()
        g("s_waitcnt vmcnt(0)")
    combine(NP, ML2, OP2, 20, 21, 24)
    g("v_rcp_f32 v21, v21")
    g(f"s_lshl_b32 {sr(sTmp)}, {sr(sBH)}, 9")
    for c in range(4):
        g(f"v_mul_f32 v{24+c}, v{24+c}, v21")
    g("v_cvt_pk_bf16_f32 v24, v24, v25")
    g("v_cvt_pk_bf16_f32 v25, v26, v27")
    g(f"v_lshlrev_b32 v11, 3, {vr(vLane)}")
    g(f"buffer_store_dwordx2 v[24:25], v11, {sr(sOUT,4)}, {sr(sTmp)} offen")
    if cfg.stamp:
        g("s_waitcnt vmcnt(0)")
        stamp(1)
    g.label("L_end")
    g("s_endpgm")
    g.label("L_init")
    g(f"v_mul_u32_u24 {vr(t0)}, {CSTR}, {vr(vLane)}")
    g(f"s_mov_b64 exec, 0x{(1 << len(syncs)) - 1:x}")
    g(f"buffer_store_dwordx2 {vr(CORR,2)}, {vr(t0)}, {sr(sWS,4)}, {sr(sWOff)} offen sc1")
    g("s_mov_b64 exec, -1")
    g("s_branch L_noinit")
    if cfg.wsc:
        g.label("L_wflag")
        g(f"s_lshl_b32 {sr(sTmp)}, {sr(sBH)}, 2")
        g(f"s_load_dword {sr(sFlag)}, s[20:21], {sr(sTmp)} glc")
        g("s_waitcnt lgkmcnt(0)")
        g("s_branch L_flag")
    g.label("L_lastk")
    srdp(sNx, 8)
    g(f"s_mov_b32 {sr(sNOff)}, {sr(sBase)}")
    g(f"v_lshrrev_b32 {vr(t0)}, 3, {vr(j_)}")
    g(f"v_and_b32 {vr(t1)}, 7, {vr(j_)}")
    g(f"v_lshlrev_b32 {vr(t1)}, 4, {vr(t1)}")
    g(f"v_lshl_add_u32 {vr(t1)}, {vr(t0)}, 9, {vr(t1)}")
    g(f"v_lshl_add_u32 {vr(vNx)}, {vr(g_)}, 15, {vr(t1)}")
    g.label("L_copied")
    g(f"v_readfirstlane_b32 {sr(sTmp)}, {vr(vA)}")
    g(f"s_cmp_eq_u32 {sr(sTmp)}, {WPW}")
    g("s_cbranch_scc1 L_lastkb")
    g(f"ds_read_b32 {vr(vA)}, {vr(vZero)} offset:{BLDS}")
    g("s_waitcnt lgkmcnt(0)")
    g("s_branch L_copied")
    ctl_blocks("k")
    ctl_blocks("v")
    main = g.text()

    lds = TLDS + (2048 if cfg.tlog else 0)
    out = HEADER
    out += f"; @launch grid=({NWG},1,1) block=({WPW*64},1,1) lds={max(lds, cfg.lds)}\n"
    out += '.amdgcn_target "amdgcn-amd-amdhsa--gfx950"\n.text\n'
    out += f".globl {NAME}_kernel\n.p2align 8\n.type {NAME}_kernel,@function\n" + main
    out += '.section .rodata,"a"\n'
    out += (f".p2align 6\n.amdhsa_kernel {NAME}_kernel\n  .amdhsa_next_free_vgpr {NV}\n  .amdhsa_next_free_sgpr {NS}\n"
            f"  .amdhsa_accum_offset {NV}\n  .amdhsa_group_segment_fixed_size 0\n  .amdhsa_kernarg_size 80\n"
            "  .amdhsa_user_sgpr_count 2\n  .amdhsa_user_sgpr_kernarg_segment_ptr 1\n"
            "  .amdhsa_system_sgpr_workgroup_id_x 1\n.end_amdhsa_kernel\n")
    return out

if __name__ == "__main__":
    ap = argparse.ArgumentParser()
    ap.add_argument("-o", default="/dev/stdout")
    ap.add_argument("--stamp", type=int, default=0)
    ap.add_argument("--tlog", type=int, default=0)
    ap.add_argument("--pst", type=int, default=0)
    ap.add_argument("--d", type=int, default=5)
    ap.add_argument("--tiers", type=int, default=2)
    ap.add_argument("--first", type=int, default=6)
    ap.add_argument("--b2b", type=int, default=0)
    ap.add_argument("--lds", type=int, default=0)
    ap.add_argument("--ctlpos", type=int, default=8)
    ap.add_argument("--tpos", type=int, default=14)
    ap.add_argument("--rpos", type=int, default=12)
    ap.add_argument("--si", type=int, default=4)
    ap.add_argument("--s0", type=int, default=2)
    ap.add_argument("--rd", type=int, default=2)
    ap.add_argument("--rglc", type=int, default=0)
    ap.add_argument("--radd", type=int, default=0)
    ap.add_argument("--slow", type=int, default=4)
    ap.add_argument("--law", default="40:16,-60:-2")
    ap.add_argument("--cap", default="2:4")
    ap.add_argument("--wsc", type=int, default=1)
    ap.add_argument("--fslot", type=int, default=45)
    ap.add_argument("--diag", default="")
    ap.add_argument("--base", type=int, default=0)
    ap.add_argument("--law2", default="90:16")
    ap.add_argument("--tlb", type=int, default=0)
    ap.add_argument("--dnt", type=int, default=1)
    ap.add_argument("--tlbs", type=int, default=25)
    ap.add_argument("--eb", default="")
    cfg = ap.parse_args()
    open(cfg.o, "w").write(build(cfg))
```

```python
import sys, argparse, math, struct
from gen import Gen, vr, sr, HEADER, NAME, f32bits

def build(cfg):
    WPW = 4; NWG = 256; NP = 8
    MLBASE = 32 * NP * 1024
    I = cfg.si; LI = int(math.log2(I)); RD = cfg.rd
    syncs = list(range(cfg.s0, 64 - RD, I))
    wmask = sum(1 << c for c in syncs); rmask = sum(1 << (c + RD) for c in syncs)
    assert len(syncs) <= 32 and (wmask & rmask) == 0 and 1 << LI == I
    SU = [1, 3, 5, 29]
    FS = [cfg.fslot, cfg.fslot + 2]
    omask = sum(1 << c for c in SU + FS)
    assert all(c % 2 == 0 for c in syncs) and RD % 2 == 0 and cfg.fslot % 2 == 1 and cfg.fslot > 32
    CBASE = 0x50000; CSTR = 4352
    XBASE = 0x80000 + cfg.xoff
    RS, PS_, GS = [int(x) for x in cfg.lay.split(":")]
    WSBYTES = XBASE + 32 * GS
    D, LA = cfg.d, 8
    assert D + cfg.tiers <= LA
    nt = " nt"
    g = Gen()
    vB, vKC, vVA, vNx, vZero, vS, vLds, vLane, vM, vL, vT1, vBias = range(12)
    vSelS, vSelZ, vMa, vMb = 12, 13, 14, 15
    Q = 16
    NB = 32
    TK = 36
    TV = 36
    DK = 52
    X = 68
    VS = 72; VZ = 76; U = 80; P = 84; ZA = 86; WP = 88
    vA, vOne, vO16, vO8 = 92, 93, 94, 95
    O = 96
    CORR = 128
    RAW = 132
    SM = 196
    vW, vG, vCW, vP, vOa, vCnt, vIn = range(220, 227)
    MX = 228
    TMP = 244
    PT = 204
    NV = 256
    sK, sV, sVS, sVZ, sQ, sKS, sKZ, sWS, sDBG, sOUT, sNx = 24, 28, 32, 36, 40, 44, 48, 52, 76, 76, 96
    sWave, sUnit, sCur, sNOff, sDelta, sN, sTmp, sTmp2, sBH, sBase = 56, 57, 58, 59, 60, 61, 62, 63, 64, 65
    sJ4 = 66; sHi = 68; sC = 69; sExec = 70; sHd = 80; sEp = 82; sCk = 92
    sL, sPend, sSlot, sWOff, sROff = 4, 5, 13, 100, 101
    sTgt, sA, sRate, sPm, sPrev, sOk, sEn, sCr, sFlag = 12, 11, 10, 14, 3, 28, 29, 30, 31
    sOwn0, sOwn1 = 16, 17
    sT, sSy, sSw, sCkW = 40, 42, 44, 46
    sReg = 72
    sOwnM, sRdy, sTag, sIn, sMh = 48, 50, 51, 73, 74
    NS = 102
    LV = 32768
    CLDS = 49152
    MLDS = CLDS + 8192
    XLDS = MLDS + 32
    BLDS = MLDS + WPW * 16
    TLDS = BLDS + 16
    dpp = " row_mask:0xf bank_mask:0xf"

    g.label(f"{NAME}_kernel")
    g(f"s_cmp_ge_u32 s2, {NWG}")
    g("s_cbranch_scc1 L_end")
    g("s_load_dwordx4 s[4:7], s[0:1], 0")
    g("s_load_dwordx4 s[8:11], s[0:1], 16")
    g("s_load_dwordx8 s[12:19], s[0:1], 32")
    g("s_load_dwordx4 s[20:23], s[0:1], 64")
    if cfg.cpf:
        g(f"s_getpc_b64 {sr(sExec,2)}")
        g.label("L_pc")
        g(f"v_lshlrev_b32 {vr(TMP+4)}, 6, v0")
        g(f"v_min_u32 {vr(TMP+4)}, L_last-L_pc, {vr(TMP+4)}")
        g(f"global_load_dword {vr(TMP+5)}, {vr(TMP+4)}, {sr(sExec,2)}")
    if cfg.stamp:
        g("s_memrealtime s[84:85]")
        g("s_getreg_b32 s88, hwreg(HW_REG_XCC_ID)")
    w_, j_, g_, a_, b_, g1, g2, hd, pr, t0, t1, oS, l8, qa = range(PT, PT + 14)
    g(f"v_and_b32 {vr(vLane)}, 63, v0")
    g(f"v_lshrrev_b32 {vr(w_)}, 6, v0")
    g(f"v_and_b32 {vr(j_)}, 15, {vr(vLane)}")
    g(f"v_lshrrev_b32 {vr(g_)}, 4, {vr(vLane)}")
    g(f"v_readfirstlane_b32 {sr(sWave)}, {vr(w_)}")
    g(f"v_lshrrev_b32 {vr(a_)}, 2, {vr(j_)}")
    g(f"v_and_b32 {vr(b_)}, 3, {vr(j_)}")
    g(f"v_and_b32 {vr(g1)}, 1, {vr(g_)}")
    g(f"v_lshrrev_b32 {vr(g2)}, 1, {vr(g_)}")
    g(f"v_lshlrev_b32 {vr(t0)}, 15, {vr(a_)}")
    g(f"v_lshl_add_u32 {vr(t0)}, {vr(g2)}, 9, {vr(t0)}")
    g(f"v_lshl_add_u32 {vr(t0)}, {vr(g1)}, 6, {vr(t0)}")
    g(f"v_lshl_add_u32 {vr(vKC)}, {vr(b_)}, 4, {vr(t0)}")
    g(f"v_lshlrev_b32 {vr(l8)}, 3, {vr(vLane)}")
    g(f"v_and_b32 {vr(oS)}, 0xff, {vr(l8)}")
    g(f"v_lshlrev_b32 {vr(vO16)}, 4, {vr(vLane)}")
    g(f"s_lshr_b32 {sr(sUnit)}, s2, 2")
    g(f"s_lshr_b32 {sr(sBH)}, s2, 3")
    g(f"s_lshl_b32 {sr(sBase)}, s2, 9")
    g(f"s_add_u32 {sr(sBase)}, {sr(sBase)}, {sr(sWave)}")
    g(f"s_lshl_b32 {sr(sBase)}, {sr(sBase)}, 12")
    if cfg.rot:
        rm, rs = [int(x) for x in cfg.rot.split(":")]
        g(f"s_mul_i32 {sr(sReg)}, s2, {rm}")
        g(f"s_lshr_b32 {sr(sReg)}, {sr(sReg)}, {rs}")
        g(f"s_and_b32 {sr(sReg)}, {sr(sReg)}, 15")
        g(f"s_lshl_b32 {sr(sReg)}, {sr(sReg)}, 17")
        g(f"s_add_u32 {sr(sBase)}, {sr(sBase)}, {sr(sReg)}")
        g(f"s_lshl_b32 {sr(sReg)}, s2, 21")
    g(f"s_lshl_b32 {sr(sTmp)}, {sr(sBH)}, 9")
    g(f"s_lshl_b32 {sr(sTmp2)}, {sr(sUnit)}, 8")
    for d in (sK, sQ, sKS, sKZ, sVS, sVZ, sWS):
        g(f"s_mov_b32 {sr(d+3)}, 0x00020000")
    g(f"s_mov_b32 {sr(sK+2)}, 0x20000000")
    for d in (sQ, sKS, sKZ): g(f"s_mov_b32 {sr(d+2)}, 0x4000")
    for d in (sVS, sVZ): g(f"s_mov_b32 {sr(d+2)}, 0x200000")
    g(f"s_mov_b32 {sr(sWS+2)}, 0x{WSBYTES if not cfg.stamp else 0x2000000:x}")
    g(f"s_lshl_b32 {sr(sN)}, s2, 13")
    g(f"s_lshl_b32 {sr(sDelta)}, {sr(sWave)}, 11")
    g(f"s_add_u32 {sr(sN)}, {sr(sN)}, {sr(sDelta)}")
    g(f"s_add_u32 m0, {sr(sDelta)}, {LV}")
    sOwn = 75
    if cfg.prew:
        g(f"s_lshr_b32 {sr(sOwn)}, {sr(sN)}, 2")
        g(f"s_add_u32 {sr(sOwn)}, {sr(sOwn)}, 0x{XBASE:x}")
        for r in range(2): g(f"v_mov_b32 {vr(CORR+r)}, 0")
    if cfg.tlog:
        g(f"s_lshl_b32 s89, {sr(sWave)}, 9")
        g(f"s_add_u32 s89, s89, {TLDS}")
    g("s_waitcnt lgkmcnt(0)")
    def pst():
        if not cfg.pst: return
        g("s_memrealtime s[90:91]")
        g("s_waitcnt lgkmcnt(0)")
        g("s_lshl_b32 s90, s90, 7")
        g(f"v_mov_b32 {vr(TMP+2)}, s90")
        g(f"v_mov_b32 {vr(TMP+3)}, s89")
        g(f"ds_write_b32 {vr(TMP+3)}, {vr(TMP+2)}")
        g("s_add_u32 s89, s89, 4")
    pst()
    def srdp(d, p):
        g(f"s_mov_b32 {sr(d)}, {sr(p)}")
        g(f"s_and_b32 {sr(d+1)}, {sr(p+1)}, 0xffff")
    def srd(d, p, nbytes):
        srdp(d, p)
        g(f"s_mov_b32 {sr(d+2)}, 0x{nbytes:x}")
        g(f"s_mov_b32 {sr(d+3)}, 0x00020000")
    def big(n, va, sd, so):
        s_, u = n >> 2, n & 3
        g(f"buffer_load_dwordx4 {vr(RAW+4*n,4)}, {vr(va)}, {sr(sd,4)}, {sr(so)} offen offset:{u*1024+s_*128}{nt}")
    RQ, RKS, RZ = SM, SM + 2, SM + 4
    F = cfg.first
    srdp(sK, 6)
    def prew():
        assert cfg.lay == "128:2048:16384"
        srdp(sWS, 22)
        g(f"buffer_store_dwordx2 {vr(CORR,2)}, {vr(l8)}, {sr(sWS,4)}, {sr(sOwn)} offen {cfg.pfl}")
    if cfg.prew == 1: prew()
    for n in range(F):
        big(n, vKC, sK, sBase)
        if cfg.prew == n + 2: prew()
    pst()
    srdp(sQ, 4); srdp(sKS, 10); srdp(sKZ, 12)
    g(f"buffer_load_dwordx2 {vr(RQ,2)}, {vr(l8)}, {sr(sQ,4)}, {sr(sTmp)} offen{nt if cfg.dnt > 1 else ''}")
    g(f"buffer_load_dwordx2 {vr(RKS,2)}, {vr(oS)}, {sr(sKS,4)}, {sr(sTmp2)} offen{nt if cfg.dnt > 1 else ''}")
    g(f"buffer_load_dwordx2 {vr(RZ,2)}, {vr(oS)}, {sr(sKZ,4)}, {sr(sTmp2)} offen{nt if cfg.dnt > 1 else ''}")
    srdp(sVS, 14); srdp(sVZ, 16)
    for x in range(2):
        g(f"buffer_load_dwordx4 {vr(vO16)}, {sr(sVS,4)}, {sr(sN)} offen offset:{1024*x}{nt if cfg.dnt else ''} lds")
    g(f"s_add_u32 m0, {sr(sDelta)}, {LV+8192}")
    srdp(sWS, 22)
    for x in range(2):
        g(f"buffer_load_dwordx4 {vr(vO16)}, {sr(sVZ,4)}, {sr(sN)} offen offset:{1024*x}{nt if cfg.dnt else ''} lds")
    pst()
    srd(sNx, 6, 0x20000000)
    g(f"s_mov_b32 {sr(sHi)}, 0xffff0000")
    g(f"s_mov_b32 {sr(sC)}, 0x{f32bits((128.0 ** -0.5) * math.log2(math.e)):08x}")
    g(f"v_and_b32 {vr(hd)}, 1, {vr(j_)}")
    g(f"v_bfe_u32 {vr(pr)}, {vr(j_)}, 1, 1")
    g(f"v_mov_b32 {vr(vNx)}, {vr(vKC)}")
    g(f"v_lshl_add_u32 {vr(t0)}, {vr(g_)}, 2, {vr(b_)}")
    g(f"v_lshlrev_b32 {vr(t0)}, 4, {vr(t0)}")
    g(f"v_lshl_add_u32 {vr(vLds)}, {vr(w_)}, 13, {vr(t0)}")
    g(f"v_xor_b32 {vr(t0)}, {vr(pr)}, {vr(g2)}")
    g(f"v_lshl_add_u32 {vr(qa)}, {vr(g1)}, 2, {vr(a_)}")
    g(f"v_lshl_add_u32 {vr(qa)}, {vr(hd)}, 5, {vr(qa)}")
    g(f"v_lshl_add_u32 {vr(qa)}, {vr(t0)}, 6, {vr(qa)}")
    g(f"v_lshl_add_u32 {vr(qa)}, {vr(w_)}, 7, {vr(qa)}")
    g(f"v_lshlrev_b32 {vr(qa)}, 4, {vr(qa)}")
    g(f"v_add_u32 {vr(qa)}, {CLDS}, {vr(qa)}")
    g(f"v_lshl_add_u32 {vr(l8)}, {vr(w_)}, 11, {vr(vO16)}")
    for r in range(4): g(f"v_mov_b32 {vr(CORR+r)}, 0")
    g(f"v_cmp_gt_u32 {sr(sJ4,2)}, 4, {vr(j_)}")
    g(f"v_cmp_ne_u32 {sr(sHd,2)}, 0, {vr(hd)}")
    g(f"ds_write_b128 {vr(l8)}, {vr(CORR,4)} offset:{CLDS+1024}")
    g(f"v_mov_b32 {vr(vZero)}, 0")
    g(f"ds_write_b32 {vr(CORR)}, {vr(CORR)} offset:{BLDS}")
    g(f"v_mov_b32 {vr(vM)}, 0xff7fffff")
    g(f"s_mov_b32 {sr(sWOff)}, 0x{CBASE:x}")
    g(f"s_mov_b32 {sr(sROff)}, 0x{CBASE:x}")
    def pres():
        assert cfg.lay == "128:2048:16384"
        g(f"s_lshl_b32 {sr(sTmp)}, s2, 2")
        g(f"s_add_u32 {sr(sTmp)}, {sr(sTmp)}, {sr(sWave)}")
        g(f"s_lshl_b32 {sr(sTmp)}, {sr(sTmp)}, 9")
        g(f"s_add_u32 {sr(sTmp)}, {sr(sTmp)}, 0x{XBASE:x}")
        if cfg.prev:
            g(f"v_lshlrev_b32 {vr(vIn)}, 3, {vr(vLane)}")
            g(f"buffer_load_dwordx2 v[196:197], {vr(vIn)}, {sr(sWS,4)}, {sr(sTmp)} offen")
            return
        for i in range(8):
            g(f"s_load_dword {sr(sIn)}, s[22:23], {sr(sTmp)}")
            if i < 7: g(f"s_add_u32 {sr(sTmp)}, {sr(sTmp)}, 64")
    def setup(k):
        if k == 0:
            g(f"v_lshrrev_b32 {vr(t0)}, 3, {vr(j_)}")
            g(f"v_mul_u32_u24 {vr(t0)}, 0x0202, {vr(t0)}")
            g(f"v_lshl_add_u32 {vr(t0)}, {vr(t0)}, 16, {vr(t0)}")
            g(f"v_add_u32 {vr(vSelZ)}, 0x05040100, {vr(t0)}")
            g(f"v_mul_u32_u24 {vr(t0)}, 0x0202, {vr(pr)}")
            g(f"v_lshlrev_b32 {vr(t0)}, 16, {vr(t0)}")
            g(f"v_add_u32 {vr(vSelS)}, 0x01000c0c, {vr(t0)}")
            g(f"v_bfe_u32 {vr(t0)}, {vr(j_)}, 2, 1")
            g(f"v_sub_u32 {vr(vMb)}, 0, {vr(t0)}")
            g(f"v_not_b32 {vr(vMa)}, {vr(vMb)}")
            g(f"v_lshlrev_b32 {vr(vVA)}, 7, {vr(g_)}")
            g(f"s_bfe_u32 {sr(sTmp)}, {sr(sBase)}, 0xd0008")
            g(f"v_add_u32 {vr(vVA)}, {LV}, {vr(vVA)}")
            g(f"v_add_u32 {vr(vS)}, {sr(sTmp)}, {vr(vVA)}")
            g(f"v_cmp_eq_u32 {sr(sEp,2)}, {vr(pr)}, {vr(g2)}")
            g(f"v_cmp_gt_u32 vcc, 8, {vr(j_)}")
            g(f"v_mov_b32 {vr(vL)}, 0")
            g(f"s_and_b64 {sr(sEp,2)}, {sr(sEp,2)}, vcc")
            g(f"s_mov_b32 {sr(sRdy)}, 0")
            g(f"s_lshl_b32 {sr(sTmp)}, {sr(sWave)}, 2")
            g(f"v_lshl_add_u32 {vr(vG)}, {vr(hd)}, 4, {sr(sTmp)}")
            g(f"s_and_b32 {sr(sTmp)}, s2, {NP-1}")
            g(f"s_or_b32 {sr(sTmp)}, {sr(sTmp)}, {sr(sWave)}")
            g("s_cbranch_scc1 L_nckk")
            g(f"s_lshl_b32 {sr(sTmp)}, {sr(sBH)}, 2")
            if cfg.drt: g(f"s_add_u32 {sr(sTmp)}, {sr(sTmp)}, 128")
            g(f"s_or_b32 {sr(sTag)}, {sr(sT)}, 1")
            g(f"s_atomic_add {sr(sTag)}, s[20:21], {sr(sTmp)}")
        elif k in (1, 2):
            if k == 1:
                g(f"v_mov_b32 {vr(vA)}, 1")
                g("s_mov_b64 exec, 1")
                g(f"ds_add_u32 {vr(vZero)}, {vr(vA)} offset:{BLDS}")
                g("s_mov_b64 exec, -1")
            for r in range(16): g(f"v_mov_b32 {vr(O+16*(k-1)+r)}, 0")
            if k == 2 and cfg.pres == 2: pres()
        elif k == 3:
            g(f"ds_read_b32 {vr(vA)}, {vr(vZero)} offset:{BLDS}")
    g(f"s_or_b32 {sr(sTmp)}, s2, {sr(sWave)}")
    g(f"s_cmp_eq_u32 {sr(sTmp)}, 0")
    g("s_cbranch_scc1 L_init")
    g.label("L_noinit")
    g(f"s_mov_b32 {sr(sCur)}, {sr(sBase)}")
    g(f"s_mov_b32 {sr(sDelta)}, 0x4000")
    g(f"s_mov_b32 {sr(sPend)}, 0")
    g(f"s_mov_b32 {sr(sSlot)}, 0")
    for r in (sTgt, sRate, sPrev): g(f"s_mov_b32 {sr(r)}, 0")
    for r in (sOk, sCr, sT): g(f"s_mov_b64 {sr(r,2)}, 0")
    g(f"s_and_b32 {sr(sTmp)}, s2, 0x38")
    g(f"s_lshr_b32 {sr(sTmp2)}, s2, 6")
    g(f"s_xor_b32 {sr(sTmp2)}, {sr(sTmp2)}, {sr(sWave)}")
    g(f"s_or_b32 {sr(sTmp)}, {sr(sTmp)}, {sr(sTmp2)}")
    g(f"s_cmp_eq_u32 {sr(sTmp)}, 0")
    g(f"s_cselect_b32 {sr(sCkW)}, 0x{wmask & 0xffffffff:x}, 0")
    g(f"s_cselect_b32 {sr(sCkW+1)}, 0x{wmask >> 32:x}, 0")
    g(f"s_or_b32 {sr(sCk)}, {sr(sCkW)}, 0x{(rmask | omask) & 0xffffffff:x}")
    g(f"s_or_b32 {sr(sCk+1)}, {sr(sCkW+1)}, 0x{(rmask | omask) >> 32:x}")
    pst()

    def xreduce(op, v, t, both=True):
        g(f"v_mov_b32 {vr(t)}, {vr(v)}")
        g("s_nop 1")
        g(f"v_permlane16_swap_b32 {vr(v)}, {vr(t)}")
        g("s_nop 1")
        g(f"{op} {vr(v)}, {vr(v)}, {vr(t)}")
        if not both: return
        g(f"v_mov_b32 {vr(t)}, {vr(v)}")
        g("s_nop 1")
        g(f"v_permlane32_swap_b32 {vr(v)}, {vr(t)}")
        g("s_nop 1")
        g(f"{op} {vr(v)}, {vr(v)}, {vr(t)}")
    def prep(part):
        a0, a1, b0, b1, z0, z1, h0, h1 = range(VS, VS + 8)
        HL = U
        for y in range(2 if part == 0 else 0):
            g(f"v_lshlrev_b32 v{a0}, 16, {vr(RQ+y)}")
            g(f"v_and_b32 v{a1}, {sr(sHi)}, {vr(RQ+y)}")
            g(f"v_lshlrev_b32 v{b0}, 16, {vr(RKS+y)}")
            g(f"v_and_b32 v{b1}, {sr(sHi)}, {vr(RKS+y)}")
            g(f"v_lshlrev_b32 v{z0}, 16, {vr(RZ+y)}")
            g(f"v_and_b32 v{z1}, {sr(sHi)}, {vr(RZ+y)}")
            g(f"v_mul_f32 v{a0}, v{a0}, v{b0}")
            g(f"v_mul_f32 v{a1}, v{a1}, v{b1}")
            g(f"v_mul_f32 v{a0}, {sr(sC)}, v{a0}")
            g(f"v_mul_f32 v{a1}, {sr(sC)}, v{a1}")
            g(f"v_cvt_pk_bf16_f32 {vr(HL+y)}, v{a0}, v{a1}")
            if y == 0: g(f"v_mul_f32 {vr(vBias)}, v{a0}, v{z0}")
            else: g(f"v_fmac_f32 {vr(vBias)}, v{a0}, v{z0}")
            g(f"v_fmac_f32 {vr(vBias)}, v{a1}, v{z1}")
            g(f"v_lshlrev_b32 v{h0}, 16, {vr(HL+y)}")
            g(f"v_and_b32 v{h1}, {sr(sHi)}, {vr(HL+y)}")
            g(f"v_sub_f32 v{a0}, v{a0}, v{h0}")
            g(f"v_sub_f32 v{a1}, v{a1}, v{h1}")
            g(f"v_cvt_pk_bf16_f32 {vr(HL+2+y)}, v{a0}, v{a1}")
        if part == 0:
            g(f"ds_write_b128 {vr(l8)}, {vr(HL,4)} offset:{CLDS}")
            return
        for m in range(2):
            g(f"ds_read2_b64 {vr(Q+8*m,4)}, {vr(qa)} offset0:{32*m} offset1:{32*m+16}")
            g(f"ds_read2_b64 {vr(Q+8*m+4,4)}, {vr(qa)} offset0:{32*m+1} offset1:{32*m+17}")
        for r in (1, 2, 4, 8):
            g(f"v_add_f32_dpp {vr(vBias)}, {vr(vBias)}, {vr(vBias)} row_ror:{r}{dpp}")
            g("s_nop 1")
        xreduce("v_add_f32", vBias, vT1, both=False)
        g(f"v_mul_f32 {vr(vBias)}, 0xbe800000, {vr(vBias)}")
        g("s_nop 0")
        g(f"v_readlane_b32 {sr(sTmp)}, {vr(vBias)}, 0")
        g(f"v_readlane_b32 {sr(sTmp2)}, {vr(vBias)}, 32")
        g("s_nop 1")
        g(f"v_mov_b32 {vr(NB)}, {sr(sTmp)}")
        g(f"v_mov_b32 {vr(vT1)}, {sr(sTmp2)}")
        g(f"v_cndmask_b32 {vr(NB)}, {vr(NB)}, {vr(vT1)}, {sr(sHd,2)}")
        for r in range(1, 4):
            g(f"v_mov_b32 {vr(NB+r)}, {vr(NB)}")

    def tlog():
        if not cfg.tlog: return
        g("s_memrealtime s[90:91]")
        g("s_waitcnt lgkmcnt(0)")
        g("s_lshl_b32 s90, s90, 7")
        g(f"s_add_u32 s91, {sr(sL)}, 32")
        g("s_and_b32 s91, s91, 127")
        g("s_or_b32 s90, s90, s91")
        g(f"v_mov_b32 {vr(TMP)}, s90")
        g(f"v_mov_b32 {vr(TMP+1)}, s89")
        g(f"ds_write_b32 {vr(TMP+1)}, {vr(TMP)}")
        g("s_add_u32 s89, s89, 4")
    def br4(n): return int(f"{n:04b}"[::-1], 2)
    def issue(ph, n, va, sd):
        tiers = 3 if ph == "v" and cfg.ebl and cfg.ebs <= n < 8 else cfg.tiers
        for t in range(tiers, 0, -1):
            g(f"s_cmp_gt_i32 {sr(sL)}, {br4(n) + 16*(t-1)}")
            g(f"s_cbranch_scc1 L_{ph}w{n}_{t}")
        if cfg.slow and br4(n) < cfg.slow:
            g(f"s_cmp_lt_i32 {sr(sL)}, {-br4(n)}")
            g(f"s_cbranch_scc0 L_{ph}w{n}_0")
            g(f"s_waitcnt vmcnt({D-2})")
        for t in range(tiers + 1):
            g.label(f"L_{ph}w{n}_{t}")
            g(f"s_waitcnt vmcnt({D-1+t})")
        if n < 16 - LA: big(n + LA, va, sd, sCur)
        else: big(n + LA - 16, vNx, sNx, sNOff)
    def top(ph):
        g("s_waitcnt lgkmcnt(0)")
        g(f"s_lshl_b32 {sr(sA)}, {sr(sT)}, 5")
        g(f"s_sub_u32 {sr(sA)}, {sr(sA)}, {sr(sTgt)}")
        g(f"s_add_u32 {sr(sTgt)}, {sr(sTgt)}, {sr(sRate)}")
        g(f"s_and_b32 {sr(sA)}, {sr(sA)}, {sr(sEn)}")
        g(f"s_mov_b32 {sr(sL)}, {cfg.base}")
        for e in cfg.law.split(","):
            th, lv = [int(x) for x in e.split(":")]
            g(f"s_cmp_{'gt' if th > 0 else 'lt'}_i32 {sr(sA)}, {th * 32}")
            g(f"s_cselect_b32 {sr(sL)}, {lv}, {sr(sL)}")
        def late():
            for e in cfg.late.split(","):
                sl, th, lv = [int(x) for x in e.split(":")]
                g(f"s_cmp_ge_u32 {sr(sSlot)}, {sl}")
                g(f"s_cselect_b32 {sr(sTmp2)}, {sr(sA)}, 0")
                g(f"s_cmp_{'gt' if th > 0 else 'lt'}_i32 {sr(sTmp2)}, {th * 32}")
                g(f"s_cselect_b32 {sr(sL)}, {lv}, {sr(sL)}")
        if cfg.late and ph == "v" and cfg.latecap: late()
        if cfg.cap:
            cc, cm = [int(x) for x in cfg.cap.split(":")]
            g(f"s_add_u32 {sr(sCr)}, {sr(sCr)}, 1")
            g(f"s_min_u32 {sr(sCr)}, {sr(sCr)}, {cm}")
            g(f"s_cmp_ge_u32 {sr(sCr)}, {cc}")
            g(f"s_cselect_b32 {sr(sTmp2)}, 64, 0")
            g(f"s_min_i32 {sr(sL)}, {sr(sL)}, {sr(sTmp2)}")
            g(f"s_cmp_gt_i32 {sr(sL)}, 0")
            g(f"s_cselect_b32 {sr(sTmp2)}, {cc}, 0")
            g(f"s_sub_u32 {sr(sCr)}, {sr(sCr)}, {sr(sTmp2)}")
        if cfg.law2:
            for e in cfg.law2.split(","):
                th, lv = [int(x) for x in e.split(":")]
                g(f"s_cmp_gt_i32 {sr(sA)}, {th * 32}")
                g(f"s_cselect_b32 {sr(sL)}, {lv}, {sr(sL)}")
        if cfg.late and ph == "v" and not cfg.latecap: late()
        if cfg.diag and ph == cfg.diag[0]:
            g(f"s_bitcmp{cfg.diag[1]}_b32 s2, 7")
            g(f"s_cselect_b32 {sr(sL)}, -4, {sr(sL)}")
        if ph == "v" and cfg.eb:
            for e in cfg.eb.split(","):
                sl, am = e.split(":")
                g(f"s_cmp_ge_u32 {sr(sSlot)}, {sl}")
                g(f"s_cselect_b32 {sr(sA)}, {am}, 0")
                g(f"s_add_u32 {sr(sL)}, {sr(sL)}, {sr(sA)}")
        tlog()
    def ctl_hooks(ph, n):
        if n == 0:
            g(f"s_bitcmp1_b64 {sr(sCk,2)}, {sr(sSlot)}")
            g(f"s_cbranch_scc1 L_ck{ph}")
            g.label(f"L_nck{ph}")
            g(f"s_add_u32 {sr(sSlot)}, {sr(sSlot)}, 1")
        if n == cfg.ctlpos:
            g(f"s_cmp_lg_u32 {sr(sPend)}, 0")
            g(f"s_cbranch_scc1 L_ctl{ph}")
            g.label(f"L_cb{ph}")
        if n == cfg.tpos:
            g(f"s_memrealtime {sr(sT,2)}")
    def getm(fl):
        g(f"s_lshl_b32 {sr(sTmp)}, {sr(sBH)}, 2")
        if cfg.drt: g(f"s_add_u32 {sr(sTmp)}, {sr(sTmp)}, 128")
        g(f"s_load_dword {sr(sTag)}, s[20:21], {sr(sTmp)}{fl}")
        g(f"v_and_b32 {vr(vW)}, 16, {vr(vG)}")
        g(f"ds_read_b32 {vr(vCnt)}, {vr(vZero)} offset:{BLDS}")
        g(f"ds_read_b128 {vr(MX,4)}, {vr(vW)} offset:{XLDS}")
    def weight(no):
        g(f"v_readfirstlane_b32 {sr(sTmp)}, {vr(vCnt)}")
        g(f"v_max_f32 {vr(MX)}, {vr(MX)}, {vr(MX+1)}")
        g(f"s_cmp_eq_u32 {sr(sTag)}, 0")
        g(f"s_cbranch_scc1 {no}")
        g(f"s_cmp_lg_u32 {sr(sTmp)}, {2*WPW}")
        g(f"s_cbranch_scc1 {no}")
        g(f"v_max3_f32 {vr(MX)}, {vr(MX)}, {vr(MX+2)}, {vr(MX+3)}")
        g(f"v_sub_f32 {vr(vW)}, {vr(vM)}, {vr(MX)}")
        g(f"v_exp_f32 {vr(vW)}, {vr(vW)}")
        g(f"s_mov_b32 {sr(sRdy)}, 2")
    def ctl_blocks(ph):
        g.label(f"L_ck{ph}")
        g(f"s_bitcmp1_b32 {sr(sSlot)}, 0")
        g(f"s_cbranch_scc1 L_odd{ph}")
        g(f"s_bitcmp1_b64 {sr(sCkW,2)}, {sr(sSlot)}")
        g(f"s_cbranch_scc1 L_pub{ph}")
        g(f"s_load_dwordx2 {sr(sSy,2)}, s[22:23], {sr(sROff)}{' glc' if cfg.rglc else ''}")
        g(f"s_mov_b32 {sr(sPend)}, 1")
        g(f"s_add_u32 {sr(sROff)}, {sr(sROff)}, {CSTR}")
        g(f"s_branch L_nck{ph}")
        g.label(f"L_pub{ph}")
        g(f"s_mov_b32 {sr(sSw)}, 1")
        g(f"s_mov_b32 {sr(sSw+1)}, {sr(sT)}")
        g(f"s_atomic_add_x2 {sr(sSw,2)}, s[22:23], {sr(sWOff)}")
        g(f"s_add_u32 {sr(sWOff)}, {sr(sWOff)}, {CSTR}")
        g(f"s_branch L_nck{ph}")
        g.label(f"L_odd{ph}")
        if ph == "k":
            for k in range(1, len(SU)):
                g(f"s_cmp_eq_u32 {sr(sSlot)}, {SU[k]}")
                g(f"s_cbranch_scc1 L_su{k}")
            for k in range(len(SU)):
                g.label(f"L_su{k}")
                setup(k)
                g(f"s_branch L_nck{ph}")
        else:
            g(f"s_cmp_eq_u32 {sr(sSlot)}, {FS[1]}")
            g("s_cbranch_scc1 L_fs1")
            getm("")
            if cfg.pres == 1: pres()
            if cfg.prer:
                g(f"s_cmp_lt_u32 {sr(sWave)}, 2")
                g(f"s_cbranch_scc0 L_nck{ph}")
                g(f"s_and_b32 {sr(sTmp)}, s2, {NP-1}")
                g(f"s_lshl_b32 {sr(sTmp)}, {sr(sTmp)}, 1")
                g(f"s_add_u32 {sr(sTmp)}, {sr(sTmp)}, {sr(sWave)}")
                g(f"s_mul_i32 {sr(sTmp)}, {sr(sTmp)}, {RS}")
                g(f"s_mul_i32 {sr(sIn)}, {sr(sBH)}, {GS}")
                g(f"s_add_u32 {sr(sIn)}, {sr(sIn)}, {sr(sTmp)}")
                g(f"s_add_u32 {sr(sIn)}, {sr(sIn)}, 0x{XBASE:x}")
                g(f"v_and_b32 {vr(vOa)}, 0x70, {vr(vO16)}")
                g(f"v_lshrrev_b32 {vr(vIn)}, 3, {vr(vLane)}")
                g(f"v_mul_u32_u24 {vr(vIn)}, {PS_}, {vr(vIn)}")
                g(f"v_add_u32 {vr(vIn)}, {vr(vIn)}, {vr(vOa)}")
                g(f"buffer_load_dwordx4 v[196:199], {vr(vIn)}, {sr(sWS,4)}, {sr(sIn)} offen {cfg.rfl}")
            g(f"s_branch L_nck{ph}")
            g.label("L_fs1")
            weight(f"L_nck{ph}")
            g(f"s_branch L_nck{ph}")
        g.label(f"L_ctl{ph}")
        g(f"s_mov_b32 {sr(sPend)}, 0")
        g(f"s_lshl_b32 {sr(sTmp)}, {sr(sT)}, 5")
        g(f"s_mov_b32 {sr(sTmp2)}, {sr(sOk)}")
        g("s_waitcnt lgkmcnt(0)")
        g(f"s_sub_u32 {sr(sTmp)}, {sr(sTmp)}, {sr(sSy+1)}")
        g(f"s_cmp_lt_u32 {sr(sTmp)}, {32 * 2000}")
        g(f"s_cselect_b32 {sr(sOk)}, {sr(sSy)}, 0")
        g(f"s_cmp_eq_u32 {sr(sOk)}, 32")
        g(f"s_cselect_b32 {sr(sOk)}, 1, 0")
        g(f"s_sub_u32 {sr(sTmp)}, {sr(sSy+1)}, {sr(sPrev)}")
        g(f"s_mov_b32 {sr(sPrev)}, {sr(sSy+1)}")
        g(f"s_and_b32 {sr(sTmp2)}, {sr(sTmp2)}, {sr(sOk)}")
        g(f"s_cbranch_scc0 L_cb{ph}")
        g(f"s_lshr_b32 {sr(sRate)}, {sr(sTmp)}, {LI}")
        if cfg.radd: g(f"s_add_u32 {sr(sRate)}, {sr(sRate)}, {cfg.radd}")
        g(f"s_mul_i32 {sr(sTmp)}, {sr(sRate)}, {RD + 1}")
        g(f"s_add_u32 {sr(sTgt)}, {sr(sSy+1)}, {sr(sTmp)}")
        g(f"s_mov_b32 {sr(sEn)}, -1")
        g(f"s_branch L_cb{ph}")
    def cvt4(R):
        for i in range(4):
            g(f"v_cvt_f32_i32 {vr(R+i)}, {vr(R+i)}")
    def kmfma(n):
        s_, u = n >> 2, n & 3
        m = s_ >> 1
        Dd = DK + 4*u; T = TK + 4*u
        g(f"v_mfma_f32_16x16x32_bf16 {vr(Dd,4)}, {vr(T,4)}, {vr(Q+8*m,4)}, {vr(NB,4) if m == 0 else vr(Dd,4)}")
        g(f"v_mfma_f32_16x16x32_bf16 {vr(Dd,4)}, {vr(T,4)}, {vr(Q+8*m+4,4)}, {vr(Dd,4)}")
    def red(u, k):
        Dd = DK + 4*u
        g(f"v_add_f32_dpp {vr(X+u)}, {vr(Dd+1+k)}, {vr(Dd) if k == 0 else vr(X+u)} row_ror:{12-4*k}{dpp}")
    def kcvt(n):
        s_, u = n >> 2, n & 3
        R = RAW + 4*n
        cvt4(R)
        for y in range(2):
            g(f"v_cvt_pk_bf16_f32 {vr(TK+4*u+2*(s_&1)+y)}, {vr(R+2*y)}, {vr(R+2*y+1)}")
    assert 5 <= F <= 8
    g("s_waitcnt lgkmcnt(0)")
    g("s_barrier")
    for part in range(2):
        g(f"s_waitcnt vmcnt(4)")
        pst()
        for n in range(F, 8) if part == 0 and cfg.b2b else [F + part] if not cfg.b2b and F + part < 8 else []:
            big(n, vKC, sK, sBase)
        prep(part)
    assert cfg.b2b or F >= 6
    g(".p2align 6")
    g.label("L_kloop")
    g(f"s_add_u32 {sr(sNOff)}, {sr(sCur)}, {sr(sDelta)}")
    if cfg.rot:
        g(f"s_and_b32 {sr(sNOff)}, {sr(sNOff)}, 0x1fffff")
        g(f"s_or_b32 {sr(sNOff)}, {sr(sNOff)}, {sr(sReg)}")
    g(f"s_xor_b32 {sr(sDelta)}, {sr(sDelta)}, 0x18000")
    g(f"s_cmp_eq_u32 {sr(sSlot)}, 31")
    g("s_cbranch_scc1 L_lastk")
    g.label("L_lastkb")
    top("k")
    for n in range(16):
        issue("k", n, vKC, sK)
        if n > 0 and ((n-1) >> 2) & 1: kmfma(n-1)
        ctl_hooks("k", n)
        kcvt(n)
    Dd = DK + 12; T = TK + 12
    red(0, 0); red(1, 0)
    g(f"v_mfma_f32_16x16x32_bf16 {vr(Dd,4)}, {vr(T,4)}, {vr(Q+8,4)}, {vr(Dd,4)}")
    red(0, 1); red(1, 1)
    g(f"v_mfma_f32_16x16x32_bf16 {vr(Dd,4)}, {vr(T,4)}, {vr(Q+12,4)}, {vr(Dd,4)}")
    red(0, 2); red(1, 2); red(2, 0)
    g(f"s_mov_b32 {sr(sCur)}, {sr(sNOff)}")
    g(f"v_max3_f32 {vr(vM)}, {vr(vM)}, {vr(X)}, {vr(X+1)}")
    red(2, 1)
    g("s_nop 1")
    red(2, 2); red(3, 0)
    g("s_nop 1")
    red(3, 1)
    g("s_nop 1")
    red(3, 2)
    g(f"s_mov_b64 exec, {sr(sJ4,2)}")
    g(f"v_max3_f32 {vr(vM)}, {vr(vM)}, {vr(X+2)}, {vr(X+3)}")
    g(f"ds_write_b128 {vr(vLds)}, {vr(X,4)}")
    g("s_mov_b64 exec, -1")
    g(f"v_add_u32 {vr(vLds)}, 256, {vr(vLds)}")
    g(f"s_cmp_lt_u32 {sr(sSlot)}, 32")
    g("s_cbranch_scc1 L_kloop")
    if cfg.stamp:
        g("s_memrealtime s[94:95]")
    def readS():
        g(f"ds_read_b128 {vr(X,4)}, {vr(vLds)}")
        g(f"ds_read_b128 {vr(VS,4)}, {vr(vS)}")
        g(f"ds_read_b128 {vr(VZ,4)}, {vr(vS)} offset:8192")
    g(f"v_subrev_u32 {vr(vLds)}, 0x2000, {vr(vLds)}")
    readS()
    g(f"v_max_f32_dpp {vr(vM)}, {vr(vM)}, {vr(vM)} quad_perm:[2,3,0,1]{dpp}")
    xreduce("v_max_f32", vM, vT1)
    g(f"s_mov_b32 {sr(sDelta)}, 0x4000")
    g(f"v_readlane_b32 {sr(sTmp)}, {vr(vM)}, 0")
    g(f"v_readlane_b32 {sr(sTmp2)}, {vr(vM)}, 1")
    g("s_nop 0")
    g("s_nop 0")
    g(f"v_mov_b32 {vr(vM)}, {sr(sTmp)}")
    g(f"v_mov_b32 {vr(vT1)}, {sr(sTmp2)}")
    g(f"v_cndmask_b32 {vr(vM)}, {vr(vM)}, {vr(vT1)}, {sr(sHd,2)}")
    g("s_mov_b64 exec, 3")
    g(f"ds_write_b32 {vr(vG)}, {vr(vM)} offset:{XLDS}")
    g("s_mov_b64 exec, 1")
    g(f"ds_add_u32 {vr(vZero)}, {vr(vA)} offset:{BLDS}")
    g("s_mov_b64 exec, -1")
    def vmfma(m):
        for c in range(4):
            acc = O + (m*4+c)*4
            g(f"v_mfma_f32_16x16x32_bf16 {vr(acc,4)}, {vr(TV+4*c,4)}, {vr(WP,4)}, {vr(acc,4)}")
    def soft(n):
        if n == 0:
            for e in range(4): g(f"v_sub_f32 {vr(X+e)}, {vr(X+e)}, {vr(vM)}")
            for e in range(2): g(f"v_exp_f32 {vr(X+e)}, {vr(X+e)}")
        elif n == 1:
            for e in range(2, 4): g(f"v_exp_f32 {vr(X+e)}, {vr(X+e)}")
        elif n == 2:
            for e in range(4): g(f"v_perm_b32 {vr(U+e)}, {vr(VS+e)}, {vr(VS+e)}, {vr(vSelS)}")
            for e in range(4): g(f"v_mul_f32 {vr(U+e)}, {vr(X+e)}, {vr(U+e)}")
        elif n == 3:
            for y in range(2): g(f"v_cvt_pk_bf16_f32 {vr(P+y)}, {vr(U+2*y)}, {vr(U+2*y+1)}")
            for y in range(2): g(f"v_perm_b32 {vr(ZA+y)}, {vr(VZ+2*y+1)}, {vr(VZ+2*y)}, {vr(vSelZ)}")
        elif n == 4:
            for y in range(2): g(f"v_and_b32 {vr(WP+y)}, {vr(vMa)}, {vr(P+y)}")
            for y in range(2): g(f"v_and_b32 {vr(WP+2+y)}, {vr(vMb)}, {vr(P+y)}")
            g(f"v_mfma_f32_16x16x16_bf16 {vr(CORR,4)}, {vr(ZA,2)}, {vr(P,2)}, {vr(CORR,4)}")
        elif n == 5:
            g(f"v_add_f32 {vr(X)}, {vr(X)}, {vr(X+1)}")
            g(f"v_add_f32 {vr(X+2)}, {vr(X+2)}, {vr(X+3)}")
            g(f"v_add_f32 {vr(vL)}, {vr(vL)}, {vr(X)}")
            g(f"v_add_f32 {vr(vL)}, {vr(vL)}, {vr(X+2)}")
        elif n == 6:
            g(f"v_add_u32 {vr(vLds)}, 256, {vr(vLds)}")
            g(f"s_bfe_u32 {sr(sN)}, {sr(sNOff)}, 0xd0008")
            g(f"v_add_u32 {vr(vS)}, {sr(sN)}, {vr(vVA)}")
        elif n == cfg.rpos:
            readS()
    g(".p2align 6")
    g.label("L_vloop")
    g(f"s_add_u32 {sr(sNOff)}, {sr(sCur)}, {sr(sDelta)}")
    if cfg.rot:
        g(f"s_and_b32 {sr(sNOff)}, {sr(sNOff)}, 0x1fffff")
        g(f"s_or_b32 {sr(sNOff)}, {sr(sNOff)}, {sr(sReg)}")
    g(f"s_xor_b32 {sr(sDelta)}, {sr(sDelta)}, 0x18000")
    top("v")
    def vcvt(n):
        s_, u = n >> 2, n & 3
        R = RAW + 4*n
        cvt4(R)
        if u & 1:
            for c in range(4):
                g(f"v_cvt_pk_bf16_f32 {vr(TV+4*c+2*(s_&1)+(u>>1))}, {vr(R-4+c)}, {vr(R+c)}")
    for n in range(16):
        if n == 8:
            g(f"s_cmp_eq_u32 {sr(sSlot)}, 64")
            g("s_cbranch_scc1 L_tail")
        if cfg.ebl and n == cfg.ebs:
            assert n > 0
            g(f"s_cmp_eq_u32 {sr(sSlot)}, 64")
            g(f"s_cselect_b32 {sr(sL)}, {cfg.ebl}, {sr(sL)}")
        issue("v", n, vNx, sNx)
        if n == 8: vmfma(0)
        ctl_hooks("v", n)
        vcvt(n)
        soft(n)
    g(f"s_mov_b32 {sr(sCur)}, {sr(sNOff)}")
    g("s_nop 0")
    vmfma(1)
    g("s_branch L_vloop")
    sOff0, sOff1 = sCur, sNOff
    FO = 196; PA = FO
    def poll(P): g(f"buffer_load_dwordx4 {vr(P,4)}, {vr(vIn)}, {sr(sWS,4)}, {sr(sIn)} offen {cfg.rfl}")
    def pk(d, a, b): g(f"v_pk_add_f32 {vr(d,2)}, {vr(a,2)}, {vr(b,2)}")
    def est(k):
        if cfg.est: g(f"s_memrealtime s[{32+2*k}:{33+2*k}]")
    g.label("L_tail")
    g(f"s_cmp_lg_u32 {sr(sRdy)}, 2")
    g("s_cbranch_scc1 L_slow")
    g.label("L_tail2")
    vmfma(0)
    e0, e1, e2, e3 = Q, Q+1, Q+2, Q+3
    def outw(m, r):
        T = (DK if m == 0 else 20) + 4*r
        for c in range(4):
            g(f"v_fma_f32 {vr(T+c)}, {vr(O+(m*4+c)*4+r)}, {vr(vW)}, -{vr(vCW)}")
        g(f"ds_write_b128 {vr(e0)}, {vr(T,4)} offset:{m*256+r*16}")
    g(f"v_add_f32_dpp {vr(vL)}, {vr(vL)}, {vr(vL)} quad_perm:[2,3,0,1]{dpp}")
    g(f"s_lshl_b32 {sr(sTmp)}, {sr(sWave)}, 11")
    g(f"s_add_u32 {sr(sTmp)}, {sr(sTmp)}, {CLDS}")
    g(f"v_and_b32 {vr(e0)}, 3, {vr(vLane)}")
    g(f"v_lshlrev_b32 {vr(e0)}, 9, {vr(e0)}")
    g(f"v_bfe_u32 {vr(e1)}, {vr(vLane)}, 2, 1")
    g(f"v_lshl_add_u32 {vr(e0)}, {vr(e1)}, 7, {vr(e0)}")
    g(f"v_bfe_u32 {vr(e1)}, {vr(vLane)}, 4, 1")
    g(f"v_lshl_add_u32 {vr(e0)}, {vr(e1)}, 6, {vr(e0)}")
    g(f"v_add_u32 {vr(e0)}, {sr(sTmp)}, {vr(e0)}")
    g(f"v_mul_f32 {vr(vCW)}, {vr(CORR)}, {vr(vW)}")
    xreduce("v_add_f32", vL, vT1)
    g(f"v_mul_f32 {vr(vL)}, {vr(vL)}, {vr(vW)}")
    g(f"v_readlane_b32 {sr(sMh)}, {vr(MX)}, 0")
    g(f"v_readlane_b32 {sr(sN)}, {vr(MX)}, 1")
    g(f"s_mov_b64 exec, {sr(sEp,2)}")
    for r in range(4): outw(0, r)
    g("s_mov_b64 exec, 3")
    g(f"ds_write_b32 {vr(vG)}, {vr(vL)} offset:{MLDS}")
    g("s_mov_b64 exec, -1")
    g(f"s_and_b32 {sr(sOwn0)}, s2, {NP-1}")
    g(f"s_lshl_b32 {sr(sTmp)}, {sr(sOwn0)}, 1")
    g(f"s_add_u32 {sr(sTmp)}, {sr(sTmp)}, {sr(sWave)}")
    g(f"s_lshl_b32 {sr(sTmp2)}, {sr(sWave)}, 3")
    g(f"s_and_b32 {sr(sTmp2)}, {sr(sTmp2)}, 8")
    g(f"s_cmp_lt_u32 {sr(sWave)}, 2")
    g(f"s_cselect_b32 {sr(sTmp)}, {sr(sTmp)}, {sr(sTmp2)}")
    g(f"s_cselect_b32 {sr(sTmp2)}, 7, 63")
    g(f"v_and_b32 {vr(e2)}, {sr(sTmp2)}, {vr(vLane)}")
    g(f"v_lshl_add_u32 {vr(e2)}, {sr(sTmp)}, 3, {vr(e2)}")
    g(f"v_lshlrev_b32 {vr(e3)}, 3, {vr(e2)}")
    g(f"s_cmp_lt_u32 {sr(sTmp)}, 8")
    g(f"s_cselect_b32 {sr(sMh)}, {sr(sMh)}, {sr(sN)}")
    g(f"s_cselect_b32 {sr(sTmp2)}, 0, 16")
    g(f"v_mov_b32 {vr(e1)}, {sr(sTmp2)}")
    g(f"s_mul_i32 {sr(sIn)}, {sr(sBH)}, {GS}")
    g(f"s_add_u32 {sr(sIn)}, {sr(sIn)}, 0x{XBASE:x}")
    g(f"s_mul_i32 {sr(sOwn1)}, {sr(sOwn0)}, {PS_}")
    g(f"s_add_u32 {sr(sOwn1)}, {sr(sOwn1)}, {sr(sIn)}")
    g(f"v_lshrrev_b32 {vr(vP)}, 3, {vr(e2)}")
    g(f"v_and_b32 {vr(vOa)}, 0x70, {vr(vO16)}")
    g(f"v_mul_u32_u24 {vr(vP)}, {RS}, {vr(vP)}")
    g(f"v_add_u32 {vr(vP)}, {vr(vP)}, {vr(vOa)}")
    g(f"v_lshrrev_b32 {vr(vIn)}, 3, {vr(vLane)}")
    g(f"v_mul_u32_u24 {vr(vIn)}, {PS_}, {vr(vIn)}")
    g(f"v_add_u32 {vr(vIn)}, {vr(vIn)}, {vr(vOa)}")
    g(f"s_mul_i32 {sr(sTmp)}, {sr(sTmp)}, {RS}")
    g(f"s_add_u32 {sr(sIn)}, {sr(sIn)}, {sr(sTmp)}")
    g(f"s_lshl_b32 {sr(sOwn0)}, {sr(sOwn0)}, 3")
    g(f"s_lshl_b64 {sr(sOwnM,2)}, 0xff, {sr(sOwn0)}")
    g(f"s_cmp_lt_u32 {sr(sWave)}, 2")
    g(f"s_cselect_b64 {sr(sOwnM,2)}, {sr(sOwnM,2)}, -1")
    g(f"v_bfe_u32 {vr(vOa)}, {vr(vLane)}, 4, 1")
    g(f"v_lshl_add_u32 {vr(vOa)}, {vr(e2)}, 1, {vr(vOa)}")
    g(f"v_lshlrev_b32 {vr(vOa)}, 1, {vr(vOa)}")
    g(f"v_mov_b32 {vr(FO+3)}, {sr(sTag)}")
    g(f"s_lshl_b32 {sr(sTmp2)}, {sr(sBH)}, 9")
    srd(sOUT, 18, 16384)
    for n in range(8, 16):
        g(f"s_waitcnt vmcnt({15-n})")
        vcvt(n)
    est(0)
    g("s_nop 1")
    vmfma(1)
    g(f"s_not_b64 exec, {sr(sOwnM,2)}")
    g("s_cbranch_scc0 L_nop1")
    poll(PA)
    g.label("L_nop1")
    g(f"s_mov_b64 exec, {sr(sEp,2)}")
    g("s_nop 6")
    for r in range(4): outw(1, r)
    g(f"s_mov_b64 exec, {'-1' if cfg.stamp else sr(sOwnM,2)}")
    if cfg.tlog:
        tlog()
        g(f"s_lshl_b32 s89, {sr(sWave)}, 9")
        g(f"s_add_u32 s89, s89, {TLDS}")
        g(f"v_lshlrev_b32 {vr(TMP)}, 3, {vr(vLane)}")
        g(f"v_add_u32 {vr(TMP+1)}, s89, {vr(TMP)}")
        g(f"ds_read_b64 {vr(TMP+2,2)}, {vr(TMP+1)}")
        g(f"s_mul_i32 s89, s2, {WPW}")
        g(f"s_add_u32 s89, s89, {sr(sWave)}")
        g("s_lshl_b32 s89, s89, 9")
        g("s_add_u32 s89, s89, 0x1400000")
        g("s_waitcnt lgkmcnt(0)")
        g(f"buffer_store_dwordx2 {vr(TMP+2,2)}, {vr(TMP)}, {sr(sWS,4)}, s89 offen")
    def stamp(slot):
        g("s_memrealtime s[86:87]")
        g(f"s_mul_i32 s89, s2, {WPW}")
        g(f"s_add_u32 s89, s89, {sr(sWave)}")
        g("s_lshl_b32 s89, s89, 4")
        g(f"s_add_u32 s89, s89, 0x{0x1000000 + slot*0x100000:x}")
        g("s_waitcnt lgkmcnt(0)")
        g(f"v_mov_b32 {vr(TMP)}, s84"); g(f"v_mov_b32 {vr(TMP+1)}, s86"); g(f"v_mov_b32 {vr(TMP+2)}, s88"); g(f"v_mov_b32 {vr(TMP+3)}, s94")
        g("s_mov_b64 s[90:91], exec")
        g("s_mov_b64 exec, 1")
        g(f"buffer_store_dwordx4 {vr(TMP,4)}, off, {sr(sWS,4)}, s89")
        g("s_mov_b64 exec, s[90:91]")
    if cfg.stamp: stamp(0)
    g("s_waitcnt lgkmcnt(0)")
    g("s_barrier")
    est(1)
    OP = 48; ML = 64
    if cfg.stamp: g(f"s_mov_b64 exec, {sr(sOwnM,2)}")
    g(f"ds_read_b128 {vr(ML,4)}, {vr(e1)} offset:{MLDS}")
    for w in range(WPW):
        g(f"ds_read2st64_b64 {vr(OP+4*w,4)}, {vr(e3)} offset0:{CLDS//512+4*w} offset1:{CLDS//512+4*w+2}")
    lg = lambda n: g(f"s_waitcnt lgkmcnt({0 if cfg.est else n})")
    lg(4)
    pk(ML, ML, ML+2)
    g(f"v_add_f32 {vr(ML)}, {vr(ML)}, {vr(ML+1)}")
    lg(3)
    pk(OP, OP, OP+2)
    g(f"v_log_f32 {vr(FO+2)}, {vr(ML)}")
    lg(2)
    pk(OP+4, OP+4, OP+6)
    g(f"v_rcp_f32 {vr(ML)}, {vr(ML)}")
    lg(1)
    pk(OP+8, OP+8, OP+10)
    pk(OP, OP, OP+4)
    lg(0)
    pk(OP+12, OP+12, OP+14)
    g(f"v_add_f32 {vr(FO+2)}, {sr(sMh)}, {vr(FO+2)}")
    pk(OP+8, OP+8, OP+12)
    pk(OP, OP, OP+8)
    g(f"v_mul_f32 {vr(FO)}, {vr(OP)}, {vr(ML)}")
    g(f"v_mul_f32 {vr(FO+1)}, {vr(OP+1)}, {vr(ML)}")
    g(f"s_cmp_lt_u32 {sr(sWave)}, 2")
    g("s_cbranch_scc1 L_poll")
    g(f"buffer_store_dwordx4 {vr(FO,4)}, {vr(vP)}, {sr(sWS,4)}, {sr(sOwn1)} offen {cfg.wfl}")
    if cfg.stamp:
        g("s_memrealtime s[84:85]")
        g("s_waitcnt vmcnt(0)")
        stamp(3)
    g("s_endpgm")
    g.label("L_again")
    g("s_mov_b64 exec, vcc")
    if cfg.stamp or cfg.drt:
        g("s_add_u32 s88, s88, 1")
        g("s_cmp_lg_u32 s88, 1")
        g("s_cbranch_scc1 L_nf")
        g("s_memrealtime s[84:85]")
        g.label("L_nf")
    if cfg.psl2:
        g(f"s_bcnt1_i32_b64 {sr(sTmp)}, exec")
        g(f"s_cmp_le_u32 {sr(sTmp)}, {8*cfg.psl}")
        g("s_cbranch_scc1 L_nsl")
        g(f"s_sleep {cfg.psl2}")
        g.label("L_nsl")
    poll(PA)
    g("s_branch L_poll2")
    g.label("L_poll")
    if cfg.stamp or cfg.drt: g("s_mov_b32 s88, 0")
    est(2)
    g(f"s_not_b64 exec, {sr(sOwnM,2)}")
    g.label("L_poll2")
    g("s_waitcnt vmcnt(0)")
    g(f"v_cmp_ne_u32 vcc, {sr(sTag)}, {vr(PA+3)}")
    g("s_cbranch_vccnz L_again")
    g("s_mov_b64 exec, -1")
    est(3); est(4)
    if cfg.stamp or cfg.drt: g("s_memrealtime s[94:95]")
    A_, B_, W_, T_ = FO, FO+1, FO+2, ML
    g(f"v_max_f32_dpp {vr(T_)}, {vr(W_)}, {vr(W_)} row_ror:8{dpp}")
    xreduce("v_max_f32", T_, T_+1)
    g(f"v_sub_f32 {vr(W_)}, {vr(W_)}, {vr(T_)}")
    g(f"v_exp_f32 {vr(W_)}, {vr(W_)}")
    g("s_nop 0")
    g(f"v_mul_f32 {vr(A_)}, {vr(A_)}, {vr(W_)}")
    g(f"v_mul_f32 {vr(B_)}, {vr(B_)}, {vr(W_)}")
    g(f"v_add_f32_dpp {vr(W_)}, {vr(W_)}, {vr(W_)} row_ror:8{dpp}")
    g(f"v_add_f32_dpp {vr(A_)}, {vr(A_)}, {vr(A_)} row_ror:8{dpp}")
    g(f"v_add_f32_dpp {vr(B_)}, {vr(B_)}, {vr(B_)} row_ror:8{dpp}")
    g(f"v_mov_b32 {vr(T_)}, {vr(W_)}")
    g("s_nop 0")
    g(f"v_permlane16_swap_b32 {vr(A_)}, {vr(B_)}")
    g(f"v_permlane16_swap_b32 {vr(W_)}, {vr(T_)}")
    g("s_nop 0")
    g(f"v_add_f32 {vr(A_)}, {vr(A_)}, {vr(B_)}")
    g(f"v_add_f32 {vr(W_)}, {vr(W_)}, {vr(T_)}")
    g(f"v_mov_b32 {vr(B_)}, {vr(A_)}")
    g(f"v_mov_b32 {vr(T_)}, {vr(W_)}")
    g("s_nop 0")
    g(f"v_permlane32_swap_b32 {vr(A_)}, {vr(B_)}")
    g(f"v_permlane32_swap_b32 {vr(W_)}, {vr(T_)}")
    g("s_nop 0")
    g(f"v_add_f32 {vr(A_)}, {vr(A_)}, {vr(B_)}")
    g(f"v_add_f32 {vr(W_)}, {vr(W_)}, {vr(T_)}")
    g(f"v_rcp_f32 {vr(W_)}, {vr(W_)}")
    g("s_mov_b64 exec, 0x00ff00ff")
    g(f"v_mul_f32 {vr(A_)}, {vr(A_)}, {vr(W_)}")
    est(5)
    g(f"v_cvt_pk_bf16_f32 {vr(A_)}, {vr(A_)}, {vr(A_)}")
    g(f"buffer_store_short {vr(A_)}, {vr(vOa)}, {sr(sOUT,4)}, {sr(sTmp2)} offen{cfg.osc}")
    if cfg.drt:
        g("s_cmp_eq_u32 s88, 0")
        g("s_cbranch_scc1 L_end")
        g("s_waitcnt lgkmcnt(0)")
        g("s_sub_u32 s89, s94, s84")
        g("s_getreg_b32 s90, hwreg(HW_REG_XCC_ID)")
        g("s_and_b32 s90, s90, 7")
        g("s_lshl_b32 s90, s90, 3")
        g("s_atomic_add_x2 s[88:89], s[20:21], s90")
    if cfg.stamp:
        est(6)
        g("s_waitcnt vmcnt(0)")
        est(7)
        stamp(1)
        if cfg.est:
            for k in range(8): g(f"v_mov_b32 v{32+k}, s{32+2*k}")
            g(f"s_lshl_b32 s89, {sr(sBH)}, 5")
            g("s_add_u32 s89, s89, 0x1200000")
            g("s_mov_b64 exec, 1")
            g(f"buffer_store_dwordx4 v[32:35], off, {sr(sWS,4)}, s89")
            g(f"buffer_store_dwordx4 v[36:39], off, {sr(sWS,4)}, s89 offset:16")
    g.label("L_end")
    g("s_endpgm")
    g.label("L_init")
    g(f"v_mul_u32_u24 {vr(t0)}, {CSTR}, {vr(vLane)}")
    g(f"s_mov_b64 exec, 0x{(1 << len(syncs)) - 1:x}")
    g(f"buffer_store_dwordx2 {vr(CORR,2)}, {vr(t0)}, {sr(sWS,4)}, {sr(sWOff)} offen sc1")
    g("s_mov_b64 exec, -1")
    g("s_branch L_noinit")
    g.label("L_slow")
    getm(" glc")
    g("s_waitcnt lgkmcnt(0)")
    weight("L_slow")
    g("s_branch L_tail2")
    g.label("L_lastk")
    srdp(sNx, 8)
    g(f"s_mov_b32 {sr(sNOff)}, {sr(sBase)}")
    g(f"v_lshrrev_b32 {vr(t0)}, 3, {vr(j_)}")
    g(f"v_and_b32 {vr(t1)}, 7, {vr(j_)}")
    g(f"v_lshlrev_b32 {vr(t1)}, 4, {vr(t1)}")
    g(f"v_lshl_add_u32 {vr(t1)}, {vr(t0)}, 9, {vr(t1)}")
    g(f"v_lshl_add_u32 {vr(vNx)}, {vr(g_)}, 15, {vr(t1)}")
    g.label("L_copied")
    g(f"v_readfirstlane_b32 {sr(sTmp)}, {vr(vA)}")
    g(f"s_cmp_ge_u32 {sr(sTmp)}, {WPW}")
    g(f"v_mov_b32 {vr(vA)}, 1")
    g("s_cbranch_scc1 L_lastkb")
    g(f"ds_read_b32 {vr(vA)}, {vr(vZero)} offset:{BLDS}")
    g("s_waitcnt lgkmcnt(0)")
    g("s_branch L_copied")
    ctl_blocks("k")
    ctl_blocks("v")
    g.lines.insert(len(g.lines) - 1, "L_last:")
    main = g.text()

    lds = TLDS + (2048 if cfg.tlog else 0)
    out = HEADER
    out += f"; @launch grid=({NWG},1,1) block=({WPW*64},1,1) lds={max(lds, cfg.lds)}\n"
    out += '.amdgcn_target "amdgcn-amd-amdhsa--gfx950"\n.text\n'
    out += f".globl {NAME}_kernel\n.p2align 8\n.type {NAME}_kernel,@function\n" + main
    out += '.section .rodata,"a"\n'
    out += (f".p2align 6\n.amdhsa_kernel {NAME}_kernel\n  .amdhsa_next_free_vgpr {NV}\n  .amdhsa_next_free_sgpr {NS}\n"
            f"  .amdhsa_accum_offset {NV}\n  .amdhsa_group_segment_fixed_size 0\n  .amdhsa_kernarg_size 80\n"
            "  .amdhsa_user_sgpr_count 2\n  .amdhsa_user_sgpr_kernarg_segment_ptr 1\n"
            "  .amdhsa_system_sgpr_workgroup_id_x 1\n.end_amdhsa_kernel\n")
    return out

if __name__ == "__main__":
    ap = argparse.ArgumentParser()
    ap.add_argument("-o", default="/dev/stdout")
    ap.add_argument("--stamp", type=int, default=0)
    ap.add_argument("--tlog", type=int, default=0)
    ap.add_argument("--pst", type=int, default=0)
    ap.add_argument("--d", type=int, default=5)
    ap.add_argument("--tiers", type=int, default=2)
    ap.add_argument("--first", type=int, default=6)
    ap.add_argument("--b2b", type=int, default=0)
    ap.add_argument("--lds", type=int, default=0)
    ap.add_argument("--ctlpos", type=int, default=8)
    ap.add_argument("--tpos", type=int, default=14)
    ap.add_argument("--rpos", type=int, default=12)
    ap.add_argument("--si", type=int, default=4)
    ap.add_argument("--s0", type=int, default=2)
    ap.add_argument("--rd", type=int, default=2)
    ap.add_argument("--rglc", type=int, default=0)
    ap.add_argument("--radd", type=int, default=0)
    ap.add_argument("--slow", type=int, default=4)
    ap.add_argument("--law", default="60:16,-25:-1,-50:-2,-80:-3")
    ap.add_argument("--cap", default="2:4")
    ap.add_argument("--wsc", type=int, default=1)
    ap.add_argument("--fslot", type=int, default=45)
    ap.add_argument("--diag", default="")
    ap.add_argument("--base", type=int, default=0)
    ap.add_argument("--law2", default="90:16")
    ap.add_argument("--tlb", type=int, default=0)
    ap.add_argument("--dnt", type=int, default=1)
    ap.add_argument("--tlbs", type=int, default=25)
    ap.add_argument("--est", type=int, default=0)
    ap.add_argument("--ebs", type=int, default=3)
    ap.add_argument("--ebl", type=int, default=0)
    ap.add_argument("--cpf", type=int, default=1)
    ap.add_argument("--rot", default="")
    ap.add_argument("--late", default="")
    ap.add_argument("--latecap", type=int, default=1)
    ap.add_argument("--eb", default="")
    ap.add_argument("--spec", type=int, default=1)
    ap.add_argument("--osc", default="")
    ap.add_argument("--bpos", type=int, default=0)
    ap.add_argument("--np", type=int, default=2)
    ap.add_argument("--drt", type=int, default=0)
    ap.add_argument("--xoff", type=int, default=0)
    ap.add_argument("--pres", type=int, default=0)
    ap.add_argument("--prev", type=int, default=0)
    ap.add_argument("--prer", type=int, default=0)
    ap.add_argument("--prew", type=int, default=0)
    ap.add_argument("--pfl", default="sc1")
    ap.add_argument("--lay", default="1024:128:16384")
    ap.add_argument("--psl", type=int, default=3)
    ap.add_argument("--psl2", type=int, default=0)
    ap.add_argument("--wfl", default="sc1")
    ap.add_argument("--rfl", default="sc1")
    cfg = ap.parse_args()
    open(cfg.o, "w").write(build(cfg))
```

```python
import sys, argparse, math, struct
from gen import Gen, vr, sr, HEADER, NAME, f32bits

def build(cfg):
    WPW = 4; NWG = 256; NP = 8
    MLBASE = 32 * NP * 1024
    I = cfg.si; LI = int(math.log2(I)); RD = cfg.rd
    syncs = list(range(cfg.s0, 64 - RD, I))
    wmask = sum(1 << c for c in syncs); rmask = sum(1 << (c + RD) for c in syncs)
    assert len(syncs) <= 32 and (wmask & rmask) == 0 and 1 << LI == I
    SU = [1, 3, 5, 29]
    FS = [cfg.fslot, cfg.fslot + 2]
    omask = sum(1 << c for c in SU + FS)
    assert all(c % 2 == 0 for c in syncs) and RD % 2 == 0 and cfg.fslot % 2 == 1 and cfg.fslot > 32
    CBASE = 0x50000; CSTR = 4352
    XBASE = 0x80000 + cfg.xoff
    RS, PS_, GS = [int(x) for x in cfg.lay.split(":")]
    WSBYTES = XBASE + 32 * GS
    D, LA = cfg.d, 8
    assert D + cfg.tiers <= LA
    nt = " nt"
    g = Gen()
    vB, vKC, vVA, vNx, vZero, vS, vLds, vLane, vM, vL, vT1, vBias = range(12)
    vSelS, vSelZ, vMa, vMb = 12, 13, 14, 15
    Q = 16
    NB = 32
    TK = 36
    TV = 36
    DK = 52
    X = 68
    VS = 72; VZ = 76; U = 80; P = 84; ZA = 86; WP = 88
    vA, vOne, vO16, vO8 = 92, 93, 94, 95
    O = 96
    CORR = 128
    RAW = 132
    SM = 196
    vW, vG, vCW, vP, vOa, vCnt, vIn = range(220, 227)
    MX = 228
    TMP = 244
    PT = 204
    NV = 256
    sK, sV, sVS, sVZ, sQ, sKS, sKZ, sWS, sDBG, sOUT, sNx = 24, 28, 32, 36, 40, 44, 48, 52, 76, 76, 96
    sWave, sUnit, sCur, sNOff, sDelta, sN, sTmp, sTmp2, sBH, sBase = 56, 57, 58, 59, 60, 61, 62, 63, 64, 65
    sJ4 = 66; sHi = 68; sC = 69; sExec = 70; sHd = 80; sEp = 82; sCk = 92
    sL, sPend, sSlot, sWOff, sROff = 4, 5, 13, 100, 101
    sTgt, sA, sRate, sPm, sPrev, sOk, sEn, sCr, sFlag = 12, 11, 10, 14, 3, 28, 29, 30, 31
    sOwn0, sOwn1 = 16, 17
    sT, sSy, sSw, sCkW = 40, 42, 44, 46
    sReg = 72
    sOwnM, sRdy, sTag, sIn, sMh = 48, 50, 51, 73, 74
    NS = 102
    LV = 32768
    CLDS = 49152
    MLDS = CLDS + 8192
    XLDS = MLDS + 32
    BLDS = MLDS + WPW * 16
    TLDS = BLDS + 16
    dpp = " row_mask:0xf bank_mask:0xf"

    g.label(f"{NAME}_kernel")
    g(f"s_cmp_ge_u32 s2, {NWG}")
    g("s_cbranch_scc1 L_end")
    g("s_load_dwordx4 s[4:7], s[0:1], 0")
    g("s_load_dwordx4 s[8:11], s[0:1], 16")
    g("s_load_dwordx8 s[12:19], s[0:1], 32")
    g("s_load_dwordx4 s[20:23], s[0:1], 64")
    if cfg.cpf:
        g(f"s_getpc_b64 {sr(sExec,2)}")
        g.label("L_pc")
        g(f"v_lshlrev_b32 {vr(TMP+4)}, 6, v0")
        g(f"v_min_u32 {vr(TMP+4)}, L_last-L_pc, {vr(TMP+4)}")
        g(f"global_load_dword {vr(TMP+5)}, {vr(TMP+4)}, {sr(sExec,2)}")
    if cfg.stamp:
        g("s_memrealtime s[84:85]")
        g("s_getreg_b32 s88, hwreg(HW_REG_XCC_ID)")
    w_, j_, g_, a_, b_, g1, g2, hd, pr, t0, t1, oS, l8, qa = range(PT, PT + 14)
    g(f"v_and_b32 {vr(vLane)}, 63, v0")
    g(f"v_lshrrev_b32 {vr(w_)}, 6, v0")
    g(f"v_and_b32 {vr(j_)}, 15, {vr(vLane)}")
    g(f"v_lshrrev_b32 {vr(g_)}, 4, {vr(vLane)}")
    g(f"v_readfirstlane_b32 {sr(sWave)}, {vr(w_)}")
    g(f"v_lshrrev_b32 {vr(a_)}, 2, {vr(j_)}")
    g(f"v_and_b32 {vr(b_)}, 3, {vr(j_)}")
    g(f"v_and_b32 {vr(g1)}, 1, {vr(g_)}")
    g(f"v_lshrrev_b32 {vr(g2)}, 1, {vr(g_)}")
    g(f"v_lshlrev_b32 {vr(t0)}, 15, {vr(a_)}")
    g(f"v_lshl_add_u32 {vr(t0)}, {vr(g2)}, 9, {vr(t0)}")
    g(f"v_lshl_add_u32 {vr(t0)}, {vr(g1)}, 6, {vr(t0)}")
    g(f"v_lshl_add_u32 {vr(vKC)}, {vr(b_)}, 4, {vr(t0)}")
    g(f"v_lshlrev_b32 {vr(l8)}, 3, {vr(vLane)}")
    g(f"v_and_b32 {vr(oS)}, 0xff, {vr(l8)}")
    g(f"v_lshlrev_b32 {vr(vO16)}, 4, {vr(vLane)}")
    g(f"s_lshr_b32 {sr(sUnit)}, s2, 2")
    g(f"s_lshr_b32 {sr(sBH)}, s2, 3")
    g(f"s_lshl_b32 {sr(sBase)}, s2, 9")
    g(f"s_add_u32 {sr(sBase)}, {sr(sBase)}, {sr(sWave)}")
    g(f"s_lshl_b32 {sr(sBase)}, {sr(sBase)}, 12")
    if cfg.rot:
        rm, rs = [int(x) for x in cfg.rot.split(":")]
        g(f"s_mul_i32 {sr(sReg)}, s2, {rm}")
        g(f"s_lshr_b32 {sr(sReg)}, {sr(sReg)}, {rs}")
        g(f"s_and_b32 {sr(sReg)}, {sr(sReg)}, 15")
        g(f"s_lshl_b32 {sr(sReg)}, {sr(sReg)}, 17")
        g(f"s_add_u32 {sr(sBase)}, {sr(sBase)}, {sr(sReg)}")
        g(f"s_lshl_b32 {sr(sReg)}, s2, 21")
    g(f"s_lshl_b32 {sr(sTmp)}, {sr(sBH)}, 9")
    g(f"s_lshl_b32 {sr(sTmp2)}, {sr(sUnit)}, 8")
    for d in (sK, sQ, sKS, sKZ, sVS, sVZ, sWS):
        g(f"s_mov_b32 {sr(d+3)}, 0x00020000")
    g(f"s_mov_b32 {sr(sK+2)}, 0x20000000")
    for d in (sQ, sKS, sKZ): g(f"s_mov_b32 {sr(d+2)}, 0x4000")
    for d in (sVS, sVZ): g(f"s_mov_b32 {sr(d+2)}, 0x200000")
    g(f"s_mov_b32 {sr(sWS+2)}, 0x{WSBYTES if not (cfg.stamp or cfg.drt) else 0x2000000:x}")
    g(f"s_lshl_b32 {sr(sN)}, s2, 13")
    g(f"s_lshl_b32 {sr(sDelta)}, {sr(sWave)}, 11")
    g(f"s_add_u32 {sr(sN)}, {sr(sN)}, {sr(sDelta)}")
    g(f"s_add_u32 m0, {sr(sDelta)}, {LV}")
    sOwn = 75
    if cfg.prew:
        g(f"s_lshr_b32 {sr(sOwn)}, {sr(sN)}, 2")
        g(f"s_add_u32 {sr(sOwn)}, {sr(sOwn)}, 0x{XBASE:x}")
        for r in range(2): g(f"v_mov_b32 {vr(CORR+r)}, 0")
    if cfg.tlog:
        g(f"s_lshl_b32 s89, {sr(sWave)}, 9")
        g(f"s_add_u32 s89, s89, {TLDS}")
    g("s_waitcnt lgkmcnt(0)")
    def pst():
        if not cfg.pst: return
        g("s_memrealtime s[90:91]")
        g("s_waitcnt lgkmcnt(0)")
        g("s_lshl_b32 s90, s90, 7")
        g(f"v_mov_b32 {vr(TMP+2)}, s90")
        g(f"v_mov_b32 {vr(TMP+3)}, s89")
        g(f"ds_write_b32 {vr(TMP+3)}, {vr(TMP+2)}")
        g("s_add_u32 s89, s89, 4")
    pst()
    def srdp(d, p):
        g(f"s_mov_b32 {sr(d)}, {sr(p)}")
        g(f"s_and_b32 {sr(d+1)}, {sr(p+1)}, 0xffff")
    def srd(d, p, nbytes):
        srdp(d, p)
        g(f"s_mov_b32 {sr(d+2)}, 0x{nbytes:x}")
        g(f"s_mov_b32 {sr(d+3)}, 0x00020000")
    def big(n, va, sd, so):
        s_, u = n >> 2, n & 3
        g(f"buffer_load_dwordx4 {vr(RAW+4*n,4)}, {vr(va)}, {sr(sd,4)}, {sr(so)} offen offset:{u*1024+s_*128}{nt}")
    RQ, RKS, RZ = SM, SM + 2, SM + 4
    F = cfg.first
    srdp(sK, 6)
    def prew():
        assert cfg.lay == "128:2048:16384"
        srdp(sWS, 22)
        g(f"buffer_store_dwordx2 {vr(CORR,2)}, {vr(l8)}, {sr(sWS,4)}, {sr(sOwn)} offen {cfg.pfl}")
    if cfg.prew == 1: prew()
    for n in range(F):
        big(n, vKC, sK, sBase)
        if cfg.prew == n + 2: prew()
    pst()
    srdp(sQ, 4); srdp(sKS, 10); srdp(sKZ, 12)
    g(f"buffer_load_dwordx2 {vr(RQ,2)}, {vr(l8)}, {sr(sQ,4)}, {sr(sTmp)} offen{nt if cfg.dnt > 1 else ''}")
    g(f"buffer_load_dwordx2 {vr(RKS,2)}, {vr(oS)}, {sr(sKS,4)}, {sr(sTmp2)} offen{nt if cfg.dnt > 1 else ''}")
    g(f"buffer_load_dwordx2 {vr(RZ,2)}, {vr(oS)}, {sr(sKZ,4)}, {sr(sTmp2)} offen{nt if cfg.dnt > 1 else ''}")
    srdp(sVS, 14); srdp(sVZ, 16)
    for x in range(2):
        g(f"buffer_load_dwordx4 {vr(vO16)}, {sr(sVS,4)}, {sr(sN)} offen offset:{1024*x}{nt if cfg.dnt else ''} lds")
    g(f"s_add_u32 m0, {sr(sDelta)}, {LV+8192}")
    srdp(sWS, 22)
    for x in range(2):
        g(f"buffer_load_dwordx4 {vr(vO16)}, {sr(sVZ,4)}, {sr(sN)} offen offset:{1024*x}{nt if cfg.dnt else ''} lds")
    pst()
    srd(sNx, 6, 0x20000000)
    g(f"s_mov_b32 {sr(sHi)}, 0xffff0000")
    g(f"s_mov_b32 {sr(sC)}, 0x{f32bits((128.0 ** -0.5) * math.log2(math.e)):08x}")
    g(f"v_and_b32 {vr(hd)}, 1, {vr(j_)}")
    g(f"v_bfe_u32 {vr(pr)}, {vr(j_)}, 1, 1")
    g(f"v_mov_b32 {vr(vNx)}, {vr(vKC)}")
    g(f"v_lshl_add_u32 {vr(t0)}, {vr(g_)}, 2, {vr(b_)}")
    g(f"v_lshlrev_b32 {vr(t0)}, 4, {vr(t0)}")
    g(f"v_lshl_add_u32 {vr(vLds)}, {vr(w_)}, 13, {vr(t0)}")
    g(f"v_xor_b32 {vr(t0)}, {vr(pr)}, {vr(g2)}")
    g(f"v_lshl_add_u32 {vr(qa)}, {vr(g1)}, 2, {vr(a_)}")
    g(f"v_lshl_add_u32 {vr(qa)}, {vr(hd)}, 5, {vr(qa)}")
    g(f"v_lshl_add_u32 {vr(qa)}, {vr(t0)}, 6, {vr(qa)}")
    g(f"v_lshl_add_u32 {vr(qa)}, {vr(w_)}, 7, {vr(qa)}")
    g(f"v_lshlrev_b32 {vr(qa)}, 4, {vr(qa)}")
    g(f"v_add_u32 {vr(qa)}, {CLDS}, {vr(qa)}")
    g(f"v_lshl_add_u32 {vr(l8)}, {vr(w_)}, 11, {vr(vO16)}")
    for r in range(4): g(f"v_mov_b32 {vr(CORR+r)}, 0")
    g(f"v_cmp_gt_u32 {sr(sJ4,2)}, 4, {vr(j_)}")
    g(f"v_cmp_ne_u32 {sr(sHd,2)}, 0, {vr(hd)}")
    g(f"ds_write_b128 {vr(l8)}, {vr(CORR,4)} offset:{CLDS+1024}")
    g(f"v_mov_b32 {vr(vZero)}, 0")
    g(f"ds_write_b32 {vr(CORR)}, {vr(CORR)} offset:{BLDS}")
    g(f"v_mov_b32 {vr(vM)}, 0xff7fffff")
    g(f"s_mov_b32 {sr(sWOff)}, 0x{CBASE:x}")
    g(f"s_mov_b32 {sr(sROff)}, 0x{CBASE:x}")
    def pres():
        assert cfg.lay == "128:2048:16384"
        g(f"s_lshl_b32 {sr(sTmp)}, s2, 2")
        g(f"s_add_u32 {sr(sTmp)}, {sr(sTmp)}, {sr(sWave)}")
        g(f"s_lshl_b32 {sr(sTmp)}, {sr(sTmp)}, 9")
        g(f"s_add_u32 {sr(sTmp)}, {sr(sTmp)}, 0x{XBASE:x}")
        if cfg.prev:
            g(f"v_lshlrev_b32 {vr(vIn)}, 3, {vr(vLane)}")
            g(f"buffer_load_dwordx2 v[196:197], {vr(vIn)}, {sr(sWS,4)}, {sr(sTmp)} offen")
            return
        for i in range(8):
            g(f"s_load_dword {sr(sIn)}, s[22:23], {sr(sTmp)}")
            if i < 7: g(f"s_add_u32 {sr(sTmp)}, {sr(sTmp)}, 64")
    def setup(k):
        if k == 0:
            g(f"v_lshrrev_b32 {vr(t0)}, 3, {vr(j_)}")
            g(f"v_mul_u32_u24 {vr(t0)}, 0x0202, {vr(t0)}")
            g(f"v_lshl_add_u32 {vr(t0)}, {vr(t0)}, 16, {vr(t0)}")
            g(f"v_add_u32 {vr(vSelZ)}, 0x05040100, {vr(t0)}")
            g(f"v_mul_u32_u24 {vr(t0)}, 0x0202, {vr(pr)}")
            g(f"v_lshlrev_b32 {vr(t0)}, 16, {vr(t0)}")
            g(f"v_add_u32 {vr(vSelS)}, 0x01000c0c, {vr(t0)}")
            g(f"v_bfe_u32 {vr(t0)}, {vr(j_)}, 2, 1")
            g(f"v_sub_u32 {vr(vMb)}, 0, {vr(t0)}")
            g(f"v_not_b32 {vr(vMa)}, {vr(vMb)}")
            g(f"v_lshlrev_b32 {vr(vVA)}, 7, {vr(g_)}")
            g(f"s_bfe_u32 {sr(sTmp)}, {sr(sBase)}, 0xd0008")
            g(f"v_add_u32 {vr(vVA)}, {LV}, {vr(vVA)}")
            g(f"v_add_u32 {vr(vS)}, {sr(sTmp)}, {vr(vVA)}")
            g(f"v_cmp_eq_u32 {sr(sEp,2)}, {vr(pr)}, {vr(g2)}")
            g(f"v_cmp_gt_u32 vcc, 8, {vr(j_)}")
            g(f"v_mov_b32 {vr(vL)}, 0")
            g(f"s_and_b64 {sr(sEp,2)}, {sr(sEp,2)}, vcc")
            g(f"s_mov_b32 {sr(sRdy)}, 0")
            g(f"s_lshl_b32 {sr(sTmp)}, {sr(sWave)}, 2")
            g(f"v_lshl_add_u32 {vr(vG)}, {vr(hd)}, 4, {sr(sTmp)}")
            g(f"s_and_b32 {sr(sTmp)}, s2, {NP-1}")
            g(f"s_or_b32 {sr(sTmp)}, {sr(sTmp)}, {sr(sWave)}")
            g("s_cbranch_scc1 L_nckk")
            g(f"s_lshl_b32 {sr(sTmp)}, {sr(sBH)}, 2")
            if cfg.drt: g(f"s_add_u32 {sr(sTmp)}, {sr(sTmp)}, 128")
            g(f"s_or_b32 {sr(sTag)}, {sr(sT)}, 1")
            g(f"s_atomic_add {sr(sTag)}, s[20:21], {sr(sTmp)}")
        elif k in (1, 2):
            if k == 1:
                g(f"v_mov_b32 {vr(vA)}, 1")
                g("s_mov_b64 exec, 1")
                g(f"ds_add_u32 {vr(vZero)}, {vr(vA)} offset:{BLDS}")
                g("s_mov_b64 exec, -1")
            for r in range(16): g(f"v_mov_b32 {vr(O+16*(k-1)+r)}, 0")
            if k == 2 and cfg.pres == 2: pres()
        elif k == 3:
            g(f"ds_read_b32 {vr(vA)}, {vr(vZero)} offset:{BLDS}")
    g(f"s_or_b32 {sr(sTmp)}, s2, {sr(sWave)}")
    g(f"s_cmp_eq_u32 {sr(sTmp)}, 0")
    g("s_cbranch_scc1 L_init")
    g.label("L_noinit")
    g(f"s_mov_b32 {sr(sCur)}, {sr(sBase)}")
    g(f"s_mov_b32 {sr(sDelta)}, 0x4000")
    g(f"s_mov_b32 {sr(sPend)}, 0")
    g(f"s_mov_b32 {sr(sSlot)}, 0")
    for r in (sTgt, sRate, sPrev): g(f"s_mov_b32 {sr(r)}, 0")
    for r in (sOk, sCr, sT): g(f"s_mov_b64 {sr(r,2)}, 0")
    g(f"s_and_b32 {sr(sTmp)}, s2, 0x38")
    g(f"s_lshr_b32 {sr(sTmp2)}, s2, 6")
    g(f"s_xor_b32 {sr(sTmp2)}, {sr(sTmp2)}, {sr(sWave)}")
    g(f"s_or_b32 {sr(sTmp)}, {sr(sTmp)}, {sr(sTmp2)}")
    g(f"s_cmp_eq_u32 {sr(sTmp)}, 0")
    g(f"s_cselect_b32 {sr(sCkW)}, 0x{wmask & 0xffffffff:x}, 0")
    g(f"s_cselect_b32 {sr(sCkW+1)}, 0x{wmask >> 32:x}, 0")
    g(f"s_or_b32 {sr(sCk)}, {sr(sCkW)}, 0x{(rmask | omask) & 0xffffffff:x}")
    g(f"s_or_b32 {sr(sCk+1)}, {sr(sCkW+1)}, 0x{(rmask | omask) >> 32:x}")
    pst()

    def xreduce(op, v, t, both=True):
        g(f"v_mov_b32 {vr(t)}, {vr(v)}")
        g("s_nop 1")
        g(f"v_permlane16_swap_b32 {vr(v)}, {vr(t)}")
        g("s_nop 1")
        g(f"{op} {vr(v)}, {vr(v)}, {vr(t)}")
        if not both: return
        g(f"v_mov_b32 {vr(t)}, {vr(v)}")
        g("s_nop 1")
        g(f"v_permlane32_swap_b32 {vr(v)}, {vr(t)}")
        g("s_nop 1")
        g(f"{op} {vr(v)}, {vr(v)}, {vr(t)}")
    def prep(part):
        a0, a1, b0, b1, z0, z1, h0, h1 = range(VS, VS + 8)
        HL = U
        for y in range(2 if part == 0 else 0):
            g(f"v_lshlrev_b32 v{a0}, 16, {vr(RQ+y)}")
            g(f"v_and_b32 v{a1}, {sr(sHi)}, {vr(RQ+y)}")
            g(f"v_lshlrev_b32 v{b0}, 16, {vr(RKS+y)}")
            g(f"v_and_b32 v{b1}, {sr(sHi)}, {vr(RKS+y)}")
            g(f"v_lshlrev_b32 v{z0}, 16, {vr(RZ+y)}")
            g(f"v_and_b32 v{z1}, {sr(sHi)}, {vr(RZ+y)}")
            g(f"v_mul_f32 v{a0}, v{a0}, v{b0}")
            g(f"v_mul_f32 v{a1}, v{a1}, v{b1}")
            g(f"v_mul_f32 v{a0}, {sr(sC)}, v{a0}")
            g(f"v_mul_f32 v{a1}, {sr(sC)}, v{a1}")
            g(f"v_cvt_pk_bf16_f32 {vr(HL+y)}, v{a0}, v{a1}")
            if y == 0: g(f"v_mul_f32 {vr(vBias)}, v{a0}, v{z0}")
            else: g(f"v_fmac_f32 {vr(vBias)}, v{a0}, v{z0}")
            g(f"v_fmac_f32 {vr(vBias)}, v{a1}, v{z1}")
            g(f"v_lshlrev_b32 v{h0}, 16, {vr(HL+y)}")
            g(f"v_and_b32 v{h1}, {sr(sHi)}, {vr(HL+y)}")
            g(f"v_sub_f32 v{a0}, v{a0}, v{h0}")
            g(f"v_sub_f32 v{a1}, v{a1}, v{h1}")
            g(f"v_cvt_pk_bf16_f32 {vr(HL+2+y)}, v{a0}, v{a1}")
        if part == 0:
            g(f"ds_write_b128 {vr(l8)}, {vr(HL,4)} offset:{CLDS}")
            return
        for m in range(2):
            g(f"ds_read2_b64 {vr(Q+8*m,4)}, {vr(qa)} offset0:{32*m} offset1:{32*m+16}")
            g(f"ds_read2_b64 {vr(Q+8*m+4,4)}, {vr(qa)} offset0:{32*m+1} offset1:{32*m+17}")
        for r in (1, 2, 4, 8):
            g(f"v_add_f32_dpp {vr(vBias)}, {vr(vBias)}, {vr(vBias)} row_ror:{r}{dpp}")
            g("s_nop 1")
        xreduce("v_add_f32", vBias, vT1, both=False)
        g(f"v_mul_f32 {vr(vBias)}, 0xbe800000, {vr(vBias)}")
        g("s_nop 0")
        g(f"v_readlane_b32 {sr(sTmp)}, {vr(vBias)}, 0")
        g(f"v_readlane_b32 {sr(sTmp2)}, {vr(vBias)}, 32")
        g("s_nop 1")
        g(f"v_mov_b32 {vr(NB)}, {sr(sTmp)}")
        g(f"v_mov_b32 {vr(vT1)}, {sr(sTmp2)}")
        g(f"v_cndmask_b32 {vr(NB)}, {vr(NB)}, {vr(vT1)}, {sr(sHd,2)}")
        for r in range(1, 4):
            g(f"v_mov_b32 {vr(NB+r)}, {vr(NB)}")

    def tlog():
        if not cfg.tlog: return
        g("s_memrealtime s[90:91]")
        g("s_waitcnt lgkmcnt(0)")
        g("s_lshl_b32 s90, s90, 7")
        g(f"s_add_u32 s91, {sr(sL)}, 32")
        g("s_and_b32 s91, s91, 127")
        g("s_or_b32 s90, s90, s91")
        g(f"v_mov_b32 {vr(TMP)}, s90")
        g(f"v_mov_b32 {vr(TMP+1)}, s89")
        g(f"ds_write_b32 {vr(TMP+1)}, {vr(TMP)}")
        g("s_add_u32 s89, s89, 4")
    def br4(n): return int(f"{n:04b}"[::-1], 2)
    def issue(ph, n, va, sd):
        tiers = 3 if ph == "v" and cfg.ebl and cfg.ebs <= n < 8 else cfg.tiers
        for t in range(tiers, 0, -1):
            g(f"s_cmp_gt_i32 {sr(sL)}, {br4(n) + 16*(t-1)}")
            g(f"s_cbranch_scc1 L_{ph}w{n}_{t}")
        if cfg.slow and br4(n) < cfg.slow:
            g(f"s_cmp_lt_i32 {sr(sL)}, {-br4(n)}")
            g(f"s_cbranch_scc0 L_{ph}w{n}_0")
            g(f"s_waitcnt vmcnt({D-2})")
        for t in range(tiers + 1):
            g.label(f"L_{ph}w{n}_{t}")
            g(f"s_waitcnt vmcnt({D-1+t})")
        if n < 16 - LA: big(n + LA, va, sd, sCur)
        else: big(n + LA - 16, vNx, sNx, sNOff)
    def top(ph):
        g("s_waitcnt lgkmcnt(0)")
        g(f"s_lshl_b32 {sr(sA)}, {sr(sT)}, 5")
        g(f"s_sub_u32 {sr(sA)}, {sr(sA)}, {sr(sTgt)}")
        g(f"s_add_u32 {sr(sTgt)}, {sr(sTgt)}, {sr(sRate)}")
        g(f"s_and_b32 {sr(sA)}, {sr(sA)}, {sr(sEn)}")
        g(f"s_mov_b32 {sr(sL)}, {cfg.base}")
        for e in cfg.law.split(","):
            th, lv = [int(x) for x in e.split(":")]
            g(f"s_cmp_{'gt' if th > 0 else 'lt'}_i32 {sr(sA)}, {th * 32}")
            g(f"s_cselect_b32 {sr(sL)}, {lv}, {sr(sL)}")
        def late():
            for e in cfg.late.split(","):
                sl, th, lv = [int(x) for x in e.split(":")]
                g(f"s_cmp_ge_u32 {sr(sSlot)}, {sl}")
                g(f"s_cselect_b32 {sr(sTmp2)}, {sr(sA)}, 0")
                g(f"s_cmp_{'gt' if th > 0 else 'lt'}_i32 {sr(sTmp2)}, {th * 32}")
                g(f"s_cselect_b32 {sr(sL)}, {lv}, {sr(sL)}")
        if cfg.late and ph == "v" and cfg.latecap: late()
        if cfg.cap:
            cc, cm = [int(x) for x in cfg.cap.split(":")]
            g(f"s_add_u32 {sr(sCr)}, {sr(sCr)}, 1")
            g(f"s_min_u32 {sr(sCr)}, {sr(sCr)}, {cm}")
            g(f"s_cmp_ge_u32 {sr(sCr)}, {cc}")
            g(f"s_cselect_b32 {sr(sTmp2)}, 64, 0")
            g(f"s_min_i32 {sr(sL)}, {sr(sL)}, {sr(sTmp2)}")
            g(f"s_cmp_gt_i32 {sr(sL)}, 0")
            g(f"s_cselect_b32 {sr(sTmp2)}, {cc}, 0")
            g(f"s_sub_u32 {sr(sCr)}, {sr(sCr)}, {sr(sTmp2)}")
        if cfg.law2:
            for e in cfg.law2.split(","):
                th, lv = [int(x) for x in e.split(":")]
                g(f"s_cmp_gt_i32 {sr(sA)}, {th * 32}")
                g(f"s_cselect_b32 {sr(sL)}, {lv}, {sr(sL)}")
        if cfg.late and ph == "v" and not cfg.latecap: late()
        if cfg.diag and ph == cfg.diag[0]:
            g(f"s_bitcmp{cfg.diag[1]}_b32 s2, 7")
            g(f"s_cselect_b32 {sr(sL)}, -4, {sr(sL)}")
        if ph == "v" and cfg.eb:
            for e in cfg.eb.split(","):
                sl, am = e.split(":")
                g(f"s_cmp_ge_u32 {sr(sSlot)}, {sl}")
                g(f"s_cselect_b32 {sr(sA)}, {am}, 0")
                g(f"s_add_u32 {sr(sL)}, {sr(sL)}, {sr(sA)}")
        tlog()
    def ctl_hooks(ph, n):
        if n == 0:
            g(f"s_bitcmp1_b64 {sr(sCk,2)}, {sr(sSlot)}")
            g(f"s_cbranch_scc1 L_ck{ph}")
            g.label(f"L_nck{ph}")
            g(f"s_add_u32 {sr(sSlot)}, {sr(sSlot)}, 1")
        if n == cfg.ctlpos:
            g(f"s_cmp_lg_u32 {sr(sPend)}, 0")
            g(f"s_cbranch_scc1 L_ctl{ph}")
            g.label(f"L_cb{ph}")
        if n == cfg.tpos:
            g(f"s_memrealtime {sr(sT,2)}")
    def getm(fl):
        g(f"s_lshl_b32 {sr(sTmp)}, {sr(sBH)}, 2")
        if cfg.drt: g(f"s_add_u32 {sr(sTmp)}, {sr(sTmp)}, 128")
        g(f"s_load_dword {sr(sTag)}, s[20:21], {sr(sTmp)}{fl}")
        g(f"v_and_b32 {vr(vW)}, 16, {vr(vG)}")
        g(f"ds_read_b32 {vr(vCnt)}, {vr(vZero)} offset:{BLDS}")
        g(f"ds_read_b128 {vr(MX,4)}, {vr(vW)} offset:{XLDS}")
    def weight(no):
        g(f"v_readfirstlane_b32 {sr(sTmp)}, {vr(vCnt)}")
        g(f"v_max_f32 {vr(MX)}, {vr(MX)}, {vr(MX+1)}")
        g(f"s_cmp_eq_u32 {sr(sTag)}, 0")
        g(f"s_cbranch_scc1 {no}")
        g(f"s_cmp_lg_u32 {sr(sTmp)}, {2*WPW}")
        g(f"s_cbranch_scc1 {no}")
        g(f"v_max3_f32 {vr(MX)}, {vr(MX)}, {vr(MX+2)}, {vr(MX+3)}")
        g(f"v_sub_f32 {vr(vW)}, {vr(vM)}, {vr(MX)}")
        g(f"v_exp_f32 {vr(vW)}, {vr(vW)}")
        g(f"s_mov_b32 {sr(sRdy)}, 2")
    def ctl_blocks(ph):
        g.label(f"L_ck{ph}")
        g(f"s_bitcmp1_b32 {sr(sSlot)}, 0")
        g(f"s_cbranch_scc1 L_odd{ph}")
        g(f"s_bitcmp1_b64 {sr(sCkW,2)}, {sr(sSlot)}")
        g(f"s_cbranch_scc1 L_pub{ph}")
        g(f"s_load_dwordx2 {sr(sSy,2)}, s[22:23], {sr(sROff)}{' glc' if cfg.rglc else ''}")
        g(f"s_mov_b32 {sr(sPend)}, 1")
        g(f"s_add_u32 {sr(sROff)}, {sr(sROff)}, {CSTR}")
        g(f"s_branch L_nck{ph}")
        g.label(f"L_pub{ph}")
        g(f"s_mov_b32 {sr(sSw)}, 1")
        g(f"s_mov_b32 {sr(sSw+1)}, {sr(sT)}")
        g(f"s_atomic_add_x2 {sr(sSw,2)}, s[22:23], {sr(sWOff)}")
        g(f"s_add_u32 {sr(sWOff)}, {sr(sWOff)}, {CSTR}")
        g(f"s_branch L_nck{ph}")
        g.label(f"L_odd{ph}")
        if ph == "k":
            for k in range(1, len(SU)):
                g(f"s_cmp_eq_u32 {sr(sSlot)}, {SU[k]}")
                g(f"s_cbranch_scc1 L_su{k}")
            for k in range(len(SU)):
                g.label(f"L_su{k}")
                setup(k)
                g(f"s_branch L_nck{ph}")
        else:
            g(f"s_cmp_eq_u32 {sr(sSlot)}, {FS[1]}")
            g("s_cbranch_scc1 L_fs1")
            getm("")
            if cfg.pres == 1: pres()
            if cfg.prer:
                g(f"s_cmp_lt_u32 {sr(sWave)}, 2")
                g(f"s_cbranch_scc0 L_nck{ph}")
                g(f"s_and_b32 {sr(sTmp)}, s2, {NP-1}")
                g(f"s_lshl_b32 {sr(sTmp)}, {sr(sTmp)}, 1")
                g(f"s_add_u32 {sr(sTmp)}, {sr(sTmp)}, {sr(sWave)}")
                g(f"s_mul_i32 {sr(sTmp)}, {sr(sTmp)}, {RS}")
                g(f"s_mul_i32 {sr(sIn)}, {sr(sBH)}, {GS}")
                g(f"s_add_u32 {sr(sIn)}, {sr(sIn)}, {sr(sTmp)}")
                g(f"s_add_u32 {sr(sIn)}, {sr(sIn)}, 0x{XBASE:x}")
                g(f"v_and_b32 {vr(vOa)}, 0x70, {vr(vO16)}")
                g(f"v_lshrrev_b32 {vr(vIn)}, 3, {vr(vLane)}")
                g(f"v_mul_u32_u24 {vr(vIn)}, {PS_}, {vr(vIn)}")
                g(f"v_add_u32 {vr(vIn)}, {vr(vIn)}, {vr(vOa)}")
                g(f"buffer_load_dwordx4 v[196:199], {vr(vIn)}, {sr(sWS,4)}, {sr(sIn)} offen {cfg.rfl}")
            g(f"s_branch L_nck{ph}")
            g.label("L_fs1")
            weight(f"L_nck{ph}")
            g(f"s_branch L_nck{ph}")
        g.label(f"L_ctl{ph}")
        g(f"s_mov_b32 {sr(sPend)}, 0")
        g(f"s_lshl_b32 {sr(sTmp)}, {sr(sT)}, 5")
        g(f"s_mov_b32 {sr(sTmp2)}, {sr(sOk)}")
        g("s_waitcnt lgkmcnt(0)")
        g(f"s_sub_u32 {sr(sTmp)}, {sr(sTmp)}, {sr(sSy+1)}")
        g(f"s_cmp_lt_u32 {sr(sTmp)}, {32 * 2000}")
        g(f"s_cselect_b32 {sr(sOk)}, {sr(sSy)}, 0")
        g(f"s_cmp_eq_u32 {sr(sOk)}, 32")
        g(f"s_cselect_b32 {sr(sOk)}, 1, 0")
        g(f"s_sub_u32 {sr(sTmp)}, {sr(sSy+1)}, {sr(sPrev)}")
        g(f"s_mov_b32 {sr(sPrev)}, {sr(sSy+1)}")
        g(f"s_and_b32 {sr(sTmp2)}, {sr(sTmp2)}, {sr(sOk)}")
        g(f"s_cbranch_scc0 L_cb{ph}")
        g(f"s_lshr_b32 {sr(sRate)}, {sr(sTmp)}, {LI}")
        if cfg.radd: g(f"s_add_u32 {sr(sRate)}, {sr(sRate)}, {cfg.radd}")
        g(f"s_mul_i32 {sr(sTmp)}, {sr(sRate)}, {RD + 1}")
        g(f"s_add_u32 {sr(sTgt)}, {sr(sSy+1)}, {sr(sTmp)}")
        g(f"s_mov_b32 {sr(sEn)}, -1")
        g(f"s_branch L_cb{ph}")
    def cvt4(R):
        for i in range(4):
            g(f"v_cvt_f32_i32 {vr(R+i)}, {vr(R+i)}")
    def kmfma(n):
        s_, u = n >> 2, n & 3
        m = s_ >> 1
        Dd = DK + 4*u; T = TK + 4*u
        g(f"v_mfma_f32_16x16x32_bf16 {vr(Dd,4)}, {vr(T,4)}, {vr(Q+8*m,4)}, {vr(NB,4) if m == 0 else vr(Dd,4)}")
        g(f"v_mfma_f32_16x16x32_bf16 {vr(Dd,4)}, {vr(T,4)}, {vr(Q+8*m+4,4)}, {vr(Dd,4)}")
    def red(u, k):
        Dd = DK + 4*u
        g(f"v_add_f32_dpp {vr(X+u)}, {vr(Dd+1+k)}, {vr(Dd) if k == 0 else vr(X+u)} row_ror:{12-4*k}{dpp}")
    def kcvt(n):
        s_, u = n >> 2, n & 3
        R = RAW + 4*n
        cvt4(R)
        for y in range(2):
            g(f"v_cvt_pk_bf16_f32 {vr(TK+4*u+2*(s_&1)+y)}, {vr(R+2*y)}, {vr(R+2*y+1)}")
    assert 5 <= F <= 8
    g("s_waitcnt lgkmcnt(0)")
    g("s_barrier")
    for part in range(2):
        g(f"s_waitcnt vmcnt(4)")
        pst()
        for n in range(F, 8) if part == 0 and cfg.b2b else [F + part] if not cfg.b2b and F + part < 8 else []:
            big(n, vKC, sK, sBase)
        prep(part)
    assert cfg.b2b or F >= 6
    g(".p2align 6")
    g.label("L_kloop")
    g(f"s_add_u32 {sr(sNOff)}, {sr(sCur)}, {sr(sDelta)}")
    if cfg.rot:
        g(f"s_and_b32 {sr(sNOff)}, {sr(sNOff)}, 0x1fffff")
        g(f"s_or_b32 {sr(sNOff)}, {sr(sNOff)}, {sr(sReg)}")
    g(f"s_xor_b32 {sr(sDelta)}, {sr(sDelta)}, 0x18000")
    g(f"s_cmp_eq_u32 {sr(sSlot)}, 31")
    g("s_cbranch_scc1 L_lastk")
    g.label("L_lastkb")
    top("k")
    for n in range(16):
        issue("k", n, vKC, sK)
        if n > 0 and ((n-1) >> 2) & 1: kmfma(n-1)
        ctl_hooks("k", n)
        kcvt(n)
    Dd = DK + 12; T = TK + 12
    red(0, 0); red(1, 0)
    g(f"v_mfma_f32_16x16x32_bf16 {vr(Dd,4)}, {vr(T,4)}, {vr(Q+8,4)}, {vr(Dd,4)}")
    red(0, 1); red(1, 1)
    g(f"v_mfma_f32_16x16x32_bf16 {vr(Dd,4)}, {vr(T,4)}, {vr(Q+12,4)}, {vr(Dd,4)}")
    red(0, 2); red(1, 2); red(2, 0)
    g(f"s_mov_b32 {sr(sCur)}, {sr(sNOff)}")
    g(f"v_max3_f32 {vr(vM)}, {vr(vM)}, {vr(X)}, {vr(X+1)}")
    red(2, 1)
    g("s_nop 1")
    red(2, 2); red(3, 0)
    g("s_nop 1")
    red(3, 1)
    g("s_nop 1")
    red(3, 2)
    g(f"s_mov_b64 exec, {sr(sJ4,2)}")
    g(f"v_max3_f32 {vr(vM)}, {vr(vM)}, {vr(X+2)}, {vr(X+3)}")
    g(f"ds_write_b128 {vr(vLds)}, {vr(X,4)}")
    g("s_mov_b64 exec, -1")
    g(f"v_add_u32 {vr(vLds)}, 256, {vr(vLds)}")
    g(f"s_cmp_lt_u32 {sr(sSlot)}, 32")
    g("s_cbranch_scc1 L_kloop")
    if cfg.stamp:
        g("s_memrealtime s[94:95]")
    def readS():
        g(f"ds_read_b128 {vr(X,4)}, {vr(vLds)}")
        g(f"ds_read_b128 {vr(VS,4)}, {vr(vS)}")
        g(f"ds_read_b128 {vr(VZ,4)}, {vr(vS)} offset:8192")
    g(f"v_subrev_u32 {vr(vLds)}, 0x2000, {vr(vLds)}")
    readS()
    g(f"v_max_f32_dpp {vr(vM)}, {vr(vM)}, {vr(vM)} quad_perm:[2,3,0,1]{dpp}")
    xreduce("v_max_f32", vM, vT1)
    g(f"s_mov_b32 {sr(sDelta)}, 0x4000")
    g(f"v_readlane_b32 {sr(sTmp)}, {vr(vM)}, 0")
    g(f"v_readlane_b32 {sr(sTmp2)}, {vr(vM)}, 1")
    g("s_nop 0")
    g("s_nop 0")
    g(f"v_mov_b32 {vr(vM)}, {sr(sTmp)}")
    g(f"v_mov_b32 {vr(vT1)}, {sr(sTmp2)}")
    g(f"v_cndmask_b32 {vr(vM)}, {vr(vM)}, {vr(vT1)}, {sr(sHd,2)}")
    g("s_mov_b64 exec, 3")
    g(f"ds_write_b32 {vr(vG)}, {vr(vM)} offset:{XLDS}")
    g("s_mov_b64 exec, 1")
    g(f"ds_add_u32 {vr(vZero)}, {vr(vA)} offset:{BLDS}")
    g("s_mov_b64 exec, -1")
    def vmfma(m):
        for c in range(4):
            acc = O + (m*4+c)*4
            g(f"v_mfma_f32_16x16x32_bf16 {vr(acc,4)}, {vr(TV+4*c,4)}, {vr(WP,4)}, {vr(acc,4)}")
    def soft(n):
        if n == 0:
            for e in range(4): g(f"v_sub_f32 {vr(X+e)}, {vr(X+e)}, {vr(vM)}")
            for e in range(2): g(f"v_exp_f32 {vr(X+e)}, {vr(X+e)}")
        elif n == 1:
            for e in range(2, 4): g(f"v_exp_f32 {vr(X+e)}, {vr(X+e)}")
        elif n == 2:
            for e in range(4): g(f"v_perm_b32 {vr(U+e)}, {vr(VS+e)}, {vr(VS+e)}, {vr(vSelS)}")
            for e in range(4): g(f"v_mul_f32 {vr(U+e)}, {vr(X+e)}, {vr(U+e)}")
        elif n == 3:
            for y in range(2): g(f"v_cvt_pk_bf16_f32 {vr(P+y)}, {vr(U+2*y)}, {vr(U+2*y+1)}")
            for y in range(2): g(f"v_perm_b32 {vr(ZA+y)}, {vr(VZ+2*y+1)}, {vr(VZ+2*y)}, {vr(vSelZ)}")
        elif n == 4:
            for y in range(2): g(f"v_and_b32 {vr(WP+y)}, {vr(vMa)}, {vr(P+y)}")
            for y in range(2): g(f"v_and_b32 {vr(WP+2+y)}, {vr(vMb)}, {vr(P+y)}")
            g(f"v_mfma_f32_16x16x16_bf16 {vr(CORR,4)}, {vr(ZA,2)}, {vr(P,2)}, {vr(CORR,4)}")
        elif n == 5:
            g(f"v_add_f32 {vr(X)}, {vr(X)}, {vr(X+1)}")
            g(f"v_add_f32 {vr(X+2)}, {vr(X+2)}, {vr(X+3)}")
            g(f"v_add_f32 {vr(vL)}, {vr(vL)}, {vr(X)}")
            g(f"v_add_f32 {vr(vL)}, {vr(vL)}, {vr(X+2)}")
        elif n == 6:
            g(f"v_add_u32 {vr(vLds)}, 256, {vr(vLds)}")
            g(f"s_bfe_u32 {sr(sN)}, {sr(sNOff)}, 0xd0008")
            g(f"v_add_u32 {vr(vS)}, {sr(sN)}, {vr(vVA)}")
        elif n == cfg.rpos:
            readS()
    g(".p2align 6")
    g.label("L_vloop")
    g(f"s_add_u32 {sr(sNOff)}, {sr(sCur)}, {sr(sDelta)}")
    if cfg.rot:
        g(f"s_and_b32 {sr(sNOff)}, {sr(sNOff)}, 0x1fffff")
        g(f"s_or_b32 {sr(sNOff)}, {sr(sNOff)}, {sr(sReg)}")
    g(f"s_xor_b32 {sr(sDelta)}, {sr(sDelta)}, 0x18000")
    top("v")
    def vcvt(n):
        s_, u = n >> 2, n & 3
        R = RAW + 4*n
        cvt4(R)
        if u & 1:
            for c in range(4):
                g(f"v_cvt_pk_bf16_f32 {vr(TV+4*c+2*(s_&1)+(u>>1))}, {vr(R-4+c)}, {vr(R+c)}")
    for n in range(16):
        if n == 8:
            g(f"s_cmp_eq_u32 {sr(sSlot)}, 64")
            g("s_cbranch_scc1 L_tail")
        if cfg.ebl and n == cfg.ebs:
            assert n > 0
            g(f"s_cmp_eq_u32 {sr(sSlot)}, 64")
            g(f"s_cselect_b32 {sr(sL)}, {cfg.ebl}, {sr(sL)}")
        issue("v", n, vNx, sNx)
        if n == 8: vmfma(0)
        ctl_hooks("v", n)
        vcvt(n)
        soft(n)
    g(f"s_mov_b32 {sr(sCur)}, {sr(sNOff)}")
    g("s_nop 0")
    vmfma(1)
    g("s_branch L_vloop")
    sOff0, sOff1 = sCur, sNOff
    FO = 196; PA = FO
    def poll(P): g(f"buffer_load_dwordx4 {vr(P,4)}, {vr(vIn)}, {sr(sWS,4)}, {sr(sIn)} offen {cfg.rfl}")
    def pk(d, a, b): g(f"v_pk_add_f32 {vr(d,2)}, {vr(a,2)}, {vr(b,2)}")
    def est(k):
        if cfg.est: g(f"s_memrealtime s[{32+2*k}:{33+2*k}]")
    g.label("L_tail")
    g(f"s_cmp_lg_u32 {sr(sRdy)}, 2")
    g("s_cbranch_scc1 L_slow")
    g.label("L_tail2")
    vmfma(0)
    e0, e1, e2, e3 = Q, Q+1, Q+2, Q+3
    def outw(m, r):
        T = (DK if m == 0 else 20) + 4*r
        for c in range(4):
            g(f"v_fma_f32 {vr(T+c)}, {vr(O+(m*4+c)*4+r)}, {vr(vW)}, -{vr(vCW)}")
        g(f"ds_write_b128 {vr(e0)}, {vr(T,4)} offset:{m*256+r*16}")
    g(f"v_add_f32_dpp {vr(vL)}, {vr(vL)}, {vr(vL)} quad_perm:[2,3,0,1]{dpp}")
    g(f"s_lshl_b32 {sr(sTmp)}, {sr(sWave)}, 11")
    g(f"s_add_u32 {sr(sTmp)}, {sr(sTmp)}, {CLDS}")
    g(f"v_and_b32 {vr(e0)}, 3, {vr(vLane)}")
    g(f"v_lshlrev_b32 {vr(e0)}, 9, {vr(e0)}")
    g(f"v_bfe_u32 {vr(e1)}, {vr(vLane)}, 2, 1")
    g(f"v_lshl_add_u32 {vr(e0)}, {vr(e1)}, 7, {vr(e0)}")
    g(f"v_bfe_u32 {vr(e1)}, {vr(vLane)}, 4, 1")
    g(f"v_lshl_add_u32 {vr(e0)}, {vr(e1)}, 6, {vr(e0)}")
    g(f"v_add_u32 {vr(e0)}, {sr(sTmp)}, {vr(e0)}")
    g(f"v_mul_f32 {vr(vCW)}, {vr(CORR)}, {vr(vW)}")
    xreduce("v_add_f32", vL, vT1)
    g(f"v_mul_f32 {vr(vL)}, {vr(vL)}, {vr(vW)}")
    g(f"v_readlane_b32 {sr(sMh)}, {vr(MX)}, 0")
    g(f"v_readlane_b32 {sr(sN)}, {vr(MX)}, 1")
    g(f"s_mov_b64 exec, {sr(sEp,2)}")
    for r in range(4): outw(0, r)
    g("s_mov_b64 exec, 3")
    g(f"ds_write_b32 {vr(vG)}, {vr(vL)} offset:{MLDS}")
    g("s_mov_b64 exec, -1")
    g(f"s_and_b32 {sr(sOwn0)}, s2, {NP-1}")
    g(f"s_lshl_b32 {sr(sTmp)}, {sr(sOwn0)}, 1")
    g(f"s_add_u32 {sr(sTmp)}, {sr(sTmp)}, {sr(sWave)}")
    g(f"s_lshl_b32 {sr(sTmp2)}, {sr(sWave)}, 3")
    g(f"s_and_b32 {sr(sTmp2)}, {sr(sTmp2)}, 8")
    g(f"s_cmp_lt_u32 {sr(sWave)}, 2")
    g(f"s_cselect_b32 {sr(sTmp)}, {sr(sTmp)}, {sr(sTmp2)}")
    g(f"s_cselect_b32 {sr(sTmp2)}, 7, 63")
    g(f"v_and_b32 {vr(e2)}, {sr(sTmp2)}, {vr(vLane)}")
    g(f"v_lshl_add_u32 {vr(e2)}, {sr(sTmp)}, 3, {vr(e2)}")
    g(f"v_lshlrev_b32 {vr(e3)}, 3, {vr(e2)}")
    g(f"s_cmp_lt_u32 {sr(sTmp)}, 8")
    g(f"s_cselect_b32 {sr(sMh)}, {sr(sMh)}, {sr(sN)}")
    g(f"s_cselect_b32 {sr(sTmp2)}, 0, 16")
    g(f"v_mov_b32 {vr(e1)}, {sr(sTmp2)}")
    g(f"s_mul_i32 {sr(sIn)}, {sr(sBH)}, {GS}")
    g(f"s_add_u32 {sr(sIn)}, {sr(sIn)}, 0x{XBASE:x}")
    g(f"s_mul_i32 {sr(sOwn1)}, {sr(sOwn0)}, {PS_}")
    g(f"s_add_u32 {sr(sOwn1)}, {sr(sOwn1)}, {sr(sIn)}")
    g(f"v_lshrrev_b32 {vr(vP)}, 3, {vr(e2)}")
    g(f"v_and_b32 {vr(vOa)}, 0x70, {vr(vO16)}")
    g(f"v_mul_u32_u24 {vr(vP)}, {RS}, {vr(vP)}")
    g(f"v_add_u32 {vr(vP)}, {vr(vP)}, {vr(vOa)}")
    g(f"v_lshrrev_b32 {vr(vIn)}, 3, {vr(vLane)}")
    g(f"v_mul_u32_u24 {vr(vIn)}, {PS_}, {vr(vIn)}")
    g(f"v_add_u32 {vr(vIn)}, {vr(vIn)}, {vr(vOa)}")
    g(f"s_mul_i32 {sr(sTmp)}, {sr(sTmp)}, {RS}")
    g(f"s_add_u32 {sr(sIn)}, {sr(sIn)}, {sr(sTmp)}")
    g(f"s_lshl_b32 {sr(sOwn0)}, {sr(sOwn0)}, 3")
    g(f"s_lshl_b64 {sr(sOwnM,2)}, 0xff, {sr(sOwn0)}")
    g(f"s_cmp_lt_u32 {sr(sWave)}, 2")
    g(f"s_cselect_b64 {sr(sOwnM,2)}, {sr(sOwnM,2)}, -1")
    g(f"v_bfe_u32 {vr(vOa)}, {vr(vLane)}, 4, 1")
    g(f"v_lshl_add_u32 {vr(vOa)}, {vr(e2)}, 1, {vr(vOa)}")
    g(f"v_lshlrev_b32 {vr(vOa)}, 1, {vr(vOa)}")
    g(f"v_mov_b32 {vr(FO+3)}, {sr(sTag)}")
    g(f"s_lshl_b32 {sr(sTmp2)}, {sr(sBH)}, 9")
    srd(sOUT, 18, 16384)
    for n in range(8, 16):
        g(f"s_waitcnt vmcnt({15-n})")
        vcvt(n)
    est(0)
    g("s_nop 1")
    vmfma(1)
    g(f"s_not_b64 exec, {sr(sOwnM,2)}")
    g("s_cbranch_scc0 L_nop1")
    poll(PA)
    g.label("L_nop1")
    g(f"s_mov_b64 exec, {sr(sEp,2)}")
    g("s_nop 6")
    for r in range(4): outw(1, r)
    g(f"s_mov_b64 exec, {'-1' if cfg.stamp else sr(sOwnM,2)}")
    if cfg.tlog:
        tlog()
        g(f"s_lshl_b32 s89, {sr(sWave)}, 9")
        g(f"s_add_u32 s89, s89, {TLDS}")
        g(f"v_lshlrev_b32 {vr(TMP)}, 3, {vr(vLane)}")
        g(f"v_add_u32 {vr(TMP+1)}, s89, {vr(TMP)}")
        g(f"ds_read_b64 {vr(TMP+2,2)}, {vr(TMP+1)}")
        g(f"s_mul_i32 s89, s2, {WPW}")
        g(f"s_add_u32 s89, s89, {sr(sWave)}")
        g("s_lshl_b32 s89, s89, 9")
        g("s_add_u32 s89, s89, 0x1400000")
        g("s_waitcnt lgkmcnt(0)")
        g(f"buffer_store_dwordx2 {vr(TMP+2,2)}, {vr(TMP)}, {sr(sWS,4)}, s89 offen")
    def stamp(slot):
        g("s_memrealtime s[86:87]")
        g(f"s_mul_i32 s89, s2, {WPW}")
        g(f"s_add_u32 s89, s89, {sr(sWave)}")
        g("s_lshl_b32 s89, s89, 4")
        g(f"s_add_u32 s89, s89, 0x{0x1000000 + slot*0x100000:x}")
        g("s_waitcnt lgkmcnt(0)")
        g(f"v_mov_b32 {vr(TMP)}, s84"); g(f"v_mov_b32 {vr(TMP+1)}, s86"); g(f"v_mov_b32 {vr(TMP+2)}, s88"); g(f"v_mov_b32 {vr(TMP+3)}, s94")
        g("s_mov_b64 s[90:91], exec")
        g("s_mov_b64 exec, 1")
        g(f"buffer_store_dwordx4 {vr(TMP,4)}, off, {sr(sWS,4)}, s89")
        g("s_mov_b64 exec, s[90:91]")
    if cfg.stamp: stamp(0)
    g("s_waitcnt lgkmcnt(0)")
    g("s_barrier")
    est(1)
    OP = 48; ML = 64
    if cfg.stamp: g(f"s_mov_b64 exec, {sr(sOwnM,2)}")
    g(f"ds_read_b128 {vr(ML,4)}, {vr(e1)} offset:{MLDS}")
    for w in range(WPW):
        g(f"ds_read2st64_b64 {vr(OP+4*w,4)}, {vr(e3)} offset0:{CLDS//512+4*w} offset1:{CLDS//512+4*w+2}")
    lg = lambda n: g(f"s_waitcnt lgkmcnt({0 if cfg.est else n})")
    lg(4)
    pk(ML, ML, ML+2)
    g(f"v_add_f32 {vr(ML)}, {vr(ML)}, {vr(ML+1)}")
    lg(3)
    pk(OP, OP, OP+2)
    g(f"v_log_f32 {vr(FO+2)}, {vr(ML)}")
    lg(2)
    pk(OP+4, OP+4, OP+6)
    g(f"v_rcp_f32 {vr(ML)}, {vr(ML)}")
    lg(1)
    pk(OP+8, OP+8, OP+10)
    pk(OP, OP, OP+4)
    lg(0)
    pk(OP+12, OP+12, OP+14)
    g(f"v_add_f32 {vr(FO+2)}, {sr(sMh)}, {vr(FO+2)}")
    pk(OP+8, OP+8, OP+12)
    pk(OP, OP, OP+8)
    g(f"v_mul_f32 {vr(FO)}, {vr(OP)}, {vr(ML)}")
    g(f"v_mul_f32 {vr(FO+1)}, {vr(OP+1)}, {vr(ML)}")
    g(f"s_cmp_lt_u32 {sr(sWave)}, 2")
    g("s_cbranch_scc1 L_poll")
    g(f"buffer_store_dwordx4 {vr(FO,4)}, {vr(vP)}, {sr(sWS,4)}, {sr(sOwn1)} offen {cfg.wfl}")
    if cfg.stamp:
        g("s_memrealtime s[84:85]")
        g("s_waitcnt vmcnt(0)")
        stamp(3)
    if cfg.drt == 2:
        g("s_cmp_ge_u32 s2, 8")
        g("s_cbranch_scc1 L_end")
        g(f"s_cmp_lg_u32 {sr(sWave)}, 3")
        g("s_cbranch_scc1 L_end")
        g("s_sleep 127"); g("s_sleep 127")
        g("s_mov_b64 exec, 1")
        g("s_mov_b64 s[88:89], 0")
        g("s_mov_b32 s90, 0")
        g(f"s_lshl_b32 s91, s2, 7")
        g(f"s_add_u32 s91, s91, 0x{cfg.dbase:x}")
        g.label("L_dl")
        g("s_mov_b32 s94, 0x7fffffff")
        g("s_mov_b32 s95, 0")
        g.label("L_dr")
        g("v_mov_b32 v5, 0")
        g("s_memtime s[84:85]")
        g("s_waitcnt lgkmcnt(0)")
        g(f"buffer_atomic_add v5, off, {sr(sWS,4)}, s91 sc0 sc1")
        g("s_waitcnt vmcnt(0)")
        g("s_memtime s[86:87]")
        g("s_waitcnt lgkmcnt(0)")
        g("s_sub_u32 s86, s86, s84")
        g("s_min_u32 s94, s94, s86")
        g("s_add_u32 s95, s95, 1")
        g("s_cmp_lt_u32 s95, 6")
        g("s_cbranch_scc1 L_dr")
        g("s_lshr_b32 s94, s94, 2")
        g("s_min_u32 s94, s94, 255")
        g("s_mov_b32 s95, 0")
        g("s_lshl_b64 s[94:95], s[94:95], s90")
        g("s_or_b64 s[88:89], s[88:89], s[94:95]")
        g("s_add_u32 s91, s91, 4096")
        g("s_add_u32 s90, s90, 8")
        g("s_cmp_lt_u32 s90, 64")
        g("s_cbranch_scc1 L_dl")
        g("s_getreg_b32 s90, hwreg(HW_REG_XCC_ID)")
        g("s_and_b32 s90, s90, 7")
        g("s_lshl_b32 s90, s90, 3")
        g("s_atomic_add_x2 s[88:89], s[20:21], s90")
    g("s_endpgm")
    g.label("L_again")
    g("s_mov_b64 exec, vcc")
    if cfg.stamp or cfg.drt:
        g("s_add_u32 s88, s88, 1")
        g("s_cmp_lg_u32 s88, 1")
        g("s_cbranch_scc1 L_nf")
        g("s_memrealtime s[84:85]")
        g.label("L_nf")
    if cfg.psl2:
        g(f"s_bcnt1_i32_b64 {sr(sTmp)}, exec")
        g(f"s_cmp_le_u32 {sr(sTmp)}, {8*cfg.psl}")
        g("s_cbranch_scc1 L_nsl")
        g(f"s_sleep {cfg.psl2}")
        g.label("L_nsl")
    poll(PA)
    g("s_branch L_poll2")
    g.label("L_poll")
    if cfg.stamp or cfg.drt: g("s_mov_b32 s88, 0")
    est(2)
    g(f"s_not_b64 exec, {sr(sOwnM,2)}")
    g.label("L_poll2")
    g("s_waitcnt vmcnt(0)")
    g(f"v_cmp_ne_u32 vcc, {sr(sTag)}, {vr(PA+3)}")
    g("s_cbranch_vccnz L_again")
    g("s_mov_b64 exec, -1")
    est(3); est(4)
    if cfg.stamp or cfg.drt: g("s_memrealtime s[94:95]")
    A_, B_, W_, T_ = FO, FO+1, FO+2, ML
    g(f"v_max_f32_dpp {vr(T_)}, {vr(W_)}, {vr(W_)} row_ror:8{dpp}")
    xreduce("v_max_f32", T_, T_+1)
    g(f"v_sub_f32 {vr(W_)}, {vr(W_)}, {vr(T_)}")
    g(f"v_exp_f32 {vr(W_)}, {vr(W_)}")
    g("s_nop 0")
    g(f"v_mul_f32 {vr(A_)}, {vr(A_)}, {vr(W_)}")
    g(f"v_mul_f32 {vr(B_)}, {vr(B_)}, {vr(W_)}")
    g(f"v_add_f32_dpp {vr(W_)}, {vr(W_)}, {vr(W_)} row_ror:8{dpp}")
    g(f"v_add_f32_dpp {vr(A_)}, {vr(A_)}, {vr(A_)} row_ror:8{dpp}")
    g(f"v_add_f32_dpp {vr(B_)}, {vr(B_)}, {vr(B_)} row_ror:8{dpp}")
    g(f"v_mov_b32 {vr(T_)}, {vr(W_)}")
    g("s_nop 0")
    g(f"v_permlane16_swap_b32 {vr(A_)}, {vr(B_)}")
    g(f"v_permlane16_swap_b32 {vr(W_)}, {vr(T_)}")
    g("s_nop 0")
    g(f"v_add_f32 {vr(A_)}, {vr(A_)}, {vr(B_)}")
    g(f"v_add_f32 {vr(W_)}, {vr(W_)}, {vr(T_)}")
    g(f"v_mov_b32 {vr(B_)}, {vr(A_)}")
    g(f"v_mov_b32 {vr(T_)}, {vr(W_)}")
    g("s_nop 0")
    g(f"v_permlane32_swap_b32 {vr(A_)}, {vr(B_)}")
    g(f"v_permlane32_swap_b32 {vr(W_)}, {vr(T_)}")
    g("s_nop 0")
    g(f"v_add_f32 {vr(A_)}, {vr(A_)}, {vr(B_)}")
    g(f"v_add_f32 {vr(W_)}, {vr(W_)}, {vr(T_)}")
    g(f"v_rcp_f32 {vr(W_)}, {vr(W_)}")
    g("s_mov_b64 exec, 0x00ff00ff")
    g(f"v_mul_f32 {vr(A_)}, {vr(A_)}, {vr(W_)}")
    est(5)
    g(f"v_cvt_pk_bf16_f32 {vr(A_)}, {vr(A_)}, {vr(A_)}")
    g(f"buffer_store_short {vr(A_)}, {vr(vOa)}, {sr(sOUT,4)}, {sr(sTmp2)} offen{cfg.osc}")
    if cfg.drt == 1:
        g("s_cmp_eq_u32 s88, 0")
        g("s_cbranch_scc1 L_end")
        g("s_waitcnt lgkmcnt(0)")
        g("s_sub_u32 s89, s94, s84")
        g("s_getreg_b32 s90, hwreg(HW_REG_XCC_ID)")
        g("s_and_b32 s90, s90, 7")
        g("s_lshl_b32 s90, s90, 3")
        g("s_atomic_add_x2 s[88:89], s[20:21], s90")
    if cfg.stamp:
        est(6)
        g("s_waitcnt vmcnt(0)")
        est(7)
        stamp(1)
        if cfg.est:
            for k in range(8): g(f"v_mov_b32 v{32+k}, s{32+2*k}")
            g(f"s_lshl_b32 s89, {sr(sBH)}, 5")
            g("s_add_u32 s89, s89, 0x1200000")
            g("s_mov_b64 exec, 1")
            g(f"buffer_store_dwordx4 v[32:35], off, {sr(sWS,4)}, s89")
            g(f"buffer_store_dwordx4 v[36:39], off, {sr(sWS,4)}, s89 offset:16")
    g.label("L_end")
    g("s_endpgm")
    g.label("L_init")
    g(f"v_mul_u32_u24 {vr(t0)}, {CSTR}, {vr(vLane)}")
    g(f"s_mov_b64 exec, 0x{(1 << len(syncs)) - 1:x}")
    g(f"buffer_store_dwordx2 {vr(CORR,2)}, {vr(t0)}, {sr(sWS,4)}, {sr(sWOff)} offen sc1")
    g("s_mov_b64 exec, -1")
    g("s_branch L_noinit")
    g.label("L_slow")
    getm(" glc")
    g("s_waitcnt lgkmcnt(0)")
    weight("L_slow")
    g("s_branch L_tail2")
    g.label("L_lastk")
    srdp(sNx, 8)
    g(f"s_mov_b32 {sr(sNOff)}, {sr(sBase)}")
    g(f"v_lshrrev_b32 {vr(t0)}, 3, {vr(j_)}")
    g(f"v_and_b32 {vr(t1)}, 7, {vr(j_)}")
    g(f"v_lshlrev_b32 {vr(t1)}, 4, {vr(t1)}")
    g(f"v_lshl_add_u32 {vr(t1)}, {vr(t0)}, 9, {vr(t1)}")
    g(f"v_lshl_add_u32 {vr(vNx)}, {vr(g_)}, 15, {vr(t1)}")
    g.label("L_copied")
    g(f"v_readfirstlane_b32 {sr(sTmp)}, {vr(vA)}")
    g(f"s_cmp_ge_u32 {sr(sTmp)}, {WPW}")
    g(f"v_mov_b32 {vr(vA)}, 1")
    g("s_cbranch_scc1 L_lastkb")
    g(f"ds_read_b32 {vr(vA)}, {vr(vZero)} offset:{BLDS}")
    g("s_waitcnt lgkmcnt(0)")
    g("s_branch L_copied")
    ctl_blocks("k")
    ctl_blocks("v")
    g.lines.insert(len(g.lines) - 1, "L_last:")
    main = g.text()

    lds = TLDS + (2048 if cfg.tlog else 0)
    out = HEADER
    out += f"; @launch grid=({NWG},1,1) block=({WPW*64},1,1) lds={max(lds, cfg.lds)}\n"
    out += '.amdgcn_target "amdgcn-amd-amdhsa--gfx950"\n.text\n'
    out += f".globl {NAME}_kernel\n.p2align 8\n.type {NAME}_kernel,@function\n" + main
    out += '.section .rodata,"a"\n'
    out += (f".p2align 6\n.amdhsa_kernel {NAME}_kernel\n  .amdhsa_next_free_vgpr {NV}\n  .amdhsa_next_free_sgpr {NS}\n"
            f"  .amdhsa_accum_offset {NV}\n  .amdhsa_group_segment_fixed_size 0\n  .amdhsa_kernarg_size 80\n"
            "  .amdhsa_user_sgpr_count 2\n  .amdhsa_user_sgpr_kernarg_segment_ptr 1\n"
            "  .amdhsa_system_sgpr_workgroup_id_x 1\n.end_amdhsa_kernel\n")
    return out

if __name__ == "__main__":
    ap = argparse.ArgumentParser()
    ap.add_argument("-o", default="/dev/stdout")
    ap.add_argument("--stamp", type=int, default=0)
    ap.add_argument("--tlog", type=int, default=0)
    ap.add_argument("--pst", type=int, default=0)
    ap.add_argument("--d", type=int, default=5)
    ap.add_argument("--tiers", type=int, default=2)
    ap.add_argument("--first", type=int, default=6)
    ap.add_argument("--b2b", type=int, default=0)
    ap.add_argument("--lds", type=int, default=0)
    ap.add_argument("--ctlpos", type=int, default=8)
    ap.add_argument("--tpos", type=int, default=14)
    ap.add_argument("--rpos", type=int, default=12)
    ap.add_argument("--si", type=int, default=4)
    ap.add_argument("--s0", type=int, default=2)
    ap.add_argument("--rd", type=int, default=2)
    ap.add_argument("--rglc", type=int, default=0)
    ap.add_argument("--radd", type=int, default=0)
    ap.add_argument("--slow", type=int, default=4)
    ap.add_argument("--law", default="60:16,-25:-1,-50:-2,-80:-3")
    ap.add_argument("--cap", default="2:4")
    ap.add_argument("--wsc", type=int, default=1)
    ap.add_argument("--fslot", type=int, default=45)
    ap.add_argument("--diag", default="")
    ap.add_argument("--base", type=int, default=0)
    ap.add_argument("--law2", default="90:16")
    ap.add_argument("--tlb", type=int, default=0)
    ap.add_argument("--dnt", type=int, default=1)
    ap.add_argument("--tlbs", type=int, default=25)
    ap.add_argument("--est", type=int, default=0)
    ap.add_argument("--ebs", type=int, default=3)
    ap.add_argument("--ebl", type=int, default=0)
    ap.add_argument("--cpf", type=int, default=1)
    ap.add_argument("--rot", default="")
    ap.add_argument("--late", default="")
    ap.add_argument("--latecap", type=int, default=1)
    ap.add_argument("--eb", default="")
    ap.add_argument("--spec", type=int, default=1)
    ap.add_argument("--osc", default="")
    ap.add_argument("--bpos", type=int, default=0)
    ap.add_argument("--np", type=int, default=2)
    ap.add_argument("--dbase", type=lambda x: int(x, 0), default=0x100000)
    ap.add_argument("--drt", type=int, default=0)
    ap.add_argument("--xoff", type=int, default=0)
    ap.add_argument("--pres", type=int, default=0)
    ap.add_argument("--prev", type=int, default=0)
    ap.add_argument("--prer", type=int, default=0)
    ap.add_argument("--prew", type=int, default=0)
    ap.add_argument("--pfl", default="sc1")
    ap.add_argument("--lay", default="1024:128:16384")
    ap.add_argument("--psl", type=int, default=3)
    ap.add_argument("--psl2", type=int, default=0)
    ap.add_argument("--wfl", default="sc1")
    ap.add_argument("--rfl", default="sc1")
    cfg = ap.parse_args()
    open(cfg.o, "w").write(build(cfg))
```

```python
import sys, argparse, math, struct
from gen import Gen, vr, sr, HEADER, NAME, f32bits

def build(cfg):
    WPW = 4; NWG = 256; NP = 8
    MLBASE = 32 * NP * 1024
    I = cfg.si; LI = int(math.log2(I)); RD = cfg.rd
    syncs = list(range(cfg.s0, 64 - RD, I))
    wmask = sum(1 << c for c in syncs); rmask = sum(1 << (c + RD) for c in syncs)
    assert len(syncs) <= 32 and (wmask & rmask) == 0 and 1 << LI == I
    SU = [1, 3, 5, 29]
    FS = [cfg.fslot, cfg.fslot + 2]
    omask = sum(1 << c for c in SU + FS)
    RW, RR, RP = 9, list(range(11, 11 + 2 * cfg.nr, 2)), 13 + 2 * cfg.nr
    assert RP < 29
    zmask = sum(1 << c for c in [RW, RP] + RR)
    assert all(c % 2 == 0 for c in syncs) and RD % 2 == 0 and cfg.fslot % 2 == 1 and cfg.fslot > 32
    CBASE = 0x50000; CSTR = 4352
    XBASE = 0x80000 + cfg.xoff
    RS, PS_, GS = [int(x) for x in cfg.lay.split(":")]
    assert cfg.lay == "1024:128:16384"
    RBASE = XBASE + 32 * GS
    WSBYTES = RBASE + 16384
    D, LA = cfg.d, 8
    assert D + cfg.tiers <= LA
    nt = " nt"
    g = Gen()
    vB, vKC, vVA, vNx, vZero, vS, vLds, vLane, vM, vL, vT1, vBias = range(12)
    vSelS, vSelZ, vMa, vMb = 12, 13, 14, 15
    Q = 16
    NB = 32
    TK = 36
    TV = 36
    DK = 52
    X = 68
    VS = 72; VZ = 76; U = 80; P = 84; ZA = 86; WP = 88
    vA, vOne, vO16, vO8 = 92, 93, 94, 95
    O = 96
    CORR = 128
    RAW = 132
    SM = 196
    vW, vG, vCW, vP, vOa, vCnt, vIn = range(220, 227)
    MX = 228
    TMP = 244
    PT = 204
    NV = 256
    sK, sV, sVS, sVZ, sQ, sKS, sKZ, sWS, sDBG, sOUT, sNx = 24, 28, 32, 36, 40, 44, 48, 52, 76, 76, 96
    sWave, sUnit, sCur, sNOff, sDelta, sN, sTmp, sTmp2, sBH, sBase = 56, 57, 58, 59, 60, 61, 62, 63, 64, 65
    sJ4 = 66; sHi = 68; sC = 69; sExec = 70; sHd = 80; sEp = 82; sCk = 92
    sL, sPend, sSlot, sWOff, sROff = 4, 5, 13, 100, 101
    sTgt, sA, sRate, sPm, sPrev, sOk, sEn, sCr, sFlag = 12, 11, 10, 14, 3, 28, 29, 30, 31
    sOwn0, sOwn1 = 16, 17
    sT, sSy, sSw, sCkW = 40, 42, 44, 46
    sReg = 72
    sOwnM, sRdy, sTag, sIn, sMh = 48, 50, 51, 73, 74
    NS = 102
    LV = 32768
    CLDS = 49152
    MLDS = CLDS + 8192
    XLDS = MLDS + 32
    BLDS = MLDS + WPW * 16
    TLDS = BLDS + 16
    dpp = " row_mask:0xf bank_mask:0xf"

    g.label(f"{NAME}_kernel")
    g(f"s_cmp_ge_u32 s2, {NWG}")
    g("s_cbranch_scc1 L_end")
    g("s_load_dwordx4 s[4:7], s[0:1], 0")
    g("s_load_dwordx4 s[8:11], s[0:1], 16")
    g("s_load_dwordx8 s[12:19], s[0:1], 32")
    g("s_load_dwordx4 s[20:23], s[0:1], 64")
    if cfg.cpf:
        g(f"s_getpc_b64 {sr(sExec,2)}")
        g.label("L_pc")
        g(f"v_lshlrev_b32 {vr(TMP+4)}, 6, v0")
        g(f"v_min_u32 {vr(TMP+4)}, L_last-L_pc, {vr(TMP+4)}")
        g(f"global_load_dword {vr(TMP+5)}, {vr(TMP+4)}, {sr(sExec,2)}")
    if cfg.stamp:
        g("s_memrealtime s[84:85]")
        g("s_getreg_b32 s88, hwreg(HW_REG_XCC_ID)")
    w_, j_, g_, a_, b_, g1, g2, hd, pr, t0, t1, oS, l8, qa = range(PT, PT + 14)
    g(f"v_and_b32 {vr(vLane)}, 63, v0")
    g(f"v_lshrrev_b32 {vr(w_)}, 6, v0")
    g(f"v_and_b32 {vr(j_)}, 15, {vr(vLane)}")
    g(f"v_lshrrev_b32 {vr(g_)}, 4, {vr(vLane)}")
    g(f"v_readfirstlane_b32 {sr(sWave)}, {vr(w_)}")
    g(f"v_lshrrev_b32 {vr(a_)}, 2, {vr(j_)}")
    g(f"v_and_b32 {vr(b_)}, 3, {vr(j_)}")
    g(f"v_and_b32 {vr(g1)}, 1, {vr(g_)}")
    g(f"v_lshrrev_b32 {vr(g2)}, 1, {vr(g_)}")
    g(f"v_lshlrev_b32 {vr(t0)}, 15, {vr(a_)}")
    g(f"v_lshl_add_u32 {vr(t0)}, {vr(g2)}, 9, {vr(t0)}")
    g(f"v_lshl_add_u32 {vr(t0)}, {vr(g1)}, 6, {vr(t0)}")
    g(f"v_lshl_add_u32 {vr(vKC)}, {vr(b_)}, 4, {vr(t0)}")
    g(f"v_lshlrev_b32 {vr(l8)}, 3, {vr(vLane)}")
    g(f"v_and_b32 {vr(oS)}, 0xff, {vr(l8)}")
    g(f"v_lshlrev_b32 {vr(vO16)}, 4, {vr(vLane)}")
    g(f"s_lshr_b32 {sr(sUnit)}, s2, 2")
    g(f"s_lshr_b32 {sr(sBH)}, s2, 3")
    g(f"s_lshl_b32 {sr(sBase)}, s2, 9")
    g(f"s_add_u32 {sr(sBase)}, {sr(sBase)}, {sr(sWave)}")
    g(f"s_lshl_b32 {sr(sBase)}, {sr(sBase)}, 12")
    if cfg.rot:
        rm, rs = [int(x) for x in cfg.rot.split(":")]
        g(f"s_mul_i32 {sr(sReg)}, s2, {rm}")
        g(f"s_lshr_b32 {sr(sReg)}, {sr(sReg)}, {rs}")
        g(f"s_and_b32 {sr(sReg)}, {sr(sReg)}, 15")
        g(f"s_lshl_b32 {sr(sReg)}, {sr(sReg)}, 17")
        g(f"s_add_u32 {sr(sBase)}, {sr(sBase)}, {sr(sReg)}")
        g(f"s_lshl_b32 {sr(sReg)}, s2, 21")
    g(f"s_lshl_b32 {sr(sTmp)}, {sr(sBH)}, 9")
    g(f"s_lshl_b32 {sr(sTmp2)}, {sr(sUnit)}, 8")
    for d in (sK, sQ, sKS, sKZ, sVS, sVZ, sWS):
        g(f"s_mov_b32 {sr(d+3)}, 0x00020000")
    g(f"s_mov_b32 {sr(sK+2)}, 0x20000000")
    for d in (sQ, sKS, sKZ): g(f"s_mov_b32 {sr(d+2)}, 0x4000")
    for d in (sVS, sVZ): g(f"s_mov_b32 {sr(d+2)}, 0x200000")
    g(f"s_mov_b32 {sr(sWS+2)}, 0x{WSBYTES if not (cfg.stamp or cfg.drt) else 0x2000000:x}")
    g(f"s_lshl_b32 {sr(sN)}, s2, 13")
    g(f"s_lshl_b32 {sr(sDelta)}, {sr(sWave)}, 11")
    g(f"s_add_u32 {sr(sN)}, {sr(sN)}, {sr(sDelta)}")
    g(f"s_add_u32 m0, {sr(sDelta)}, {LV}")
    sOwn = 75
    if cfg.prew:
        g(f"s_lshr_b32 {sr(sOwn)}, {sr(sN)}, 2")
        g(f"s_add_u32 {sr(sOwn)}, {sr(sOwn)}, 0x{XBASE:x}")
        for r in range(2): g(f"v_mov_b32 {vr(CORR+r)}, 0")
    if cfg.tlog:
        g(f"s_lshl_b32 s89, {sr(sWave)}, 9")
        g(f"s_add_u32 s89, s89, {TLDS}")
    g("s_waitcnt lgkmcnt(0)")
    def pst():
        if not cfg.pst: return
        g("s_memrealtime s[90:91]")
        g("s_waitcnt lgkmcnt(0)")
        g("s_lshl_b32 s90, s90, 7")
        g(f"v_mov_b32 {vr(TMP+2)}, s90")
        g(f"v_mov_b32 {vr(TMP+3)}, s89")
        g(f"ds_write_b32 {vr(TMP+3)}, {vr(TMP+2)}")
        g("s_add_u32 s89, s89, 4")
    pst()
    def srdp(d, p):
        g(f"s_mov_b32 {sr(d)}, {sr(p)}")
        g(f"s_and_b32 {sr(d+1)}, {sr(p+1)}, 0xffff")
    def srd(d, p, nbytes):
        srdp(d, p)
        g(f"s_mov_b32 {sr(d+2)}, 0x{nbytes:x}")
        g(f"s_mov_b32 {sr(d+3)}, 0x00020000")
    def big(n, va, sd, so):
        s_, u = n >> 2, n & 3
        g(f"buffer_load_dwordx4 {vr(RAW+4*n,4)}, {vr(va)}, {sr(sd,4)}, {sr(so)} offen offset:{u*1024+s_*128}{nt}")
    RQ, RKS, RZ = SM, SM + 2, SM + 4
    F = cfg.first
    srdp(sK, 6)
    def prew():
        assert cfg.lay == "128:2048:16384"
        srdp(sWS, 22)
        g(f"buffer_store_dwordx2 {vr(CORR,2)}, {vr(l8)}, {sr(sWS,4)}, {sr(sOwn)} offen {cfg.pfl}")
    if cfg.prew == 1: prew()
    for n in range(F):
        big(n, vKC, sK, sBase)
        if cfg.prew == n + 2: prew()
    pst()
    srdp(sQ, 4); srdp(sKS, 10); srdp(sKZ, 12)
    g(f"buffer_load_dwordx2 {vr(RQ,2)}, {vr(l8)}, {sr(sQ,4)}, {sr(sTmp)} offen{nt if cfg.dnt > 1 else ''}")
    g(f"buffer_load_dwordx2 {vr(RKS,2)}, {vr(oS)}, {sr(sKS,4)}, {sr(sTmp2)} offen{nt if cfg.dnt > 1 else ''}")
    g(f"buffer_load_dwordx2 {vr(RZ,2)}, {vr(oS)}, {sr(sKZ,4)}, {sr(sTmp2)} offen{nt if cfg.dnt > 1 else ''}")
    srdp(sVS, 14); srdp(sVZ, 16)
    for x in range(2):
        g(f"buffer_load_dwordx4 {vr(vO16)}, {sr(sVS,4)}, {sr(sN)} offen offset:{1024*x}{nt if cfg.dnt else ''} lds")
    g(f"s_add_u32 m0, {sr(sDelta)}, {LV+8192}")
    srdp(sWS, 22)
    for x in range(2):
        g(f"buffer_load_dwordx4 {vr(vO16)}, {sr(sVZ,4)}, {sr(sN)} offen offset:{1024*x}{nt if cfg.dnt else ''} lds")
    pst()
    srd(sNx, 6, 0x20000000)
    g(f"s_mov_b32 {sr(sHi)}, 0xffff0000")
    g(f"s_mov_b32 {sr(sC)}, 0x{f32bits((128.0 ** -0.5) * math.log2(math.e)):08x}")
    g(f"v_and_b32 {vr(hd)}, 1, {vr(j_)}")
    g(f"v_bfe_u32 {vr(pr)}, {vr(j_)}, 1, 1")
    g(f"v_mov_b32 {vr(vNx)}, {vr(vKC)}")
    g(f"v_lshl_add_u32 {vr(t0)}, {vr(g_)}, 2, {vr(b_)}")
    g(f"v_lshlrev_b32 {vr(t0)}, 4, {vr(t0)}")
    g(f"v_lshl_add_u32 {vr(vLds)}, {vr(w_)}, 13, {vr(t0)}")
    g(f"v_xor_b32 {vr(t0)}, {vr(pr)}, {vr(g2)}")
    g(f"v_lshl_add_u32 {vr(qa)}, {vr(g1)}, 2, {vr(a_)}")
    g(f"v_lshl_add_u32 {vr(qa)}, {vr(hd)}, 5, {vr(qa)}")
    g(f"v_lshl_add_u32 {vr(qa)}, {vr(t0)}, 6, {vr(qa)}")
    g(f"v_lshl_add_u32 {vr(qa)}, {vr(w_)}, 7, {vr(qa)}")
    g(f"v_lshlrev_b32 {vr(qa)}, 4, {vr(qa)}")
    g(f"v_add_u32 {vr(qa)}, {CLDS}, {vr(qa)}")
    g(f"v_lshl_add_u32 {vr(l8)}, {vr(w_)}, 11, {vr(vO16)}")
    for r in range(4): g(f"v_mov_b32 {vr(CORR+r)}, 0")
    g(f"v_cmp_gt_u32 {sr(sJ4,2)}, 4, {vr(j_)}")
    g(f"v_cmp_ne_u32 {sr(sHd,2)}, 0, {vr(hd)}")
    g(f"ds_write_b128 {vr(l8)}, {vr(CORR,4)} offset:{CLDS+1024}")
    g(f"v_mov_b32 {vr(vZero)}, 0")
    g(f"ds_write_b64 {vr(CORR)}, {vr(CORR,2)} offset:{BLDS}")
    g(f"v_mov_b32 {vr(vM)}, 0xff7fffff")
    g(f"s_mov_b32 {sr(sWOff)}, 0x{CBASE:x}")
    g(f"s_mov_b32 {sr(sROff)}, 0x{CBASE:x}")
    def pres():
        assert cfg.lay == "128:2048:16384"
        g(f"s_lshl_b32 {sr(sTmp)}, s2, 2")
        g(f"s_add_u32 {sr(sTmp)}, {sr(sTmp)}, {sr(sWave)}")
        g(f"s_lshl_b32 {sr(sTmp)}, {sr(sTmp)}, 9")
        g(f"s_add_u32 {sr(sTmp)}, {sr(sTmp)}, 0x{XBASE:x}")
        if cfg.prev:
            g(f"v_lshlrev_b32 {vr(vIn)}, 3, {vr(vLane)}")
            g(f"buffer_load_dwordx2 v[196:197], {vr(vIn)}, {sr(sWS,4)}, {sr(sTmp)} offen")
            return
        for i in range(8):
            g(f"s_load_dword {sr(sIn)}, s[22:23], {sr(sTmp)}")
            if i < 7: g(f"s_add_u32 {sr(sTmp)}, {sr(sTmp)}, 64")
    def setup(k):
        if k == 0:
            g(f"v_lshrrev_b32 {vr(t0)}, 3, {vr(j_)}")
            g(f"v_mul_u32_u24 {vr(t0)}, 0x0202, {vr(t0)}")
            g(f"v_lshl_add_u32 {vr(t0)}, {vr(t0)}, 16, {vr(t0)}")
            g(f"v_add_u32 {vr(vSelZ)}, 0x05040100, {vr(t0)}")
            g(f"v_mul_u32_u24 {vr(t0)}, 0x0202, {vr(pr)}")
            g(f"v_lshlrev_b32 {vr(t0)}, 16, {vr(t0)}")
            g(f"v_add_u32 {vr(vSelS)}, 0x01000c0c, {vr(t0)}")
            g(f"v_bfe_u32 {vr(t0)}, {vr(j_)}, 2, 1")
            g(f"v_sub_u32 {vr(vMb)}, 0, {vr(t0)}")
            g(f"v_not_b32 {vr(vMa)}, {vr(vMb)}")
            g(f"v_lshlrev_b32 {vr(vVA)}, 7, {vr(g_)}")
            g(f"s_bfe_u32 {sr(sTmp)}, {sr(sBase)}, 0xd0008")
            g(f"v_add_u32 {vr(vVA)}, {LV}, {vr(vVA)}")
            g(f"v_add_u32 {vr(vS)}, {sr(sTmp)}, {vr(vVA)}")
            g(f"v_cmp_eq_u32 {sr(sEp,2)}, {vr(pr)}, {vr(g2)}")
            g(f"v_cmp_gt_u32 vcc, 8, {vr(j_)}")
            g(f"v_mov_b32 {vr(vL)}, 0")
            g(f"s_and_b64 {sr(sEp,2)}, {sr(sEp,2)}, vcc")
            g(f"s_mov_b32 {sr(sRdy)}, 0")
            g(f"s_lshl_b32 {sr(sTmp)}, {sr(sWave)}, 2")
            g(f"v_lshl_add_u32 {vr(vG)}, {vr(hd)}, 4, {sr(sTmp)}")
            g("s_cmp_eq_u32 s2, 0")
            g(f"s_cselect_b32 {sr(sTmp)}, 0x{zmask:x}, 0")
            g(f"s_or_b32 {sr(sCk)}, {sr(sCk)}, {sr(sTmp)}")
        elif k in (1, 2):
            if k == 1:
                g(f"v_mov_b32 {vr(vA)}, 1")
                g("s_mov_b64 exec, 1")
                g(f"ds_add_u32 {vr(vZero)}, {vr(vA)} offset:{BLDS}")
                g("s_mov_b64 exec, -1")
            for r in range(16): g(f"v_mov_b32 {vr(O+16*(k-1)+r)}, 0")
            if k == 2 and cfg.pres == 2: pres()
        elif k == 3:
            g(f"ds_read_b32 {vr(vA)}, {vr(vZero)} offset:{BLDS}")
    g(f"s_or_b32 {sr(sTmp)}, s2, {sr(sWave)}")
    g(f"s_cmp_eq_u32 {sr(sTmp)}, 0")
    g("s_cbranch_scc1 L_init")
    g.label("L_noinit")
    g(f"s_mov_b32 {sr(sCur)}, {sr(sBase)}")
    g(f"s_mov_b32 {sr(sDelta)}, 0x4000")
    g(f"s_mov_b32 {sr(sPend)}, 0")
    g(f"s_mov_b32 {sr(sSlot)}, 0")
    for r in (sTgt, sRate, sPrev): g(f"s_mov_b32 {sr(r)}, 0")
    for r in (sOk, sCr, sT): g(f"s_mov_b64 {sr(r,2)}, 0")
    g(f"s_and_b32 {sr(sTmp)}, s2, 0x38")
    g(f"s_lshr_b32 {sr(sTmp2)}, s2, 6")
    g(f"s_xor_b32 {sr(sTmp2)}, {sr(sTmp2)}, {sr(sWave)}")
    g(f"s_or_b32 {sr(sTmp)}, {sr(sTmp)}, {sr(sTmp2)}")
    g(f"s_cmp_eq_u32 {sr(sTmp)}, 0")
    g(f"s_cselect_b32 {sr(sCkW)}, 0x{wmask & 0xffffffff:x}, 0")
    g(f"s_cselect_b32 {sr(sCkW+1)}, 0x{wmask >> 32:x}, 0")
    g(f"s_or_b32 {sr(sCk)}, {sr(sCkW)}, 0x{(rmask | omask) & 0xffffffff:x}")
    g(f"s_or_b32 {sr(sCk+1)}, {sr(sCkW+1)}, 0x{(rmask | omask) >> 32:x}")
    pst()

    def xreduce(op, v, t, both=True):
        g(f"v_mov_b32 {vr(t)}, {vr(v)}")
        g("s_nop 1")
        g(f"v_permlane16_swap_b32 {vr(v)}, {vr(t)}")
        g("s_nop 1")
        g(f"{op} {vr(v)}, {vr(v)}, {vr(t)}")
        if not both: return
        g(f"v_mov_b32 {vr(t)}, {vr(v)}")
        g("s_nop 1")
        g(f"v_permlane32_swap_b32 {vr(v)}, {vr(t)}")
        g("s_nop 1")
        g(f"{op} {vr(v)}, {vr(v)}, {vr(t)}")
    def prep(part):
        a0, a1, b0, b1, z0, z1, h0, h1 = range(VS, VS + 8)
        HL = U
        for y in range(2 if part == 0 else 0):
            g(f"v_lshlrev_b32 v{a0}, 16, {vr(RQ+y)}")
            g(f"v_and_b32 v{a1}, {sr(sHi)}, {vr(RQ+y)}")
            g(f"v_lshlrev_b32 v{b0}, 16, {vr(RKS+y)}")
            g(f"v_and_b32 v{b1}, {sr(sHi)}, {vr(RKS+y)}")
            g(f"v_lshlrev_b32 v{z0}, 16, {vr(RZ+y)}")
            g(f"v_and_b32 v{z1}, {sr(sHi)}, {vr(RZ+y)}")
            g(f"v_mul_f32 v{a0}, v{a0}, v{b0}")
            g(f"v_mul_f32 v{a1}, v{a1}, v{b1}")
            g(f"v_mul_f32 v{a0}, {sr(sC)}, v{a0}")
            g(f"v_mul_f32 v{a1}, {sr(sC)}, v{a1}")
            g(f"v_cvt_pk_bf16_f32 {vr(HL+y)}, v{a0}, v{a1}")
            if y == 0: g(f"v_mul_f32 {vr(vBias)}, v{a0}, v{z0}")
            else: g(f"v_fmac_f32 {vr(vBias)}, v{a0}, v{z0}")
            g(f"v_fmac_f32 {vr(vBias)}, v{a1}, v{z1}")
            g(f"v_lshlrev_b32 v{h0}, 16, {vr(HL+y)}")
            g(f"v_and_b32 v{h1}, {sr(sHi)}, {vr(HL+y)}")
            g(f"v_sub_f32 v{a0}, v{a0}, v{h0}")
            g(f"v_sub_f32 v{a1}, v{a1}, v{h1}")
            g(f"v_cvt_pk_bf16_f32 {vr(HL+2+y)}, v{a0}, v{a1}")
        if part == 0:
            g(f"ds_write_b128 {vr(l8)}, {vr(HL,4)} offset:{CLDS}")
            return
        for m in range(2):
            g(f"ds_read2_b64 {vr(Q+8*m,4)}, {vr(qa)} offset0:{32*m} offset1:{32*m+16}")
            g(f"ds_read2_b64 {vr(Q+8*m+4,4)}, {vr(qa)} offset0:{32*m+1} offset1:{32*m+17}")
        for r in (1, 2, 4, 8):
            g(f"v_add_f32_dpp {vr(vBias)}, {vr(vBias)}, {vr(vBias)} row_ror:{r}{dpp}")
            g("s_nop 1")
        xreduce("v_add_f32", vBias, vT1, both=False)
        g(f"v_mul_f32 {vr(vBias)}, 0xbe800000, {vr(vBias)}")
        g("s_nop 0")
        g(f"v_readlane_b32 {sr(sTmp)}, {vr(vBias)}, 0")
        g(f"v_readlane_b32 {sr(sTmp2)}, {vr(vBias)}, 32")
        g("s_nop 1")
        g(f"v_mov_b32 {vr(NB)}, {sr(sTmp)}")
        g(f"v_mov_b32 {vr(vT1)}, {sr(sTmp2)}")
        g(f"v_cndmask_b32 {vr(NB)}, {vr(NB)}, {vr(vT1)}, {sr(sHd,2)}")
        for r in range(1, 4):
            g(f"v_mov_b32 {vr(NB+r)}, {vr(NB)}")

    def tlog():
        if not cfg.tlog: return
        g("s_memrealtime s[90:91]")
        g("s_waitcnt lgkmcnt(0)")
        g("s_lshl_b32 s90, s90, 7")
        g(f"s_add_u32 s91, {sr(sL)}, 32")
        g("s_and_b32 s91, s91, 127")
        g("s_or_b32 s90, s90, s91")
        g(f"v_mov_b32 {vr(TMP)}, s90")
        g(f"v_mov_b32 {vr(TMP+1)}, s89")
        g(f"ds_write_b32 {vr(TMP+1)}, {vr(TMP)}")
        g("s_add_u32 s89, s89, 4")
    def br4(n): return int(f"{n:04b}"[::-1], 2)
    def issue(ph, n, va, sd):
        tiers = 3 if ph == "v" and cfg.ebl and cfg.ebs <= n < 8 else cfg.tiers
        for t in range(tiers, 0, -1):
            g(f"s_cmp_gt_i32 {sr(sL)}, {br4(n) + 16*(t-1)}")
            g(f"s_cbranch_scc1 L_{ph}w{n}_{t}")
        if cfg.slow and br4(n) < cfg.slow:
            g(f"s_cmp_lt_i32 {sr(sL)}, {-br4(n)}")
            g(f"s_cbranch_scc0 L_{ph}w{n}_0")
            g(f"s_waitcnt vmcnt({D-2})")
        for t in range(tiers + 1):
            g.label(f"L_{ph}w{n}_{t}")
            g(f"s_waitcnt vmcnt({D-1+t})")
        if n < 16 - LA: big(n + LA, va, sd, sCur)
        else: big(n + LA - 16, vNx, sNx, sNOff)
    def top(ph):
        g("s_waitcnt lgkmcnt(0)")
        g(f"s_lshl_b32 {sr(sA)}, {sr(sT)}, 5")
        g(f"s_sub_u32 {sr(sA)}, {sr(sA)}, {sr(sTgt)}")
        g(f"s_add_u32 {sr(sTgt)}, {sr(sTgt)}, {sr(sRate)}")
        g(f"s_and_b32 {sr(sA)}, {sr(sA)}, {sr(sEn)}")
        g(f"s_mov_b32 {sr(sL)}, {cfg.base}")
        for e in cfg.law.split(","):
            th, lv = [int(x) for x in e.split(":")]
            g(f"s_cmp_{'gt' if th > 0 else 'lt'}_i32 {sr(sA)}, {th * 32}")
            g(f"s_cselect_b32 {sr(sL)}, {lv}, {sr(sL)}")
        def late():
            for e in cfg.late.split(","):
                sl, th, lv = [int(x) for x in e.split(":")]
                g(f"s_cmp_ge_u32 {sr(sSlot)}, {sl}")
                g(f"s_cselect_b32 {sr(sTmp2)}, {sr(sA)}, 0")
                g(f"s_cmp_{'gt' if th > 0 else 'lt'}_i32 {sr(sTmp2)}, {th * 32}")
                g(f"s_cselect_b32 {sr(sL)}, {lv}, {sr(sL)}")
        if cfg.late and ph == "v" and cfg.latecap: late()
        if cfg.cap:
            cc, cm = [int(x) for x in cfg.cap.split(":")]
            g(f"s_add_u32 {sr(sCr)}, {sr(sCr)}, 1")
            g(f"s_min_u32 {sr(sCr)}, {sr(sCr)}, {cm}")
            g(f"s_cmp_ge_u32 {sr(sCr)}, {cc}")
            g(f"s_cselect_b32 {sr(sTmp2)}, 64, 0")
            g(f"s_min_i32 {sr(sL)}, {sr(sL)}, {sr(sTmp2)}")
            g(f"s_cmp_gt_i32 {sr(sL)}, 0")
            g(f"s_cselect_b32 {sr(sTmp2)}, {cc}, 0")
            g(f"s_sub_u32 {sr(sCr)}, {sr(sCr)}, {sr(sTmp2)}")
        if cfg.law2:
            for e in cfg.law2.split(","):
                th, lv = [int(x) for x in e.split(":")]
                g(f"s_cmp_gt_i32 {sr(sA)}, {th * 32}")
                g(f"s_cselect_b32 {sr(sL)}, {lv}, {sr(sL)}")
        if cfg.late and ph == "v" and not cfg.latecap: late()
        if cfg.diag and ph == cfg.diag[0]:
            g(f"s_bitcmp{cfg.diag[1]}_b32 s2, 7")
            g(f"s_cselect_b32 {sr(sL)}, -4, {sr(sL)}")
        if ph == "v" and cfg.eb:
            for e in cfg.eb.split(","):
                sl, am = e.split(":")
                g(f"s_cmp_ge_u32 {sr(sSlot)}, {sl}")
                g(f"s_cselect_b32 {sr(sA)}, {am}, 0")
                g(f"s_add_u32 {sr(sL)}, {sr(sL)}, {sr(sA)}")
        tlog()
    def ctl_hooks(ph, n):
        if n == 0:
            g(f"s_bitcmp1_b64 {sr(sCk,2)}, {sr(sSlot)}")
            g(f"s_cbranch_scc1 L_ck{ph}")
            g.label(f"L_nck{ph}")
            g(f"s_add_u32 {sr(sSlot)}, {sr(sSlot)}, 1")
        if n == cfg.ctlpos:
            g(f"s_cmp_lg_u32 {sr(sPend)}, 0")
            g(f"s_cbranch_scc1 L_ctl{ph}")
            g.label(f"L_cb{ph}")
        if n == cfg.tpos:
            g(f"s_memrealtime {sr(sT,2)}")
    def getm(fl):
        g(f"s_load_dword {sr(sTag)}, s[20:21], {128 if cfg.drt else 0}{fl}")
        g(f"v_and_b32 {vr(vW)}, 16, {vr(vG)}")
        g(f"ds_read_b32 {vr(vCnt)}, {vr(vZero)} offset:{BLDS}")
        g(f"ds_read_b128 {vr(MX,4)}, {vr(vW)} offset:{XLDS}")
    def weight(no):
        g(f"v_readfirstlane_b32 {sr(sTmp)}, {vr(vCnt)}")
        g(f"v_max_f32 {vr(MX)}, {vr(MX)}, {vr(MX+1)}")
        g(f"s_cmp_eq_u32 {sr(sTag)}, 0")
        g(f"s_cbranch_scc1 {no}")
        g(f"s_cmp_lg_u32 {sr(sTmp)}, {2*WPW}")
        g(f"s_cbranch_scc1 {no}")
        g(f"v_max3_f32 {vr(MX)}, {vr(MX)}, {vr(MX+2)}, {vr(MX+3)}")
        g(f"v_sub_f32 {vr(vW)}, {vr(vM)}, {vr(MX)}")
        g(f"v_exp_f32 {vr(vW)}, {vr(vW)}")
        g(f"s_mov_b32 {sr(sRdy)}, 2")
    def ctl_blocks(ph):
        g.label(f"L_ck{ph}")
        g(f"s_bitcmp1_b32 {sr(sSlot)}, 0")
        g(f"s_cbranch_scc1 L_odd{ph}")
        g(f"s_bitcmp1_b64 {sr(sCkW,2)}, {sr(sSlot)}")
        g(f"s_cbranch_scc1 L_pub{ph}")
        g(f"s_load_dwordx2 {sr(sSy,2)}, s[22:23], {sr(sROff)}{' glc' if cfg.rglc else ''}")
        g(f"s_mov_b32 {sr(sPend)}, 1")
        g(f"s_add_u32 {sr(sROff)}, {sr(sROff)}, {CSTR}")
        g(f"s_branch L_nck{ph}")
        g.label(f"L_pub{ph}")
        g(f"s_mov_b32 {sr(sSw)}, 1")
        g(f"s_mov_b32 {sr(sSw+1)}, {sr(sT)}")
        g(f"s_atomic_add_x2 {sr(sSw,2)}, s[22:23], {sr(sWOff)}")
        g(f"s_add_u32 {sr(sWOff)}, {sr(sWOff)}, {CSTR}")
        g(f"s_branch L_nck{ph}")
        g.label(f"L_odd{ph}")
        if ph == "k":
            for k in range(1, len(SU)):
                g(f"s_cmp_eq_u32 {sr(sSlot)}, {SU[k]}")
                g(f"s_cbranch_scc1 L_su{k}")
            g(f"s_cmp_lg_u32 {sr(sSlot)}, {SU[0]}")
            g("s_cbranch_scc1 L_race")
            for k in range(len(SU)):
                g.label(f"L_su{k}")
                setup(k)
                g(f"s_branch L_nck{ph}")
        else:
            g(f"s_cmp_eq_u32 {sr(sSlot)}, {FS[1]}")
            g("s_cbranch_scc1 L_fs1")
            getm("")
            if cfg.pres == 1: pres()
            if cfg.prer:
                g(f"s_cmp_lt_u32 {sr(sWave)}, 2")
                g(f"s_cbranch_scc0 L_nck{ph}")
                g(f"s_and_b32 {sr(sTmp)}, s2, {NP-1}")
                g(f"s_lshl_b32 {sr(sTmp)}, {sr(sTmp)}, 1")
                g(f"s_add_u32 {sr(sTmp)}, {sr(sTmp)}, {sr(sWave)}")
                g(f"s_mul_i32 {sr(sTmp)}, {sr(sTmp)}, {RS}")
                g(f"s_mul_i32 {sr(sIn)}, {sr(sBH)}, {GS}")
                g(f"s_add_u32 {sr(sIn)}, {sr(sIn)}, {sr(sTmp)}")
                g(f"s_add_u32 {sr(sIn)}, {sr(sIn)}, 0x{XBASE:x}")
                g(f"v_and_b32 {vr(vOa)}, 0x70, {vr(vO16)}")
                g(f"v_lshrrev_b32 {vr(vIn)}, 3, {vr(vLane)}")
                g(f"v_mul_u32_u24 {vr(vIn)}, {PS_}, {vr(vIn)}")
                g(f"v_add_u32 {vr(vIn)}, {vr(vIn)}, {vr(vOa)}")
                g(f"buffer_load_dwordx4 v[196:199], {vr(vIn)}, {sr(sWS,4)}, {sr(sIn)} offen {cfg.rfl}")
            g(f"s_branch L_nck{ph}")
            g.label("L_fs1")
            weight(f"L_nck{ph}")
            g(f"s_branch L_nck{ph}")
        if ph == "k":
            g.label("L_race")
            g(f"s_cmp_eq_u32 {sr(sSlot)}, {RP}")
            g("s_cbranch_scc1 L_tag")
            g(f"s_lshr_b32 {sr(sN)}, {sr(sSlot)}, 1")
            g(f"s_xor_b32 {sr(sN)}, {sr(sN)}, {sr(sWave)}")
            g(f"s_and_b32 {sr(sN)}, {sr(sN)}, 1")
            g(f"s_lshl_b32 {sr(sTmp)}, {sr(sN)}, 6")
            g(f"s_add_u32 {sr(sTmp)}, {sr(sTmp)}, {sr(sWave)}")
            g(f"s_lshl_b32 {sr(sTmp)}, {sr(sTmp)}, 7")
            g(f"s_add_u32 {sr(sTmp)}, {sr(sTmp)}, 0x{RBASE:x}")
            g(f"s_xor_b32 {sr(sTmp2)}, {sr(sTmp)}, 0x2000")
            g(f"s_cmp_eq_u32 {sr(sSlot)}, {RW}")
            g(f"s_cselect_b32 {sr(sOwnM)}, 1, 0")
            g(f"s_mov_b32 {sr(sOwnM+1)}, {sr(sOwnM)}")
            g(f"s_atomic_or {sr(sOwnM)}, s[22:23], {sr(sTmp)} glc")
            g(f"s_atomic_or {sr(sOwnM+1)}, s[22:23], {sr(sTmp2)} glc")
            g("s_cbranch_scc1 L_nckk")
            g("s_waitcnt lgkmcnt(1)")
            g(f"s_and_b32 {sr(sTmp)}, {sr(sOwnM)}, 1")
            g(f"s_and_b32 {sr(sTmp2)}, {sr(sOwnM+1)}, 1")
            g(f"s_sub_u32 {sr(sTmp)}, {sr(sTmp)}, {sr(sTmp2)}")
            g(f"s_sub_u32 {sr(sTmp2)}, 0, {sr(sTmp)}")
            g(f"s_cmp_eq_u32 {sr(sN)}, 0")
            g(f"s_cselect_b32 {sr(sTmp)}, {sr(sTmp)}, {sr(sTmp2)}")
            g(f"v_mov_b32 {vr(vCnt)}, {sr(sTmp)}")
            g("s_mov_b64 exec, 1")
            g(f"ds_add_u32 {vr(vZero)}, {vr(vCnt)} offset:{BLDS+4}")
            g("s_mov_b64 exec, -1")
            g("s_branch L_nckk")
            g.label("L_tag")
            g(f"s_cmp_lg_u32 {sr(sWave)}, 0")
            g("s_cbranch_scc1 L_nckk")
            g(f"ds_read_b32 {vr(vCnt)}, {vr(vZero)} offset:{BLDS+4}")
            g(f"s_getreg_b32 {sr(sTmp2)}, hwreg(HW_REG_XCC_ID)")
            g(f"s_and_b32 {sr(sTmp2)}, {sr(sTmp2)}, 3")
            g(f"s_andn2_b32 {sr(sTag)}, {sr(sT)}, 15")
            g(f"s_or_b32 {sr(sTag)}, {sr(sTag)}, {sr(sTmp2)}")
            g("s_waitcnt lgkmcnt(0)")
            g(f"v_readfirstlane_b32 {sr(sTmp)}, {vr(vCnt)}")
            g(f"s_cmp_gt_i32 {sr(sTmp)}, 0")
            g(f"s_cselect_b32 {sr(sTmp2)}, {8 + 4 * cfg.inv}, {12 - 4 * cfg.inv}")
            g(f"s_or_b32 {sr(sTag)}, {sr(sTag)}, {sr(sTmp2)}")
            g(f"s_atomic_add {sr(sTag)}, s[20:21], {128 if cfg.drt else 0}")
            if cfg.dv:
                g(f"s_mov_b32 {sr(sOwnM)}, {sr(sTmp)}")
                g(f"s_atomic_add {sr(sOwnM)}, s[20:21], 4")
            g("s_branch L_nckk")
        g.label(f"L_ctl{ph}")
        g(f"s_mov_b32 {sr(sPend)}, 0")
        g(f"s_lshl_b32 {sr(sTmp)}, {sr(sT)}, 5")
        g(f"s_mov_b32 {sr(sTmp2)}, {sr(sOk)}")
        g("s_waitcnt lgkmcnt(0)")
        g(f"s_sub_u32 {sr(sTmp)}, {sr(sTmp)}, {sr(sSy+1)}")
        g(f"s_cmp_lt_u32 {sr(sTmp)}, {32 * 2000}")
        g(f"s_cselect_b32 {sr(sOk)}, {sr(sSy)}, 0")
        g(f"s_cmp_eq_u32 {sr(sOk)}, 32")
        g(f"s_cselect_b32 {sr(sOk)}, 1, 0")
        g(f"s_sub_u32 {sr(sTmp)}, {sr(sSy+1)}, {sr(sPrev)}")
        g(f"s_mov_b32 {sr(sPrev)}, {sr(sSy+1)}")
        g(f"s_and_b32 {sr(sTmp2)}, {sr(sTmp2)}, {sr(sOk)}")
        g(f"s_cbranch_scc0 L_cb{ph}")
        g(f"s_lshr_b32 {sr(sRate)}, {sr(sTmp)}, {LI}")
        if cfg.radd: g(f"s_add_u32 {sr(sRate)}, {sr(sRate)}, {cfg.radd}")
        g(f"s_mul_i32 {sr(sTmp)}, {sr(sRate)}, {RD + 1}")
        g(f"s_add_u32 {sr(sTgt)}, {sr(sSy+1)}, {sr(sTmp)}")
        g(f"s_mov_b32 {sr(sEn)}, -1")
        g(f"s_branch L_cb{ph}")
    def cvt4(R):
        for i in range(4):
            g(f"v_cvt_f32_i32 {vr(R+i)}, {vr(R+i)}")
    def kmfma(n):
        s_, u = n >> 2, n & 3
        m = s_ >> 1
        Dd = DK + 4*u; T = TK + 4*u
        g(f"v_mfma_f32_16x16x32_bf16 {vr(Dd,4)}, {vr(T,4)}, {vr(Q+8*m,4)}, {vr(NB,4) if m == 0 else vr(Dd,4)}")
        g(f"v_mfma_f32_16x16x32_bf16 {vr(Dd,4)}, {vr(T,4)}, {vr(Q+8*m+4,4)}, {vr(Dd,4)}")
    def red(u, k):
        Dd = DK + 4*u
        g(f"v_add_f32_dpp {vr(X+u)}, {vr(Dd+1+k)}, {vr(Dd) if k == 0 else vr(X+u)} row_ror:{12-4*k}{dpp}")
    def kcvt(n):
        s_, u = n >> 2, n & 3
        R = RAW + 4*n
        cvt4(R)
        for y in range(2):
            g(f"v_cvt_pk_bf16_f32 {vr(TK+4*u+2*(s_&1)+y)}, {vr(R+2*y)}, {vr(R+2*y+1)}")
    assert 5 <= F <= 8
    g("s_waitcnt lgkmcnt(0)")
    g("s_barrier")
    for part in range(2):
        g(f"s_waitcnt vmcnt(4)")
        pst()
        for n in range(F, 8) if part == 0 and cfg.b2b else [F + part] if not cfg.b2b and F + part < 8 else []:
            big(n, vKC, sK, sBase)
        prep(part)
    assert cfg.b2b or F >= 6
    g(".p2align 6")
    g.label("L_kloop")
    g(f"s_add_u32 {sr(sNOff)}, {sr(sCur)}, {sr(sDelta)}")
    if cfg.rot:
        g(f"s_and_b32 {sr(sNOff)}, {sr(sNOff)}, 0x1fffff")
        g(f"s_or_b32 {sr(sNOff)}, {sr(sNOff)}, {sr(sReg)}")
    g(f"s_xor_b32 {sr(sDelta)}, {sr(sDelta)}, 0x18000")
    g(f"s_cmp_eq_u32 {sr(sSlot)}, 31")
    g("s_cbranch_scc1 L_lastk")
    g.label("L_lastkb")
    top("k")
    for n in range(16):
        issue("k", n, vKC, sK)
        if n > 0 and ((n-1) >> 2) & 1: kmfma(n-1)
        ctl_hooks("k", n)
        kcvt(n)
    Dd = DK + 12; T = TK + 12
    red(0, 0); red(1, 0)
    g(f"v_mfma_f32_16x16x32_bf16 {vr(Dd,4)}, {vr(T,4)}, {vr(Q+8,4)}, {vr(Dd,4)}")
    red(0, 1); red(1, 1)
    g(f"v_mfma_f32_16x16x32_bf16 {vr(Dd,4)}, {vr(T,4)}, {vr(Q+12,4)}, {vr(Dd,4)}")
    red(0, 2); red(1, 2); red(2, 0)
    g(f"s_mov_b32 {sr(sCur)}, {sr(sNOff)}")
    g(f"v_max3_f32 {vr(vM)}, {vr(vM)}, {vr(X)}, {vr(X+1)}")
    red(2, 1)
    g("s_nop 1")
    red(2, 2); red(3, 0)
    g("s_nop 1")
    red(3, 1)
    g("s_nop 1")
    red(3, 2)
    g(f"s_mov_b64 exec, {sr(sJ4,2)}")
    g(f"v_max3_f32 {vr(vM)}, {vr(vM)}, {vr(X+2)}, {vr(X+3)}")
    g(f"ds_write_b128 {vr(vLds)}, {vr(X,4)}")
    g("s_mov_b64 exec, -1")
    g(f"v_add_u32 {vr(vLds)}, 256, {vr(vLds)}")
    g(f"s_cmp_lt_u32 {sr(sSlot)}, 32")
    g("s_cbranch_scc1 L_kloop")
    if cfg.stamp:
        g("s_memrealtime s[94:95]")
    def readS():
        g(f"ds_read_b128 {vr(X,4)}, {vr(vLds)}")
        g(f"ds_read_b128 {vr(VS,4)}, {vr(vS)}")
        g(f"ds_read_b128 {vr(VZ,4)}, {vr(vS)} offset:8192")
    g(f"v_subrev_u32 {vr(vLds)}, 0x2000, {vr(vLds)}")
    readS()
    g(f"v_max_f32_dpp {vr(vM)}, {vr(vM)}, {vr(vM)} quad_perm:[2,3,0,1]{dpp}")
    xreduce("v_max_f32", vM, vT1)
    g(f"s_mov_b32 {sr(sDelta)}, 0x4000")
    g(f"v_readlane_b32 {sr(sTmp)}, {vr(vM)}, 0")
    g(f"v_readlane_b32 {sr(sTmp2)}, {vr(vM)}, 1")
    g("s_nop 0")
    g("s_nop 0")
    g(f"v_mov_b32 {vr(vM)}, {sr(sTmp)}")
    g(f"v_mov_b32 {vr(vT1)}, {sr(sTmp2)}")
    g(f"v_cndmask_b32 {vr(vM)}, {vr(vM)}, {vr(vT1)}, {sr(sHd,2)}")
    g("s_mov_b64 exec, 3")
    g(f"ds_write_b32 {vr(vG)}, {vr(vM)} offset:{XLDS}")
    g("s_mov_b64 exec, 1")
    g(f"ds_add_u32 {vr(vZero)}, {vr(vA)} offset:{BLDS}")
    g("s_mov_b64 exec, -1")
    def vmfma(m):
        for c in range(4):
            acc = O + (m*4+c)*4
            g(f"v_mfma_f32_16x16x32_bf16 {vr(acc,4)}, {vr(TV+4*c,4)}, {vr(WP,4)}, {vr(acc,4)}")
    def soft(n):
        if n == 0:
            for e in range(4): g(f"v_sub_f32 {vr(X+e)}, {vr(X+e)}, {vr(vM)}")
            for e in range(2): g(f"v_exp_f32 {vr(X+e)}, {vr(X+e)}")
        elif n == 1:
            for e in range(2, 4): g(f"v_exp_f32 {vr(X+e)}, {vr(X+e)}")
        elif n == 2:
            for e in range(4): g(f"v_perm_b32 {vr(U+e)}, {vr(VS+e)}, {vr(VS+e)}, {vr(vSelS)}")
            for e in range(4): g(f"v_mul_f32 {vr(U+e)}, {vr(X+e)}, {vr(U+e)}")
        elif n == 3:
            for y in range(2): g(f"v_cvt_pk_bf16_f32 {vr(P+y)}, {vr(U+2*y)}, {vr(U+2*y+1)}")
            for y in range(2): g(f"v_perm_b32 {vr(ZA+y)}, {vr(VZ+2*y+1)}, {vr(VZ+2*y)}, {vr(vSelZ)}")
        elif n == 4:
            for y in range(2): g(f"v_and_b32 {vr(WP+y)}, {vr(vMa)}, {vr(P+y)}")
            for y in range(2): g(f"v_and_b32 {vr(WP+2+y)}, {vr(vMb)}, {vr(P+y)}")
            g(f"v_mfma_f32_16x16x16_bf16 {vr(CORR,4)}, {vr(ZA,2)}, {vr(P,2)}, {vr(CORR,4)}")
        elif n == 5:
            g(f"v_add_f32 {vr(X)}, {vr(X)}, {vr(X+1)}")
            g(f"v_add_f32 {vr(X+2)}, {vr(X+2)}, {vr(X+3)}")
            g(f"v_add_f32 {vr(vL)}, {vr(vL)}, {vr(X)}")
            g(f"v_add_f32 {vr(vL)}, {vr(vL)}, {vr(X+2)}")
        elif n == 6:
            g(f"v_add_u32 {vr(vLds)}, 256, {vr(vLds)}")
            g(f"s_bfe_u32 {sr(sN)}, {sr(sNOff)}, 0xd0008")
            g(f"v_add_u32 {vr(vS)}, {sr(sN)}, {vr(vVA)}")
        elif n == cfg.rpos:
            readS()
    g(".p2align 6")
    g.label("L_vloop")
    g(f"s_add_u32 {sr(sNOff)}, {sr(sCur)}, {sr(sDelta)}")
    if cfg.rot:
        g(f"s_and_b32 {sr(sNOff)}, {sr(sNOff)}, 0x1fffff")
        g(f"s_or_b32 {sr(sNOff)}, {sr(sNOff)}, {sr(sReg)}")
    g(f"s_xor_b32 {sr(sDelta)}, {sr(sDelta)}, 0x18000")
    top("v")
    def vcvt(n):
        s_, u = n >> 2, n & 3
        R = RAW + 4*n
        cvt4(R)
        if u & 1:
            for c in range(4):
                g(f"v_cvt_pk_bf16_f32 {vr(TV+4*c+2*(s_&1)+(u>>1))}, {vr(R-4+c)}, {vr(R+c)}")
    for n in range(16):
        if n == 8:
            g(f"s_cmp_eq_u32 {sr(sSlot)}, 64")
            g("s_cbranch_scc1 L_tail")
        if cfg.ebl and n == cfg.ebs:
            assert n > 0
            g(f"s_cmp_eq_u32 {sr(sSlot)}, 64")
            g(f"s_cselect_b32 {sr(sL)}, {cfg.ebl}, {sr(sL)}")
        issue("v", n, vNx, sNx)
        if n == 8: vmfma(0)
        ctl_hooks("v", n)
        vcvt(n)
        soft(n)
    g(f"s_mov_b32 {sr(sCur)}, {sr(sNOff)}")
    g("s_nop 0")
    vmfma(1)
    g("s_branch L_vloop")
    sOff0, sOff1 = sCur, sNOff
    FO = 196; PA = FO
    def poll(P): g(f"buffer_load_dwordx4 {vr(P,4)}, {vr(vO16)}, {sr(sWS,4)}, {sr(sIn)} offen {cfg.rfl}")
    def pk(d, a, b): g(f"v_pk_add_f32 {vr(d,2)}, {vr(a,2)}, {vr(b,2)}")
    def est(k):
        if cfg.est: g(f"s_memrealtime s[{32+2*k}:{33+2*k}]")
    g.label("L_tail")
    g(f"s_cmp_lg_u32 {sr(sRdy)}, 2")
    g("s_cbranch_scc1 L_slow")
    g.label("L_tail2")
    vmfma(0)
    e0, e1, e2, e3 = Q, Q+1, Q+2, Q+3
    def outw(m, r):
        T = (DK if m == 0 else 20) + 4*r
        for c in range(4):
            g(f"v_fma_f32 {vr(T+c)}, {vr(O+(m*4+c)*4+r)}, {vr(vW)}, -{vr(vCW)}")
        g(f"ds_write_b128 {vr(e0)}, {vr(T,4)} offset:{m*256+r*16}")
    g(f"v_add_f32_dpp {vr(vL)}, {vr(vL)}, {vr(vL)} quad_perm:[2,3,0,1]{dpp}")
    g(f"s_lshl_b32 {sr(sTmp)}, {sr(sWave)}, 11")
    g(f"s_add_u32 {sr(sTmp)}, {sr(sTmp)}, {CLDS}")
    g(f"v_and_b32 {vr(e0)}, 3, {vr(vLane)}")
    g(f"v_lshlrev_b32 {vr(e0)}, 9, {vr(e0)}")
    g(f"v_bfe_u32 {vr(e1)}, {vr(vLane)}, 2, 1")
    g(f"v_lshl_add_u32 {vr(e0)}, {vr(e1)}, 7, {vr(e0)}")
    g(f"v_bfe_u32 {vr(e1)}, {vr(vLane)}, 4, 1")
    g(f"v_lshl_add_u32 {vr(e0)}, {vr(e1)}, 6, {vr(e0)}")
    g(f"v_add_u32 {vr(e0)}, {sr(sTmp)}, {vr(e0)}")
    g(f"v_mul_f32 {vr(vCW)}, {vr(CORR)}, {vr(vW)}")
    xreduce("v_add_f32", vL, vT1)
    g(f"v_mul_f32 {vr(vL)}, {vr(vL)}, {vr(vW)}")
    g(f"v_readlane_b32 {sr(sMh)}, {vr(MX)}, 0")
    g(f"v_readlane_b32 {sr(sN)}, {vr(MX)}, 1")
    g(f"s_mov_b64 exec, {sr(sEp,2)}")
    for r in range(4): outw(0, r)
    g("s_mov_b64 exec, 3")
    g(f"ds_write_b32 {vr(vG)}, {vr(vL)} offset:{MLDS}")
    g("s_mov_b64 exec, -1")
    g(f"s_and_b32 {sr(sOwn0)}, s2, {NP-1}")
    g(f"s_lshl_b32 {sr(sTmp)}, {sr(sOwn0)}, 1")
    g(f"s_add_u32 {sr(sTmp)}, {sr(sTmp)}, {sr(sWave)}")
    g(f"s_lshl_b32 {sr(sTmp2)}, {sr(sWave)}, 3")
    g(f"s_and_b32 {sr(sTmp2)}, {sr(sTmp2)}, 8")
    g(f"s_cmp_lt_u32 {sr(sWave)}, 2")
    g(f"s_cselect_b32 {sr(sTmp)}, {sr(sTmp)}, {sr(sTmp2)}")
    g(f"s_cselect_b32 {sr(sTmp2)}, 7, 63")
    g(f"v_and_b32 {vr(e2)}, {sr(sTmp2)}, {vr(vLane)}")
    g(f"v_lshl_add_u32 {vr(e2)}, {sr(sTmp)}, 3, {vr(e2)}")
    g(f"v_lshlrev_b32 {vr(e3)}, 3, {vr(e2)}")
    g(f"s_cmp_lt_u32 {sr(sTmp)}, 8")
    g(f"s_cselect_b32 {sr(sMh)}, {sr(sMh)}, {sr(sN)}")
    g(f"s_cselect_b32 {sr(sTmp2)}, 0, 16")
    g(f"v_mov_b32 {vr(e1)}, {sr(sTmp2)}")
    g(f"s_mul_i32 {sr(sIn)}, {sr(sBH)}, {GS}")
    g(f"s_add_u32 {sr(sIn)}, {sr(sIn)}, 0x{XBASE:x}")
    g(f"s_mul_i32 {sr(sOwn1)}, {sr(sOwn0)}, {PS_}")
    g(f"s_add_u32 {sr(sOwn1)}, {sr(sOwn1)}, {sr(sIn)}")
    g(f"v_lshrrev_b32 {vr(vP)}, 3, {vr(e2)}")
    g(f"v_and_b32 {vr(vOa)}, 0x70, {vr(vO16)}")
    g(f"s_lshl_b32 {sr(sTmp2)}, {sr(sTag)}, 1")
    g(f"v_add_u32 {vr(vP)}, {sr(sTmp2)}, {vr(vP)}")
    g(f"v_and_b32 {vr(vP)}, 15, {vr(vP)}")
    g(f"v_lshl_add_u32 {vr(vP)}, {vr(vP)}, 10, {vr(vOa)}")
    g(f"s_add_u32 {sr(sTmp)}, {sr(sTmp)}, {sr(sTmp2)}")
    g(f"s_and_b32 {sr(sTmp)}, {sr(sTmp)}, 15")
    g(f"s_lshl_b32 {sr(sTmp)}, {sr(sTmp)}, 10")
    g(f"s_add_u32 {sr(sIn)}, {sr(sIn)}, {sr(sTmp)}")
    g(f"s_lshl_b32 {sr(sOwn0)}, {sr(sOwn0)}, 3")
    g(f"s_lshl_b64 {sr(sOwnM,2)}, 0xff, {sr(sOwn0)}")
    g(f"s_cmp_lt_u32 {sr(sWave)}, 2")
    g(f"s_cselect_b64 {sr(sOwnM,2)}, {sr(sOwnM,2)}, -1")
    g(f"v_bfe_u32 {vr(vOa)}, {vr(vLane)}, 4, 1")
    g(f"v_lshl_add_u32 {vr(vOa)}, {vr(e2)}, 1, {vr(vOa)}")
    g(f"v_lshlrev_b32 {vr(vOa)}, 1, {vr(vOa)}")
    g(f"v_mov_b32 {vr(FO+3)}, {sr(sTag)}")
    g(f"s_lshl_b32 {sr(sTmp2)}, {sr(sBH)}, 9")
    srd(sOUT, 18, 16384)
    for n in range(8, 16):
        g(f"s_waitcnt vmcnt({15-n})")
        vcvt(n)
    est(0)
    g("s_nop 1")
    vmfma(1)
    g(f"s_not_b64 exec, {sr(sOwnM,2)}")
    g("s_cbranch_scc0 L_nop1")
    poll(PA)
    g.label("L_nop1")
    g(f"s_mov_b64 exec, {sr(sEp,2)}")
    g("s_nop 6")
    for r in range(4): outw(1, r)
    g(f"s_mov_b64 exec, {'-1' if cfg.stamp else sr(sOwnM,2)}")
    if cfg.tlog:
        tlog()
        g(f"s_lshl_b32 s89, {sr(sWave)}, 9")
        g(f"s_add_u32 s89, s89, {TLDS}")
        g(f"v_lshlrev_b32 {vr(TMP)}, 3, {vr(vLane)}")
        g(f"v_add_u32 {vr(TMP+1)}, s89, {vr(TMP)}")
        g(f"ds_read_b64 {vr(TMP+2,2)}, {vr(TMP+1)}")
        g(f"s_mul_i32 s89, s2, {WPW}")
        g(f"s_add_u32 s89, s89, {sr(sWave)}")
        g("s_lshl_b32 s89, s89, 9")
        g("s_add_u32 s89, s89, 0x1400000")
        g("s_waitcnt lgkmcnt(0)")
        g(f"buffer_store_dwordx2 {vr(TMP+2,2)}, {vr(TMP)}, {sr(sWS,4)}, s89 offen")
    def stamp(slot):
        g("s_memrealtime s[86:87]")
        g(f"s_mul_i32 s89, s2, {WPW}")
        g(f"s_add_u32 s89, s89, {sr(sWave)}")
        g("s_lshl_b32 s89, s89, 4")
        g(f"s_add_u32 s89, s89, 0x{0x1000000 + slot*0x100000:x}")
        g("s_waitcnt lgkmcnt(0)")
        g(f"v_mov_b32 {vr(TMP)}, s84"); g(f"v_mov_b32 {vr(TMP+1)}, s86"); g(f"v_mov_b32 {vr(TMP+2)}, s88"); g(f"v_mov_b32 {vr(TMP+3)}, s94")
        g("s_mov_b64 s[90:91], exec")
        g("s_mov_b64 exec, 1")
        g(f"buffer_store_dwordx4 {vr(TMP,4)}, off, {sr(sWS,4)}, s89")
        g("s_mov_b64 exec, s[90:91]")
    if cfg.stamp: stamp(0)
    g("s_waitcnt lgkmcnt(0)")
    g("s_barrier")
    est(1)
    OP = 48; ML = 64
    if cfg.stamp: g(f"s_mov_b64 exec, {sr(sOwnM,2)}")
    g(f"ds_read_b128 {vr(ML,4)}, {vr(e1)} offset:{MLDS}")
    for w in range(WPW):
        g(f"ds_read2st64_b64 {vr(OP+4*w,4)}, {vr(e3)} offset0:{CLDS//512+4*w} offset1:{CLDS//512+4*w+2}")
    lg = lambda n: g(f"s_waitcnt lgkmcnt({0 if cfg.est else n})")
    lg(4)
    pk(ML, ML, ML+2)
    g(f"v_add_f32 {vr(ML)}, {vr(ML)}, {vr(ML+1)}")
    lg(3)
    pk(OP, OP, OP+2)
    g(f"v_log_f32 {vr(FO+2)}, {vr(ML)}")
    lg(2)
    pk(OP+4, OP+4, OP+6)
    g(f"v_rcp_f32 {vr(ML)}, {vr(ML)}")
    lg(1)
    pk(OP+8, OP+8, OP+10)
    pk(OP, OP, OP+4)
    lg(0)
    pk(OP+12, OP+12, OP+14)
    g(f"v_add_f32 {vr(FO+2)}, {sr(sMh)}, {vr(FO+2)}")
    pk(OP+8, OP+8, OP+12)
    pk(OP, OP, OP+8)
    g(f"v_mul_f32 {vr(FO)}, {vr(OP)}, {vr(ML)}")
    g(f"v_mul_f32 {vr(FO+1)}, {vr(OP+1)}, {vr(ML)}")
    g(f"s_cmp_lt_u32 {sr(sWave)}, 2")
    g("s_cbranch_scc1 L_poll")
    g(f"buffer_store_dwordx4 {vr(FO,4)}, {vr(vP)}, {sr(sWS,4)}, {sr(sOwn1)} offen {cfg.wfl}")
    if cfg.stamp:
        g("s_memrealtime s[84:85]")
        g("s_waitcnt vmcnt(0)")
        stamp(3)
    if cfg.drt == 2:
        g("s_cmp_ge_u32 s2, 8")
        g("s_cbranch_scc1 L_end")
        g(f"s_cmp_lg_u32 {sr(sWave)}, 3")
        g("s_cbranch_scc1 L_end")
        g("s_sleep 127"); g("s_sleep 127")
        g("s_mov_b64 exec, 1")
        g("s_mov_b64 s[88:89], 0")
        g("s_mov_b32 s90, 0")
        g(f"s_lshl_b32 s91, s2, 7")
        g(f"s_add_u32 s91, s91, 0x{cfg.dbase:x}")
        g.label("L_dl")
        g("s_mov_b32 s94, 0x7fffffff")
        g("s_mov_b32 s95, 0")
        g.label("L_dr")
        g("v_mov_b32 v5, 0")
        g("s_memtime s[84:85]")
        g("s_waitcnt lgkmcnt(0)")
        g(f"buffer_atomic_add v5, off, {sr(sWS,4)}, s91 sc0 sc1")
        g("s_waitcnt vmcnt(0)")
        g("s_memtime s[86:87]")
        g("s_waitcnt lgkmcnt(0)")
        g("s_sub_u32 s86, s86, s84")
        g("s_min_u32 s94, s94, s86")
        g("s_add_u32 s95, s95, 1")
        g("s_cmp_lt_u32 s95, 6")
        g("s_cbranch_scc1 L_dr")
        g("s_lshr_b32 s94, s94, 2")
        g("s_min_u32 s94, s94, 255")
        g("s_mov_b32 s95, 0")
        g("s_lshl_b64 s[94:95], s[94:95], s90")
        g("s_or_b64 s[88:89], s[88:89], s[94:95]")
        g("s_add_u32 s91, s91, 4096")
        g("s_add_u32 s90, s90, 8")
        g("s_cmp_lt_u32 s90, 64")
        g("s_cbranch_scc1 L_dl")
        g("s_getreg_b32 s90, hwreg(HW_REG_XCC_ID)")
        g("s_and_b32 s90, s90, 7")
        g("s_lshl_b32 s90, s90, 3")
        g("s_atomic_add_x2 s[88:89], s[20:21], s90")
    g("s_endpgm")
    g.label("L_again")
    g("s_mov_b64 exec, vcc")
    if cfg.stamp or cfg.drt:
        g("s_add_u32 s88, s88, 1")
        g("s_cmp_lg_u32 s88, 1")
        g("s_cbranch_scc1 L_nf")
        g("s_memrealtime s[84:85]")
        g.label("L_nf")
    if cfg.psl2:
        g(f"s_bcnt1_i32_b64 {sr(sTmp)}, exec")
        g(f"s_cmp_le_u32 {sr(sTmp)}, {8*cfg.psl}")
        g("s_cbranch_scc1 L_nsl")
        g(f"s_sleep {cfg.psl2}")
        g.label("L_nsl")
    poll(PA)
    g("s_branch L_poll2")
    g.label("L_poll")
    if cfg.stamp or cfg.drt: g("s_mov_b32 s88, 0")
    est(2)
    g(f"s_not_b64 exec, {sr(sOwnM,2)}")
    g.label("L_poll2")
    g("s_waitcnt vmcnt(0)")
    g(f"v_cmp_ne_u32 vcc, {sr(sTag)}, {vr(PA+3)}")
    g("s_cbranch_vccnz L_again")
    g("s_mov_b64 exec, -1")
    est(3); est(4)
    if cfg.stamp or cfg.drt: g("s_memrealtime s[94:95]")
    A_, B_, W_, T_ = FO, FO+1, FO+2, ML
    g(f"v_max_f32_dpp {vr(T_)}, {vr(W_)}, {vr(W_)} row_ror:8{dpp}")
    for sw in (16, 32):
        g(f"v_mov_b32 {vr(T_+1)}, {vr(T_)}")
        g("s_nop 1")
        g(f"v_permlane{sw}_swap_b32 {vr(T_)}, {vr(T_+1)}")
        if cfg.psn: g("s_nop 0")
        g(f"v_max_f32 {vr(T_)}, {vr(T_)}, {vr(T_+1)}")
    g(f"v_sub_f32 {vr(W_)}, {vr(W_)}, {vr(T_)}")
    g(f"v_exp_f32 {vr(W_)}, {vr(W_)}")
    g("s_nop 0")
    g(f"v_mul_f32 {vr(A_)}, {vr(A_)}, {vr(W_)}")
    g(f"v_mul_f32 {vr(B_)}, {vr(B_)}, {vr(W_)}")
    g(f"v_add_f32_dpp {vr(T_)}, {vr(W_)}, {vr(W_)} row_ror:8{dpp}")
    g(f"v_add_f32_dpp {vr(W_)}, {vr(W_)}, {vr(W_)} row_ror:8{dpp}")
    g(f"v_permlane16_swap_b32 {vr(A_)}, {vr(B_)}")
    g(f"v_add_f32 {vr(A_)}, {vr(A_)}, {vr(B_)}")
    g(f"v_permlane16_swap_b32 {vr(W_)}, {vr(T_)}")
    g(f"v_add_f32 {vr(T_+1)}, {vr(W_)}, {vr(T_)}")
    g(f"v_add_f32 {vr(W_)}, {vr(W_)}, {vr(T_)}")
    g(f"v_add_f32_dpp {vr(B_)}, {vr(A_)}, {vr(A_)} row_ror:8{dpp}")
    g(f"v_add_f32_dpp {vr(A_)}, {vr(A_)}, {vr(A_)} row_ror:8{dpp}")
    g(f"v_permlane32_swap_b32 {vr(W_)}, {vr(T_+1)}")
    g(f"v_add_f32 {vr(W_)}, {vr(W_)}, {vr(T_+1)}")
    g(f"v_permlane32_swap_b32 {vr(A_)}, {vr(B_)}")
    g(f"v_rcp_f32 {vr(W_)}, {vr(W_)}")
    g(f"v_add_f32 {vr(A_)}, {vr(A_)}, {vr(B_)}")
    g("s_mov_b64 exec, 0x00ff00ff")
    g(f"v_mul_f32 {vr(A_)}, {vr(A_)}, {vr(W_)}")
    est(5)
    g(f"v_cvt_pk_bf16_f32 {vr(A_)}, {vr(A_)}, {vr(A_)}")
    g(f"buffer_store_short {vr(A_)}, {vr(vOa)}, {sr(sOUT,4)}, {sr(sTmp2)} offen{cfg.osc}")
    if cfg.drt == 1:
        g("s_cmp_eq_u32 s88, 0")
        g("s_cbranch_scc1 L_end")
        g("s_waitcnt lgkmcnt(0)")
        g("s_sub_u32 s89, s94, s84")
        g("s_getreg_b32 s90, hwreg(HW_REG_XCC_ID)")
        g("s_and_b32 s90, s90, 7")
        g("s_lshl_b32 s90, s90, 3")
        g("s_atomic_add_x2 s[88:89], s[20:21], s90")
    if cfg.stamp:
        est(6)
        g("s_waitcnt vmcnt(0)")
        est(7)
        stamp(1)
        if cfg.est:
            for k in range(8): g(f"v_mov_b32 v{32+k}, s{32+2*k}")
            g(f"s_lshl_b32 s89, {sr(sBH)}, 5")
            g("s_add_u32 s89, s89, 0x1200000")
            g("s_mov_b64 exec, 1")
            g(f"buffer_store_dwordx4 v[32:35], off, {sr(sWS,4)}, s89")
            g(f"buffer_store_dwordx4 v[36:39], off, {sr(sWS,4)}, s89 offset:16")
    g.label("L_end")
    g("s_endpgm")
    g.label("L_init")
    g(f"v_mul_u32_u24 {vr(t0)}, {CSTR}, {vr(vLane)}")
    g(f"s_mov_b64 exec, 0x{(1 << len(syncs)) - 1:x}")
    g(f"buffer_store_dwordx2 {vr(CORR,2)}, {vr(t0)}, {sr(sWS,4)}, {sr(sWOff)} offen sc1")
    g("s_mov_b64 exec, -1")
    g("s_branch L_noinit")
    g.label("L_slow")
    getm(" glc")
    g("s_waitcnt lgkmcnt(0)")
    weight("L_slow")
    g("s_branch L_tail2")
    g.label("L_lastk")
    srdp(sNx, 8)
    g(f"s_mov_b32 {sr(sNOff)}, {sr(sBase)}")
    g(f"v_lshrrev_b32 {vr(t0)}, 3, {vr(j_)}")
    g(f"v_and_b32 {vr(t1)}, 7, {vr(j_)}")
    g(f"v_lshlrev_b32 {vr(t1)}, 4, {vr(t1)}")
    g(f"v_lshl_add_u32 {vr(t1)}, {vr(t0)}, 9, {vr(t1)}")
    g(f"v_lshl_add_u32 {vr(vNx)}, {vr(g_)}, 15, {vr(t1)}")
    g.label("L_copied")
    g(f"v_readfirstlane_b32 {sr(sTmp)}, {vr(vA)}")
    g(f"s_cmp_ge_u32 {sr(sTmp)}, {WPW}")
    g(f"v_mov_b32 {vr(vA)}, 1")
    g("s_cbranch_scc1 L_lastkb")
    g(f"ds_read_b32 {vr(vA)}, {vr(vZero)} offset:{BLDS}")
    g("s_waitcnt lgkmcnt(0)")
    g("s_branch L_copied")
    ctl_blocks("k")
    ctl_blocks("v")
    g.lines.insert(len(g.lines) - 1, "L_last:")
    main = g.text()

    lds = TLDS + (2048 if cfg.tlog else 0)
    out = HEADER
    out += f"; @launch grid=({NWG},1,1) block=({WPW*64},1,1) lds={max(lds, cfg.lds)}\n"
    out += '.amdgcn_target "amdgcn-amd-amdhsa--gfx950"\n.text\n'
    out += f".globl {NAME}_kernel\n.p2align 8\n.type {NAME}_kernel,@function\n" + main
    out += '.section .rodata,"a"\n'
    out += (f".p2align 6\n.amdhsa_kernel {NAME}_kernel\n  .amdhsa_next_free_vgpr {NV}\n  .amdhsa_next_free_sgpr {NS}\n"
            f"  .amdhsa_accum_offset {NV}\n  .amdhsa_group_segment_fixed_size 0\n  .amdhsa_kernarg_size 80\n"
            "  .amdhsa_user_sgpr_count 2\n  .amdhsa_user_sgpr_kernarg_segment_ptr 1\n"
            "  .amdhsa_system_sgpr_workgroup_id_x 1\n.end_amdhsa_kernel\n")
    return out

if __name__ == "__main__":
    ap = argparse.ArgumentParser()
    ap.add_argument("-o", default="/dev/stdout")
    ap.add_argument("--stamp", type=int, default=0)
    ap.add_argument("--tlog", type=int, default=0)
    ap.add_argument("--pst", type=int, default=0)
    ap.add_argument("--d", type=int, default=5)
    ap.add_argument("--tiers", type=int, default=2)
    ap.add_argument("--first", type=int, default=6)
    ap.add_argument("--b2b", type=int, default=0)
    ap.add_argument("--lds", type=int, default=0)
    ap.add_argument("--ctlpos", type=int, default=8)
    ap.add_argument("--tpos", type=int, default=14)
    ap.add_argument("--rpos", type=int, default=12)
    ap.add_argument("--si", type=int, default=4)
    ap.add_argument("--s0", type=int, default=2)
    ap.add_argument("--rd", type=int, default=2)
    ap.add_argument("--rglc", type=int, default=0)
    ap.add_argument("--radd", type=int, default=0)
    ap.add_argument("--slow", type=int, default=4)
    ap.add_argument("--law", default="60:16,-25:-1,-50:-2,-80:-3")
    ap.add_argument("--cap", default="2:4")
    ap.add_argument("--wsc", type=int, default=1)
    ap.add_argument("--fslot", type=int, default=45)
    ap.add_argument("--diag", default="")
    ap.add_argument("--base", type=int, default=0)
    ap.add_argument("--law2", default="90:16")
    ap.add_argument("--tlb", type=int, default=0)
    ap.add_argument("--dnt", type=int, default=1)
    ap.add_argument("--tlbs", type=int, default=25)
    ap.add_argument("--est", type=int, default=0)
    ap.add_argument("--ebs", type=int, default=3)
    ap.add_argument("--ebl", type=int, default=0)
    ap.add_argument("--cpf", type=int, default=1)
    ap.add_argument("--rot", default="")
    ap.add_argument("--late", default="")
    ap.add_argument("--latecap", type=int, default=1)
    ap.add_argument("--eb", default="")
    ap.add_argument("--spec", type=int, default=1)
    ap.add_argument("--osc", default="")
    ap.add_argument("--bpos", type=int, default=0)
    ap.add_argument("--np", type=int, default=2)
    ap.add_argument("--psn", type=int, default=0)
    ap.add_argument("--nr", type=int, default=4)
    ap.add_argument("--inv", type=int, default=0)
    ap.add_argument("--dv", type=int, default=0)
    ap.add_argument("--dbase", type=lambda x: int(x, 0), default=0x100000)
    ap.add_argument("--drt", type=int, default=0)
    ap.add_argument("--xoff", type=int, default=0)
    ap.add_argument("--pres", type=int, default=0)
    ap.add_argument("--prev", type=int, default=0)
    ap.add_argument("--prer", type=int, default=0)
    ap.add_argument("--prew", type=int, default=0)
    ap.add_argument("--pfl", default="sc1")
    ap.add_argument("--lay", default="1024:128:16384")
    ap.add_argument("--psl", type=int, default=3)
    ap.add_argument("--psl2", type=int, default=0)
    ap.add_argument("--wfl", default="sc1")
    ap.add_argument("--rfl", default="sc1")
    cfg = ap.parse_args()
    open(cfg.o, "w").write(build(cfg))
```

```python
import sys, argparse, math, struct
from gen import Gen, vr, sr, HEADER, NAME, f32bits

def build(cfg):
    WPW = 4; NWG = 256; NP = 8
    MLBASE = 32 * NP * 1024
    I = cfg.si; LI = int(math.log2(I)); RD = cfg.rd
    syncs = list(range(cfg.s0, 64 - RD, I))
    wmask = sum(1 << c for c in syncs); rmask = sum(1 << (c + RD) for c in syncs)
    assert len(syncs) <= 32 and (wmask & rmask) == 0 and 1 << LI == I
    SU = [1, 3, 5, 29]
    FS = [cfg.fslot, cfg.fslot + 2]
    omask = sum(1 << c for c in SU + FS)
    RW, RR, RP = 9, list(range(11, 11 + 2 * cfg.nr, 2)), 13 + 2 * cfg.nr
    assert RP < 29
    zmask = sum(1 << c for c in [RW, RP] + RR)
    assert all(c % 2 == 0 for c in syncs) and RD % 2 == 0 and cfg.fslot % 2 == 1 and cfg.fslot > 32
    CBASE = 0x50000; CSTR = 4352
    XBASE = 0x80000 + cfg.xoff
    RS, PS_, GS = [int(x) for x in cfg.lay.split(":")]
    assert cfg.lay == "1024:128:16384"
    RBASE = XBASE + 32 * GS
    WSBYTES = RBASE + 16384
    D, LA = cfg.d, 8
    assert D + cfg.tiers <= LA
    nt = " nt"
    g = Gen()
    vB, vKC, vVA, vNx, vZero, vS, vLds, vLane, vM, vL, vT1, vBias = range(12)
    vSelS, vSelZ, vMa, vMb = 12, 13, 14, 15
    Q = 16
    NB = 32
    TK = 36
    TV = 36
    DK = 52
    X = 68
    VS = 72; VZ = 76; U = 80; P = 84; ZA = 86; WP = 88
    vA, vOne, vO16, vO8 = 92, 93, 94, 95
    O = 96
    CORR = 128
    RAW = 132
    SM = 196
    vW, vG, vCW, vP, vOa, vCnt, vIn = range(220, 227)
    MX = 228
    TMP = 244
    PT = 204
    NV = 256
    sK, sV, sVS, sVZ, sQ, sKS, sKZ, sWS, sDBG, sOUT, sNx = 24, 28, 32, 36, 40, 44, 48, 52, 76, 76, 96
    sWave, sUnit, sCur, sNOff, sDelta, sN, sTmp, sTmp2, sBH, sBase = 56, 57, 58, 59, 60, 61, 62, 63, 64, 65
    sJ4 = 66; sHi = 68; sC = 69; sExec = 70; sHd = 80; sEp = 82; sCk = 92
    sL, sPend, sSlot, sWOff, sROff = 4, 5, 13, 100, 101
    sTgt, sA, sRate, sPm, sPrev, sOk, sEn, sCr, sFlag = 12, 11, 10, 14, 3, 28, 29, 30, 31
    sOwn0, sOwn1 = 16, 17
    sT, sSy, sSw, sCkW = 40, 42, 44, 46
    sReg = 72
    sOwnM, sRdy, sTag, sIn, sMh = 48, 50, 51, 73, 74
    NS = 102
    LV = 32768
    CLDS = 49152
    MLDS = CLDS + 8192
    XLDS = MLDS + 32
    BLDS = MLDS + WPW * 16
    TLDS = BLDS + 16
    dpp = " row_mask:0xf bank_mask:0xf"

    g.label(f"{NAME}_kernel")
    g(f"s_cmp_ge_u32 s2, {NWG}")
    g("s_cbranch_scc1 L_end")
    g("s_load_dwordx4 s[4:7], s[0:1], 0")
    g("s_load_dwordx4 s[8:11], s[0:1], 16")
    g("s_load_dwordx8 s[12:19], s[0:1], 32")
    g("s_load_dwordx4 s[20:23], s[0:1], 64")
    if cfg.cpf:
        g(f"s_getpc_b64 {sr(sExec,2)}")
        g.label("L_pc")
        g(f"v_lshlrev_b32 {vr(TMP+4)}, 6, v0")
        g(f"v_min_u32 {vr(TMP+4)}, L_last-L_pc, {vr(TMP+4)}")
        g(f"global_load_dword {vr(TMP+5)}, {vr(TMP+4)}, {sr(sExec,2)}")
    if cfg.stamp:
        g("s_memrealtime s[84:85]")
        g("s_getreg_b32 s88, hwreg(HW_REG_XCC_ID)")
    w_, j_, g_, a_, b_, g1, g2, hd, pr, t0, t1, oS, l8, qa = range(PT, PT + 14)
    g(f"v_and_b32 {vr(vLane)}, 63, v0")
    g(f"v_lshrrev_b32 {vr(w_)}, 6, v0")
    g(f"v_and_b32 {vr(j_)}, 15, {vr(vLane)}")
    g(f"v_lshrrev_b32 {vr(g_)}, 4, {vr(vLane)}")
    g(f"v_readfirstlane_b32 {sr(sWave)}, {vr(w_)}")
    g(f"v_lshrrev_b32 {vr(a_)}, 2, {vr(j_)}")
    g(f"v_and_b32 {vr(b_)}, 3, {vr(j_)}")
    g(f"v_and_b32 {vr(g1)}, 1, {vr(g_)}")
    g(f"v_lshrrev_b32 {vr(g2)}, 1, {vr(g_)}")
    g(f"v_lshlrev_b32 {vr(t0)}, 15, {vr(a_)}")
    g(f"v_lshl_add_u32 {vr(t0)}, {vr(g2)}, 9, {vr(t0)}")
    g(f"v_lshl_add_u32 {vr(t0)}, {vr(g1)}, 6, {vr(t0)}")
    g(f"v_lshl_add_u32 {vr(vKC)}, {vr(b_)}, 4, {vr(t0)}")
    g(f"v_lshlrev_b32 {vr(l8)}, 3, {vr(vLane)}")
    g(f"v_and_b32 {vr(oS)}, 0xff, {vr(l8)}")
    g(f"v_lshlrev_b32 {vr(vO16)}, 4, {vr(vLane)}")
    g(f"s_lshr_b32 {sr(sUnit)}, s2, 2")
    g(f"s_lshr_b32 {sr(sBH)}, s2, 3")
    g(f"s_lshl_b32 {sr(sBase)}, s2, 9")
    g(f"s_add_u32 {sr(sBase)}, {sr(sBase)}, {sr(sWave)}")
    g(f"s_lshl_b32 {sr(sBase)}, {sr(sBase)}, 12")
    if cfg.rot:
        rm, rs = [int(x) for x in cfg.rot.split(":")]
        g(f"s_mul_i32 {sr(sReg)}, s2, {rm}")
        g(f"s_lshr_b32 {sr(sReg)}, {sr(sReg)}, {rs}")
        g(f"s_and_b32 {sr(sReg)}, {sr(sReg)}, 15")
        g(f"s_lshl_b32 {sr(sReg)}, {sr(sReg)}, 17")
        g(f"s_add_u32 {sr(sBase)}, {sr(sBase)}, {sr(sReg)}")
        g(f"s_lshl_b32 {sr(sReg)}, s2, 21")
    g(f"s_lshl_b32 {sr(sTmp)}, {sr(sBH)}, 9")
    g(f"s_lshl_b32 {sr(sTmp2)}, {sr(sUnit)}, 8")
    for d in (sK, sQ, sKS, sKZ, sVS, sVZ, sWS):
        g(f"s_mov_b32 {sr(d+3)}, 0x00020000")
    g(f"s_mov_b32 {sr(sK+2)}, 0x20000000")
    for d in (sQ, sKS, sKZ): g(f"s_mov_b32 {sr(d+2)}, 0x4000")
    for d in (sVS, sVZ): g(f"s_mov_b32 {sr(d+2)}, 0x200000")
    g(f"s_mov_b32 {sr(sWS+2)}, 0x{WSBYTES if not (cfg.stamp or cfg.drt) else 0x2000000:x}")
    g(f"s_lshl_b32 {sr(sN)}, s2, 13")
    g(f"s_lshl_b32 {sr(sDelta)}, {sr(sWave)}, 11")
    g(f"s_add_u32 {sr(sN)}, {sr(sN)}, {sr(sDelta)}")
    g(f"s_add_u32 m0, {sr(sDelta)}, {LV}")
    sOwn = 75
    if cfg.prew:
        g(f"s_lshr_b32 {sr(sOwn)}, {sr(sN)}, 2")
        g(f"s_add_u32 {sr(sOwn)}, {sr(sOwn)}, 0x{XBASE:x}")
        for r in range(2): g(f"v_mov_b32 {vr(CORR+r)}, 0")
    if cfg.tlog:
        g(f"s_lshl_b32 s89, {sr(sWave)}, 9")
        g(f"s_add_u32 s89, s89, {TLDS}")
    g("s_waitcnt lgkmcnt(0)")
    if cfg.loc:
        g(f"s_andn2_b32 {sr(sBase)}, {sr(sBase)}, 0x802000")
        g(f"s_bfe_u32 s90, {sr(sWave)}, 0x10001")
        g("s_lshl_b32 s90, s90, 23")
        g(f"s_or_b32 {sr(sBase)}, {sr(sBase)}, s90")
        g(f"s_lshr_b32 s90, {sr(sBase)}, 21")
        g("s_lshl_b32 s90, s90, 3")
        g("s_add_u32 s90, s90, 0x10000")
        g("s_load_dwordx2 s[86:87], s[4:5], s90")
        g("s_bfe_u32 s90, s88, 0x10002")
        if cfg.loc == 3:
            g(f"s_bfe_u32 s91, {sr(sWave)}, 0x10001")
            g("s_xor_b32 s90, s90, s91")
        g("s_waitcnt lgkmcnt(0)")
        g("s_xor_b32 s86, s86, s90")
        g("s_xor_b32 s87, s87, s90")
        g("s_lshl_b32 s86, s86, 13")
        g("s_lshl_b32 s87, s87, 13")
        g(f"s_or_b32 {sr(sReg)}, {sr(sBase)}, s87")
        g(f"s_or_b32 {sr(sBase)}, {sr(sBase)}, s86")
    if cfg.nf:
        g("s_lshl_b32 s90, s2, 3")
        g("s_add_u32 s90, s90, 0x10000")
        g("s_load_dwordx2 s[86:87], s[4:5], s90")
    def pst():
        if not cfg.pst: return
        g("s_memrealtime s[90:91]")
        g("s_waitcnt lgkmcnt(0)")
        g("s_lshl_b32 s90, s90, 7")
        g(f"v_mov_b32 {vr(TMP+2)}, s90")
        g(f"v_mov_b32 {vr(TMP+3)}, s89")
        g(f"ds_write_b32 {vr(TMP+3)}, {vr(TMP+2)}")
        g("s_add_u32 s89, s89, 4")
    pst()
    def srdp(d, p):
        g(f"s_mov_b32 {sr(d)}, {sr(p)}")
        g(f"s_and_b32 {sr(d+1)}, {sr(p+1)}, 0xffff")
    def srd(d, p, nbytes):
        srdp(d, p)
        g(f"s_mov_b32 {sr(d+2)}, 0x{nbytes:x}")
        g(f"s_mov_b32 {sr(d+3)}, 0x00020000")
    def big(n, va, sd, so):
        s_, u = n >> 2, n & 3
        g(f"buffer_load_dwordx4 {vr(RAW+4*n,4)}, {vr(va)}, {sr(sd,4)}, {sr(so)} offen offset:{u*1024+s_*128}{nt}")
    RQ, RKS, RZ = SM, SM + 2, SM + 4
    F = cfg.first
    srdp(sK, 6)
    def prew():
        assert cfg.lay == "128:2048:16384"
        srdp(sWS, 22)
        g(f"buffer_store_dwordx2 {vr(CORR,2)}, {vr(l8)}, {sr(sWS,4)}, {sr(sOwn)} offen {cfg.pfl}")
    if cfg.prew == 1: prew()
    for n in range(F):
        big(n, vKC, sK, sBase)
        if cfg.prew == n + 2: prew()
    pst()
    srdp(sQ, 4); srdp(sKS, 10); srdp(sKZ, 12)
    g(f"buffer_load_dwordx2 {vr(RQ,2)}, {vr(l8)}, {sr(sQ,4)}, {sr(sTmp)} offen{nt if cfg.dnt > 1 else ''}")
    g(f"buffer_load_dwordx2 {vr(RKS,2)}, {vr(oS)}, {sr(sKS,4)}, {sr(sTmp2)} offen{nt if cfg.dnt > 1 else ''}")
    g(f"buffer_load_dwordx2 {vr(RZ,2)}, {vr(oS)}, {sr(sKZ,4)}, {sr(sTmp2)} offen{nt if cfg.dnt > 1 else ''}")
    srdp(sVS, 14); srdp(sVZ, 16)
    for x in range(2):
        g(f"buffer_load_dwordx4 {vr(vO16)}, {sr(sVS,4)}, {sr(sN)} offen offset:{1024*x}{nt if cfg.dnt else ''} lds")
    g(f"s_add_u32 m0, {sr(sDelta)}, {LV+8192}")
    srdp(sWS, 22)
    for x in range(2):
        g(f"buffer_load_dwordx4 {vr(vO16)}, {sr(sVZ,4)}, {sr(sN)} offen offset:{1024*x}{nt if cfg.dnt else ''} lds")
    pst()
    srd(sNx, 6, 0x20000000)
    g(f"s_mov_b32 {sr(sHi)}, 0xffff0000")
    g(f"s_mov_b32 {sr(sC)}, 0x{f32bits((128.0 ** -0.5) * math.log2(math.e)):08x}")
    g(f"v_and_b32 {vr(hd)}, 1, {vr(j_)}")
    g(f"v_bfe_u32 {vr(pr)}, {vr(j_)}, 1, 1")
    g(f"v_mov_b32 {vr(vNx)}, {vr(vKC)}")
    g(f"v_lshl_add_u32 {vr(t0)}, {vr(g_)}, 2, {vr(b_)}")
    g(f"v_lshlrev_b32 {vr(t0)}, 4, {vr(t0)}")
    g(f"v_lshl_add_u32 {vr(vLds)}, {vr(w_)}, 13, {vr(t0)}")
    g(f"v_xor_b32 {vr(t0)}, {vr(pr)}, {vr(g2)}")
    g(f"v_lshl_add_u32 {vr(qa)}, {vr(g1)}, 2, {vr(a_)}")
    g(f"v_lshl_add_u32 {vr(qa)}, {vr(hd)}, 5, {vr(qa)}")
    g(f"v_lshl_add_u32 {vr(qa)}, {vr(t0)}, 6, {vr(qa)}")
    g(f"v_lshl_add_u32 {vr(qa)}, {vr(w_)}, 7, {vr(qa)}")
    g(f"v_lshlrev_b32 {vr(qa)}, 4, {vr(qa)}")
    g(f"v_add_u32 {vr(qa)}, {CLDS}, {vr(qa)}")
    g(f"v_lshl_add_u32 {vr(l8)}, {vr(w_)}, 11, {vr(vO16)}")
    for r in range(4): g(f"v_mov_b32 {vr(CORR+r)}, 0")
    g(f"v_cmp_gt_u32 {sr(sJ4,2)}, 4, {vr(j_)}")
    g(f"v_cmp_ne_u32 {sr(sHd,2)}, 0, {vr(hd)}")
    g(f"ds_write_b128 {vr(l8)}, {vr(CORR,4)} offset:{CLDS+1024}")
    g(f"v_mov_b32 {vr(vZero)}, 0")
    g(f"ds_write_b64 {vr(CORR)}, {vr(CORR,2)} offset:{BLDS}")
    g(f"v_mov_b32 {vr(vM)}, 0xff7fffff")
    g(f"s_mov_b32 {sr(sWOff)}, 0x{CBASE:x}")
    g(f"s_mov_b32 {sr(sROff)}, 0x{CBASE:x}")
    def pres():
        assert cfg.lay == "128:2048:16384"
        g(f"s_lshl_b32 {sr(sTmp)}, s2, 2")
        g(f"s_add_u32 {sr(sTmp)}, {sr(sTmp)}, {sr(sWave)}")
        g(f"s_lshl_b32 {sr(sTmp)}, {sr(sTmp)}, 9")
        g(f"s_add_u32 {sr(sTmp)}, {sr(sTmp)}, 0x{XBASE:x}")
        if cfg.prev:
            g(f"v_lshlrev_b32 {vr(vIn)}, 3, {vr(vLane)}")
            g(f"buffer_load_dwordx2 v[196:197], {vr(vIn)}, {sr(sWS,4)}, {sr(sTmp)} offen")
            return
        for i in range(8):
            g(f"s_load_dword {sr(sIn)}, s[22:23], {sr(sTmp)}")
            if i < 7: g(f"s_add_u32 {sr(sTmp)}, {sr(sTmp)}, 64")
    def setup(k):
        if k == 0:
            g(f"v_lshrrev_b32 {vr(t0)}, 3, {vr(j_)}")
            g(f"v_mul_u32_u24 {vr(t0)}, 0x0202, {vr(t0)}")
            g(f"v_lshl_add_u32 {vr(t0)}, {vr(t0)}, 16, {vr(t0)}")
            g(f"v_add_u32 {vr(vSelZ)}, 0x05040100, {vr(t0)}")
            g(f"v_mul_u32_u24 {vr(t0)}, 0x0202, {vr(pr)}")
            g(f"v_lshlrev_b32 {vr(t0)}, 16, {vr(t0)}")
            g(f"v_add_u32 {vr(vSelS)}, 0x01000c0c, {vr(t0)}")
            g(f"v_bfe_u32 {vr(t0)}, {vr(j_)}, 2, 1")
            g(f"v_sub_u32 {vr(vMb)}, 0, {vr(t0)}")
            g(f"v_not_b32 {vr(vMa)}, {vr(vMb)}")
            g(f"v_lshlrev_b32 {vr(vVA)}, 7, {vr(g_)}")
            g(f"s_bfe_u32 {sr(sTmp)}, {sr(sBase)}, 0xd0008")
            g(f"v_add_u32 {vr(vVA)}, {LV}, {vr(vVA)}")
            g(f"v_add_u32 {vr(vS)}, {sr(sTmp)}, {vr(vVA)}")
            g(f"v_cmp_eq_u32 {sr(sEp,2)}, {vr(pr)}, {vr(g2)}")
            g(f"v_cmp_gt_u32 vcc, 8, {vr(j_)}")
            g(f"v_mov_b32 {vr(vL)}, 0")
            g(f"s_and_b64 {sr(sEp,2)}, {sr(sEp,2)}, vcc")
            g(f"s_mov_b32 {sr(sRdy)}, 0")
            g(f"s_lshl_b32 {sr(sTmp)}, {sr(sWave)}, 2")
            g(f"v_lshl_add_u32 {vr(vG)}, {vr(hd)}, 4, {sr(sTmp)}")
            g("s_cmp_eq_u32 s2, 0")
            g(f"s_cselect_b32 {sr(sTmp)}, 0x{zmask:x}, 0")
            g(f"s_or_b32 {sr(sCk)}, {sr(sCk)}, {sr(sTmp)}")
        elif k in (1, 2):
            if k == 1:
                g(f"v_mov_b32 {vr(vA)}, 1")
                g("s_mov_b64 exec, 1")
                g(f"ds_add_u32 {vr(vZero)}, {vr(vA)} offset:{BLDS}")
                g("s_mov_b64 exec, -1")
            for r in range(16): g(f"v_mov_b32 {vr(O+16*(k-1)+r)}, 0")
            if k == 2 and cfg.pres == 2: pres()
        elif k == 3:
            g(f"ds_read_b32 {vr(vA)}, {vr(vZero)} offset:{BLDS}")
    g(f"s_or_b32 {sr(sTmp)}, s2, {sr(sWave)}")
    g(f"s_cmp_eq_u32 {sr(sTmp)}, 0")
    g("s_cbranch_scc1 L_init")
    g.label("L_noinit")
    g(f"s_mov_b32 {sr(sCur)}, {sr(sBase)}")
    g(f"s_mov_b32 {sr(sDelta)}, 0x4000")
    g(f"s_mov_b32 {sr(sPend)}, 0")
    g(f"s_mov_b32 {sr(sSlot)}, 0")
    for r in (sTgt, sRate, sPrev): g(f"s_mov_b32 {sr(r)}, 0")
    for r in (sOk, sCr, sT): g(f"s_mov_b64 {sr(r,2)}, 0")
    g(f"s_and_b32 {sr(sTmp)}, s2, 0x38")
    g(f"s_lshr_b32 {sr(sTmp2)}, s2, 6")
    g(f"s_xor_b32 {sr(sTmp2)}, {sr(sTmp2)}, {sr(sWave)}")
    g(f"s_or_b32 {sr(sTmp)}, {sr(sTmp)}, {sr(sTmp2)}")
    g(f"s_cmp_eq_u32 {sr(sTmp)}, 0")
    g(f"s_cselect_b32 {sr(sCkW)}, 0x{wmask & 0xffffffff:x}, 0")
    g(f"s_cselect_b32 {sr(sCkW+1)}, 0x{wmask >> 32:x}, 0")
    g(f"s_or_b32 {sr(sCk)}, {sr(sCkW)}, 0x{(rmask | omask) & 0xffffffff:x}")
    g(f"s_or_b32 {sr(sCk+1)}, {sr(sCkW+1)}, 0x{(rmask | omask) >> 32:x}")
    pst()

    def xreduce(op, v, t, both=True):
        g(f"v_mov_b32 {vr(t)}, {vr(v)}")
        g("s_nop 1")
        g(f"v_permlane16_swap_b32 {vr(v)}, {vr(t)}")
        g("s_nop 1")
        g(f"{op} {vr(v)}, {vr(v)}, {vr(t)}")
        if not both: return
        g(f"v_mov_b32 {vr(t)}, {vr(v)}")
        g("s_nop 1")
        g(f"v_permlane32_swap_b32 {vr(v)}, {vr(t)}")
        g("s_nop 1")
        g(f"{op} {vr(v)}, {vr(v)}, {vr(t)}")
    def prep(part):
        a0, a1, b0, b1, z0, z1, h0, h1 = range(VS, VS + 8)
        HL = U
        for y in range(2 if part == 0 else 0):
            g(f"v_lshlrev_b32 v{a0}, 16, {vr(RQ+y)}")
            g(f"v_and_b32 v{a1}, {sr(sHi)}, {vr(RQ+y)}")
            g(f"v_lshlrev_b32 v{b0}, 16, {vr(RKS+y)}")
            g(f"v_and_b32 v{b1}, {sr(sHi)}, {vr(RKS+y)}")
            g(f"v_lshlrev_b32 v{z0}, 16, {vr(RZ+y)}")
            g(f"v_and_b32 v{z1}, {sr(sHi)}, {vr(RZ+y)}")
            g(f"v_mul_f32 v{a0}, v{a0}, v{b0}")
            g(f"v_mul_f32 v{a1}, v{a1}, v{b1}")
            g(f"v_mul_f32 v{a0}, {sr(sC)}, v{a0}")
            g(f"v_mul_f32 v{a1}, {sr(sC)}, v{a1}")
            g(f"v_cvt_pk_bf16_f32 {vr(HL+y)}, v{a0}, v{a1}")
            if y == 0: g(f"v_mul_f32 {vr(vBias)}, v{a0}, v{z0}")
            else: g(f"v_fmac_f32 {vr(vBias)}, v{a0}, v{z0}")
            g(f"v_fmac_f32 {vr(vBias)}, v{a1}, v{z1}")
            g(f"v_lshlrev_b32 v{h0}, 16, {vr(HL+y)}")
            g(f"v_and_b32 v{h1}, {sr(sHi)}, {vr(HL+y)}")
            g(f"v_sub_f32 v{a0}, v{a0}, v{h0}")
            g(f"v_sub_f32 v{a1}, v{a1}, v{h1}")
            g(f"v_cvt_pk_bf16_f32 {vr(HL+2+y)}, v{a0}, v{a1}")
        if part == 0:
            g(f"ds_write_b128 {vr(l8)}, {vr(HL,4)} offset:{CLDS}")
            return
        for m in range(2):
            g(f"ds_read2_b64 {vr(Q+8*m,4)}, {vr(qa)} offset0:{32*m} offset1:{32*m+16}")
            g(f"ds_read2_b64 {vr(Q+8*m+4,4)}, {vr(qa)} offset0:{32*m+1} offset1:{32*m+17}")
        for r in (1, 2, 4, 8):
            g(f"v_add_f32_dpp {vr(vBias)}, {vr(vBias)}, {vr(vBias)} row_ror:{r}{dpp}")
            g("s_nop 1")
        xreduce("v_add_f32", vBias, vT1, both=False)
        g(f"v_mul_f32 {vr(vBias)}, 0xbe800000, {vr(vBias)}")
        g("s_nop 0")
        g(f"v_readlane_b32 {sr(sTmp)}, {vr(vBias)}, 0")
        g(f"v_readlane_b32 {sr(sTmp2)}, {vr(vBias)}, 32")
        g("s_nop 1")
        g(f"v_mov_b32 {vr(NB)}, {sr(sTmp)}")
        g(f"v_mov_b32 {vr(vT1)}, {sr(sTmp2)}")
        g(f"v_cndmask_b32 {vr(NB)}, {vr(NB)}, {vr(vT1)}, {sr(sHd,2)}")
        for r in range(1, 4):
            g(f"v_mov_b32 {vr(NB+r)}, {vr(NB)}")

    def tlog():
        if not cfg.tlog: return
        g("s_memrealtime s[90:91]")
        g("s_waitcnt lgkmcnt(0)")
        g("s_lshl_b32 s90, s90, 7")
        g(f"s_add_u32 s91, {sr(sL)}, 32")
        g("s_and_b32 s91, s91, 127")
        g("s_or_b32 s90, s90, s91")
        g(f"v_mov_b32 {vr(TMP)}, s90")
        g(f"v_mov_b32 {vr(TMP+1)}, s89")
        g(f"ds_write_b32 {vr(TMP+1)}, {vr(TMP)}")
        g("s_add_u32 s89, s89, 4")
    def br4(n): return int(f"{n:04b}"[::-1], 2)
    def issue(ph, n, va, sd):
        tiers = 3 if ph == "v" and cfg.ebl and cfg.ebs <= n < 8 else cfg.tiers
        for t in range(tiers, 0, -1):
            g(f"s_cmp_gt_i32 {sr(sL)}, {br4(n) + 16*(t-1)}")
            g(f"s_cbranch_scc1 L_{ph}w{n}_{t}")
        if cfg.slow and br4(n) < cfg.slow:
            g(f"s_cmp_lt_i32 {sr(sL)}, {-br4(n)}")
            g(f"s_cbranch_scc0 L_{ph}w{n}_0")
            g(f"s_waitcnt vmcnt({D-2})")
        for t in range(tiers + 1):
            g.label(f"L_{ph}w{n}_{t}")
            g(f"s_waitcnt vmcnt({D-1+t})")
        if n < 16 - LA: big(n + LA, va, sd, sCur)
        else: big(n + LA - 16, vNx, sNx, sNOff)
    def top(ph):
        g("s_waitcnt lgkmcnt(0)")
        g(f"s_lshl_b32 {sr(sA)}, {sr(sT)}, 5")
        g(f"s_sub_u32 {sr(sA)}, {sr(sA)}, {sr(sTgt)}")
        g(f"s_add_u32 {sr(sTgt)}, {sr(sTgt)}, {sr(sRate)}")
        g(f"s_and_b32 {sr(sA)}, {sr(sA)}, {sr(sEn)}")
        g(f"s_mov_b32 {sr(sL)}, {cfg.base}")
        for e in cfg.law.split(","):
            th, lv = [int(x) for x in e.split(":")]
            g(f"s_cmp_{'gt' if th > 0 else 'lt'}_i32 {sr(sA)}, {th * 32}")
            g(f"s_cselect_b32 {sr(sL)}, {lv}, {sr(sL)}")
        def late():
            for e in cfg.late.split(","):
                sl, th, lv = [int(x) for x in e.split(":")]
                g(f"s_cmp_ge_u32 {sr(sSlot)}, {sl}")
                g(f"s_cselect_b32 {sr(sTmp2)}, {sr(sA)}, 0")
                g(f"s_cmp_{'gt' if th > 0 else 'lt'}_i32 {sr(sTmp2)}, {th * 32}")
                g(f"s_cselect_b32 {sr(sL)}, {lv}, {sr(sL)}")
        if cfg.late and ph == "v" and cfg.latecap: late()
        if cfg.cap:
            cc, cm = [int(x) for x in cfg.cap.split(":")]
            g(f"s_add_u32 {sr(sCr)}, {sr(sCr)}, 1")
            g(f"s_min_u32 {sr(sCr)}, {sr(sCr)}, {cm}")
            g(f"s_cmp_ge_u32 {sr(sCr)}, {cc}")
            g(f"s_cselect_b32 {sr(sTmp2)}, 64, 0")
            g(f"s_min_i32 {sr(sL)}, {sr(sL)}, {sr(sTmp2)}")
            g(f"s_cmp_gt_i32 {sr(sL)}, 0")
            g(f"s_cselect_b32 {sr(sTmp2)}, {cc}, 0")
            g(f"s_sub_u32 {sr(sCr)}, {sr(sCr)}, {sr(sTmp2)}")
        if cfg.law2:
            for e in cfg.law2.split(","):
                th, lv = [int(x) for x in e.split(":")]
                g(f"s_cmp_gt_i32 {sr(sA)}, {th * 32}")
                g(f"s_cselect_b32 {sr(sL)}, {lv}, {sr(sL)}")
        if cfg.late and ph == "v" and not cfg.latecap: late()
        if cfg.diag and ph == cfg.diag[0]:
            g(f"s_bitcmp{cfg.diag[1]}_b32 s2, 7")
            g(f"s_cselect_b32 {sr(sL)}, -4, {sr(sL)}")
        if ph == "v" and cfg.eb:
            for e in cfg.eb.split(","):
                sl, am = e.split(":")
                g(f"s_cmp_ge_u32 {sr(sSlot)}, {sl}")
                g(f"s_cselect_b32 {sr(sA)}, {am}, 0")
                g(f"s_add_u32 {sr(sL)}, {sr(sL)}, {sr(sA)}")
        if cfg.nf: g(f"s_add_u32 {sr(sL)}, {sr(sL)}, s{32 if ph == 'k' else 33}")
        tlog()
    def ctl_hooks(ph, n):
        if n == 0:
            g(f"s_bitcmp1_b64 {sr(sCk,2)}, {sr(sSlot)}")
            g(f"s_cbranch_scc1 L_ck{ph}")
            g.label(f"L_nck{ph}")
            g(f"s_add_u32 {sr(sSlot)}, {sr(sSlot)}, 1")
        if n == cfg.ctlpos:
            g(f"s_cmp_lg_u32 {sr(sPend)}, 0")
            g(f"s_cbranch_scc1 L_ctl{ph}")
            g.label(f"L_cb{ph}")
        if n == cfg.tpos:
            g(f"s_memrealtime {sr(sT,2)}")
    def getm(fl):
        g(f"s_load_dword {sr(sTag)}, s[20:21], {128 if cfg.drt else 0}{fl}")
        g(f"v_and_b32 {vr(vW)}, 16, {vr(vG)}")
        g(f"ds_read_b32 {vr(vCnt)}, {vr(vZero)} offset:{BLDS}")
        g(f"ds_read_b128 {vr(MX,4)}, {vr(vW)} offset:{XLDS}")
    def weight(no):
        g(f"v_readfirstlane_b32 {sr(sTmp)}, {vr(vCnt)}")
        g(f"v_max_f32 {vr(MX)}, {vr(MX)}, {vr(MX+1)}")
        g(f"s_cmp_eq_u32 {sr(sTag)}, 0")
        g(f"s_cbranch_scc1 {no}")
        g(f"s_cmp_lg_u32 {sr(sTmp)}, {2*WPW}")
        g(f"s_cbranch_scc1 {no}")
        g(f"v_max3_f32 {vr(MX)}, {vr(MX)}, {vr(MX+2)}, {vr(MX+3)}")
        g(f"v_sub_f32 {vr(vW)}, {vr(vM)}, {vr(MX)}")
        g(f"v_exp_f32 {vr(vW)}, {vr(vW)}")
        g(f"s_mov_b32 {sr(sRdy)}, 2")
    def ctl_blocks(ph):
        g.label(f"L_ck{ph}")
        g(f"s_bitcmp1_b32 {sr(sSlot)}, 0")
        g(f"s_cbranch_scc1 L_odd{ph}")
        g(f"s_bitcmp1_b64 {sr(sCkW,2)}, {sr(sSlot)}")
        g(f"s_cbranch_scc1 L_pub{ph}")
        g(f"s_load_dwordx2 {sr(sSy,2)}, s[22:23], {sr(sROff)}{' glc' if cfg.rglc else ''}")
        g(f"s_mov_b32 {sr(sPend)}, 1")
        g(f"s_add_u32 {sr(sROff)}, {sr(sROff)}, {CSTR}")
        g(f"s_branch L_nck{ph}")
        g.label(f"L_pub{ph}")
        g(f"s_mov_b32 {sr(sSw)}, 1")
        g(f"s_mov_b32 {sr(sSw+1)}, {sr(sT)}")
        g(f"s_atomic_add_x2 {sr(sSw,2)}, s[22:23], {sr(sWOff)}")
        g(f"s_add_u32 {sr(sWOff)}, {sr(sWOff)}, {CSTR}")
        g(f"s_branch L_nck{ph}")
        g.label(f"L_odd{ph}")
        if ph == "k":
            for k in range(1, len(SU)):
                g(f"s_cmp_eq_u32 {sr(sSlot)}, {SU[k]}")
                g(f"s_cbranch_scc1 L_su{k}")
            g(f"s_cmp_lg_u32 {sr(sSlot)}, {SU[0]}")
            g("s_cbranch_scc1 L_race")
            for k in range(len(SU)):
                g.label(f"L_su{k}")
                setup(k)
                g(f"s_branch L_nck{ph}")
        else:
            g(f"s_cmp_eq_u32 {sr(sSlot)}, {FS[1]}")
            g("s_cbranch_scc1 L_fs1")
            getm("")
            if cfg.pres == 1: pres()
            if cfg.prer:
                g(f"s_cmp_lt_u32 {sr(sWave)}, 2")
                g(f"s_cbranch_scc0 L_nck{ph}")
                g(f"s_and_b32 {sr(sTmp)}, s2, {NP-1}")
                g(f"s_lshl_b32 {sr(sTmp)}, {sr(sTmp)}, 1")
                g(f"s_add_u32 {sr(sTmp)}, {sr(sTmp)}, {sr(sWave)}")
                g(f"s_mul_i32 {sr(sTmp)}, {sr(sTmp)}, {RS}")
                g(f"s_mul_i32 {sr(sIn)}, {sr(sBH)}, {GS}")
                g(f"s_add_u32 {sr(sIn)}, {sr(sIn)}, {sr(sTmp)}")
                g(f"s_add_u32 {sr(sIn)}, {sr(sIn)}, 0x{XBASE:x}")
                g(f"v_and_b32 {vr(vOa)}, 0x70, {vr(vO16)}")
                g(f"v_lshrrev_b32 {vr(vIn)}, 3, {vr(vLane)}")
                g(f"v_mul_u32_u24 {vr(vIn)}, {PS_}, {vr(vIn)}")
                g(f"v_add_u32 {vr(vIn)}, {vr(vIn)}, {vr(vOa)}")
                g(f"buffer_load_dwordx4 v[196:199], {vr(vIn)}, {sr(sWS,4)}, {sr(sIn)} offen {cfg.rfl}")
            g(f"s_branch L_nck{ph}")
            g.label("L_fs1")
            weight(f"L_nck{ph}")
            g(f"s_branch L_nck{ph}")
        if ph == "k":
            g.label("L_race")
            g(f"s_cmp_eq_u32 {sr(sSlot)}, {RP}")
            g("s_cbranch_scc1 L_tag")
            g(f"s_lshr_b32 {sr(sN)}, {sr(sSlot)}, 1")
            g(f"s_xor_b32 {sr(sN)}, {sr(sN)}, {sr(sWave)}")
            g(f"s_and_b32 {sr(sN)}, {sr(sN)}, 1")
            g(f"s_lshl_b32 {sr(sTmp)}, {sr(sN)}, 6")
            g(f"s_add_u32 {sr(sTmp)}, {sr(sTmp)}, {sr(sWave)}")
            g(f"s_lshl_b32 {sr(sTmp)}, {sr(sTmp)}, 7")
            g(f"s_add_u32 {sr(sTmp)}, {sr(sTmp)}, 0x{RBASE:x}")
            g(f"s_xor_b32 {sr(sTmp2)}, {sr(sTmp)}, 0x2000")
            g(f"s_cmp_eq_u32 {sr(sSlot)}, {RW}")
            g(f"s_cselect_b32 {sr(sOwnM)}, 1, 0")
            g(f"s_mov_b32 {sr(sOwnM+1)}, {sr(sOwnM)}")
            g(f"s_atomic_or {sr(sOwnM)}, s[22:23], {sr(sTmp)} glc")
            g(f"s_atomic_or {sr(sOwnM+1)}, s[22:23], {sr(sTmp2)} glc")
            g("s_cbranch_scc1 L_nckk")
            g("s_waitcnt lgkmcnt(1)")
            g(f"s_and_b32 {sr(sTmp)}, {sr(sOwnM)}, 1")
            g(f"s_and_b32 {sr(sTmp2)}, {sr(sOwnM+1)}, 1")
            g(f"s_sub_u32 {sr(sTmp)}, {sr(sTmp)}, {sr(sTmp2)}")
            g(f"s_sub_u32 {sr(sTmp2)}, 0, {sr(sTmp)}")
            g(f"s_cmp_eq_u32 {sr(sN)}, 0")
            g(f"s_cselect_b32 {sr(sTmp)}, {sr(sTmp)}, {sr(sTmp2)}")
            g(f"v_mov_b32 {vr(vCnt)}, {sr(sTmp)}")
            g("s_mov_b64 exec, 1")
            g(f"ds_add_u32 {vr(vZero)}, {vr(vCnt)} offset:{BLDS+4}")
            g("s_mov_b64 exec, -1")
            g("s_branch L_nckk")
            g.label("L_tag")
            g(f"s_cmp_lg_u32 {sr(sWave)}, 0")
            g("s_cbranch_scc1 L_nckk")
            g(f"ds_read_b32 {vr(vCnt)}, {vr(vZero)} offset:{BLDS+4}")
            g(f"s_getreg_b32 {sr(sTmp2)}, hwreg(HW_REG_XCC_ID)")
            g(f"s_and_b32 {sr(sTmp2)}, {sr(sTmp2)}, 3")
            g(f"s_andn2_b32 {sr(sTag)}, {sr(sT)}, 15")
            g(f"s_or_b32 {sr(sTag)}, {sr(sTag)}, {sr(sTmp2)}")
            g("s_waitcnt lgkmcnt(0)")
            g(f"v_readfirstlane_b32 {sr(sTmp)}, {vr(vCnt)}")
            g(f"s_cmp_gt_i32 {sr(sTmp)}, 0")
            g(f"s_cselect_b32 {sr(sTmp2)}, {8 + 4 * cfg.inv}, {12 - 4 * cfg.inv}")
            g(f"s_or_b32 {sr(sTag)}, {sr(sTag)}, {sr(sTmp2)}")
            g(f"s_atomic_add {sr(sTag)}, s[20:21], {128 if cfg.drt else 0}")
            if cfg.dv:
                g(f"s_mov_b32 {sr(sOwnM)}, {sr(sTmp)}")
                g(f"s_atomic_add {sr(sOwnM)}, s[20:21], 4")
            g("s_branch L_nckk")
        g.label(f"L_ctl{ph}")
        g(f"s_mov_b32 {sr(sPend)}, 0")
        g(f"s_lshl_b32 {sr(sTmp)}, {sr(sT)}, 5")
        g(f"s_mov_b32 {sr(sTmp2)}, {sr(sOk)}")
        g("s_waitcnt lgkmcnt(0)")
        g(f"s_sub_u32 {sr(sTmp)}, {sr(sTmp)}, {sr(sSy+1)}")
        g(f"s_cmp_lt_u32 {sr(sTmp)}, {32 * 2000}")
        g(f"s_cselect_b32 {sr(sOk)}, {sr(sSy)}, 0")
        g(f"s_cmp_eq_u32 {sr(sOk)}, 32")
        g(f"s_cselect_b32 {sr(sOk)}, 1, 0")
        g(f"s_sub_u32 {sr(sTmp)}, {sr(sSy+1)}, {sr(sPrev)}")
        g(f"s_mov_b32 {sr(sPrev)}, {sr(sSy+1)}")
        g(f"s_and_b32 {sr(sTmp2)}, {sr(sTmp2)}, {sr(sOk)}")
        g(f"s_cbranch_scc0 L_cb{ph}")
        if cfg.ema:
            g(f"s_lshr_b32 {sr(sTmp)}, {sr(sTmp)}, {LI}")
            g(f"s_sub_u32 {sr(sTmp)}, {sr(sTmp)}, {sr(sRate)}")
            g(f"s_and_b32 {sr(sTmp2)}, {sr(sEn)}, {cfg.ema}")
            g(f"s_ashr_i32 {sr(sTmp)}, {sr(sTmp)}, {sr(sTmp2)}")
            g(f"s_add_u32 {sr(sRate)}, {sr(sRate)}, {sr(sTmp)}")
        else:
            g(f"s_lshr_b32 {sr(sRate)}, {sr(sTmp)}, {LI}")
        if cfg.radd: g(f"s_add_u32 {sr(sRate)}, {sr(sRate)}, {cfg.radd}")
        g(f"s_mul_i32 {sr(sTmp)}, {sr(sRate)}, {RD + 1}")
        g(f"s_add_u32 {sr(sTgt)}, {sr(sSy+1)}, {sr(sTmp)}")
        g(f"s_mov_b32 {sr(sEn)}, -1")
        g(f"s_branch L_cb{ph}")
    def cvt4(R):
        for i in range(4):
            g(f"v_cvt_f32_i32 {vr(R+i)}, {vr(R+i)}")
    def kmfma(n):
        s_, u = n >> 2, n & 3
        m = s_ >> 1
        Dd = DK + 4*u; T = TK + 4*u
        g(f"v_mfma_f32_16x16x32_bf16 {vr(Dd,4)}, {vr(T,4)}, {vr(Q+8*m,4)}, {vr(NB,4) if m == 0 else vr(Dd,4)}")
        g(f"v_mfma_f32_16x16x32_bf16 {vr(Dd,4)}, {vr(T,4)}, {vr(Q+8*m+4,4)}, {vr(Dd,4)}")
    def red(u, k):
        Dd = DK + 4*u
        g(f"v_add_f32_dpp {vr(X+u)}, {vr(Dd+1+k)}, {vr(Dd) if k == 0 else vr(X+u)} row_ror:{12-4*k}{dpp}")
    def kcvt(n):
        s_, u = n >> 2, n & 3
        R = RAW + 4*n
        cvt4(R)
        for y in range(2):
            g(f"v_cvt_pk_bf16_f32 {vr(TK+4*u+2*(s_&1)+y)}, {vr(R+2*y)}, {vr(R+2*y+1)}")
    assert 5 <= F <= 8
    g("s_waitcnt lgkmcnt(0)")
    if cfg.nf:
        nb, fb = [int(x) for x in cfg.nf.split(":")]
        g("s_bfe_u32 s90, s88, 0x10002")
        g(f"s_bfe_u32 s91, {sr(sWave)}, 0x10001")
        g("s_xor_b32 s90, s90, s91")
        g("s_cmp_eq_u32 s86, s90")
        g(f"s_cselect_b32 s86, {nb}, {fb}")
        g("s_cmp_eq_u32 s87, s90")
        g(f"s_cselect_b32 s87, {nb}, {fb}")
        g("s_mov_b64 s[32:33], s[86:87]")
    g("s_barrier")
    for part in range(2):
        g(f"s_waitcnt vmcnt(4)")
        pst()
        for n in range(F, 8) if part == 0 and cfg.b2b else [F + part] if not cfg.b2b and F + part < 8 else []:
            big(n, vKC, sK, sBase)
        prep(part)
    assert cfg.b2b or F >= 6
    g(".p2align 6")
    g.label("L_kloop")
    g(f"s_add_u32 {sr(sNOff)}, {sr(sCur)}, {sr(sDelta)}")
    if cfg.rot:
        g(f"s_and_b32 {sr(sNOff)}, {sr(sNOff)}, 0x1fffff")
        g(f"s_or_b32 {sr(sNOff)}, {sr(sNOff)}, {sr(sReg)}")
    g(f"s_xor_b32 {sr(sDelta)}, {sr(sDelta)}, 0x18000")
    g(f"s_cmp_eq_u32 {sr(sSlot)}, 31")
    g("s_cbranch_scc1 L_lastk")
    g.label("L_lastkb")
    top("k")
    for n in range(16):
        issue("k", n, vKC, sK)
        if n > 0 and ((n-1) >> 2) & 1: kmfma(n-1)
        ctl_hooks("k", n)
        kcvt(n)
    Dd = DK + 12; T = TK + 12
    red(0, 0); red(1, 0)
    g(f"v_mfma_f32_16x16x32_bf16 {vr(Dd,4)}, {vr(T,4)}, {vr(Q+8,4)}, {vr(Dd,4)}")
    red(0, 1); red(1, 1)
    g(f"v_mfma_f32_16x16x32_bf16 {vr(Dd,4)}, {vr(T,4)}, {vr(Q+12,4)}, {vr(Dd,4)}")
    red(0, 2); red(1, 2); red(2, 0)
    g(f"s_mov_b32 {sr(sCur)}, {sr(sNOff)}")
    g(f"v_max3_f32 {vr(vM)}, {vr(vM)}, {vr(X)}, {vr(X+1)}")
    red(2, 1)
    g("s_nop 1")
    red(2, 2); red(3, 0)
    g("s_nop 1")
    red(3, 1)
    g("s_nop 1")
    red(3, 2)
    g(f"s_mov_b64 exec, {sr(sJ4,2)}")
    g(f"v_max3_f32 {vr(vM)}, {vr(vM)}, {vr(X+2)}, {vr(X+3)}")
    g(f"ds_write_b128 {vr(vLds)}, {vr(X,4)}")
    g("s_mov_b64 exec, -1")
    g(f"v_add_u32 {vr(vLds)}, 256, {vr(vLds)}")
    g(f"s_cmp_lt_u32 {sr(sSlot)}, 32")
    g("s_cbranch_scc1 L_kloop")
    if cfg.stamp:
        g("s_memrealtime s[94:95]")
    def readS():
        g(f"ds_read_b128 {vr(X,4)}, {vr(vLds)}")
        g(f"ds_read_b128 {vr(VS,4)}, {vr(vS)}")
        g(f"ds_read_b128 {vr(VZ,4)}, {vr(vS)} offset:8192")
    g(f"v_subrev_u32 {vr(vLds)}, 0x2000, {vr(vLds)}")
    readS()
    g(f"v_max_f32_dpp {vr(vM)}, {vr(vM)}, {vr(vM)} quad_perm:[2,3,0,1]{dpp}")
    xreduce("v_max_f32", vM, vT1)
    g(f"s_mov_b32 {sr(sDelta)}, 0x4000")
    g(f"v_readlane_b32 {sr(sTmp)}, {vr(vM)}, 0")
    g(f"v_readlane_b32 {sr(sTmp2)}, {vr(vM)}, 1")
    g("s_nop 0")
    g("s_nop 0")
    g(f"v_mov_b32 {vr(vM)}, {sr(sTmp)}")
    g(f"v_mov_b32 {vr(vT1)}, {sr(sTmp2)}")
    g(f"v_cndmask_b32 {vr(vM)}, {vr(vM)}, {vr(vT1)}, {sr(sHd,2)}")
    g("s_mov_b64 exec, 3")
    g(f"ds_write_b32 {vr(vG)}, {vr(vM)} offset:{XLDS}")
    g("s_mov_b64 exec, 1")
    g(f"ds_add_u32 {vr(vZero)}, {vr(vA)} offset:{BLDS}")
    g("s_mov_b64 exec, -1")
    def vmfma(m):
        for c in range(4):
            acc = O + (m*4+c)*4
            g(f"v_mfma_f32_16x16x32_bf16 {vr(acc,4)}, {vr(TV+4*c,4)}, {vr(WP,4)}, {vr(acc,4)}")
    def soft(n):
        if n == 0:
            for e in range(4): g(f"v_sub_f32 {vr(X+e)}, {vr(X+e)}, {vr(vM)}")
            for e in range(2): g(f"v_exp_f32 {vr(X+e)}, {vr(X+e)}")
        elif n == 1:
            for e in range(2, 4): g(f"v_exp_f32 {vr(X+e)}, {vr(X+e)}")
        elif n == 2:
            for e in range(4): g(f"v_perm_b32 {vr(U+e)}, {vr(VS+e)}, {vr(VS+e)}, {vr(vSelS)}")
            for e in range(4): g(f"v_mul_f32 {vr(U+e)}, {vr(X+e)}, {vr(U+e)}")
        elif n == 3:
            for y in range(2): g(f"v_cvt_pk_bf16_f32 {vr(P+y)}, {vr(U+2*y)}, {vr(U+2*y+1)}")
            for y in range(2): g(f"v_perm_b32 {vr(ZA+y)}, {vr(VZ+2*y+1)}, {vr(VZ+2*y)}, {vr(vSelZ)}")
        elif n == 4:
            for y in range(2): g(f"v_and_b32 {vr(WP+y)}, {vr(vMa)}, {vr(P+y)}")
            for y in range(2): g(f"v_and_b32 {vr(WP+2+y)}, {vr(vMb)}, {vr(P+y)}")
            g(f"v_mfma_f32_16x16x16_bf16 {vr(CORR,4)}, {vr(ZA,2)}, {vr(P,2)}, {vr(CORR,4)}")
        elif n == 5:
            g(f"v_add_f32 {vr(X)}, {vr(X)}, {vr(X+1)}")
            g(f"v_add_f32 {vr(X+2)}, {vr(X+2)}, {vr(X+3)}")
            g(f"v_add_f32 {vr(vL)}, {vr(vL)}, {vr(X)}")
            g(f"v_add_f32 {vr(vL)}, {vr(vL)}, {vr(X+2)}")
        elif n == 6:
            g(f"v_add_u32 {vr(vLds)}, 256, {vr(vLds)}")
            g(f"s_bfe_u32 {sr(sN)}, {sr(sNOff)}, 0xd0008")
            g(f"v_add_u32 {vr(vS)}, {sr(sN)}, {vr(vVA)}")
        elif n == cfg.rpos:
            readS()
    g(".p2align 6")
    g.label("L_vloop")
    g(f"s_add_u32 {sr(sNOff)}, {sr(sCur)}, {sr(sDelta)}")
    if cfg.rot:
        g(f"s_and_b32 {sr(sNOff)}, {sr(sNOff)}, 0x1fffff")
        g(f"s_or_b32 {sr(sNOff)}, {sr(sNOff)}, {sr(sReg)}")
    g(f"s_xor_b32 {sr(sDelta)}, {sr(sDelta)}, 0x18000")
    top("v")
    def vcvt(n):
        s_, u = n >> 2, n & 3
        R = RAW + 4*n
        cvt4(R)
        if u & 1:
            for c in range(4):
                g(f"v_cvt_pk_bf16_f32 {vr(TV+4*c+2*(s_&1)+(u>>1))}, {vr(R-4+c)}, {vr(R+c)}")
    for n in range(16):
        if n == 8:
            g(f"s_cmp_eq_u32 {sr(sSlot)}, 64")
            g("s_cbranch_scc1 L_tail")
        if cfg.ebl and n == cfg.ebs:
            assert n > 0
            g(f"s_cmp_eq_u32 {sr(sSlot)}, 64")
            g(f"s_cselect_b32 {sr(sL)}, {cfg.ebl}, {sr(sL)}")
        issue("v", n, vNx, sNx)
        if n == 8: vmfma(0)
        ctl_hooks("v", n)
        vcvt(n)
        soft(n)
    g(f"s_mov_b32 {sr(sCur)}, {sr(sNOff)}")
    g("s_nop 0")
    vmfma(1)
    g("s_branch L_vloop")
    sOff0, sOff1 = sCur, sNOff
    FO = 196; PA = FO
    def poll(P): g(f"buffer_load_dwordx4 {vr(P,4)}, {vr(vO16)}, {sr(sWS,4)}, {sr(sIn)} offen {cfg.rfl}")
    def pk(d, a, b): g(f"v_pk_add_f32 {vr(d,2)}, {vr(a,2)}, {vr(b,2)}")
    def est(k):
        if cfg.est: g(f"s_memrealtime s[{32+2*k}:{33+2*k}]")
    g.label("L_tail")
    g(f"s_cmp_lg_u32 {sr(sRdy)}, 2")
    g("s_cbranch_scc1 L_slow")
    g.label("L_tail2")
    vmfma(0)
    e0, e1, e2, e3 = Q, Q+1, Q+2, Q+3
    def outw(m, r):
        T = (DK if m == 0 else 20) + 4*r
        for c in range(4):
            g(f"v_fma_f32 {vr(T+c)}, {vr(O+(m*4+c)*4+r)}, {vr(vW)}, -{vr(vCW)}")
        g(f"ds_write_b128 {vr(e0)}, {vr(T,4)} offset:{m*256+r*16}")
    g(f"v_add_f32_dpp {vr(vL)}, {vr(vL)}, {vr(vL)} quad_perm:[2,3,0,1]{dpp}")
    g(f"s_lshl_b32 {sr(sTmp)}, {sr(sWave)}, 11")
    g(f"s_add_u32 {sr(sTmp)}, {sr(sTmp)}, {CLDS}")
    g(f"v_and_b32 {vr(e0)}, 3, {vr(vLane)}")
    g(f"v_lshlrev_b32 {vr(e0)}, 9, {vr(e0)}")
    g(f"v_bfe_u32 {vr(e1)}, {vr(vLane)}, 2, 1")
    g(f"v_lshl_add_u32 {vr(e0)}, {vr(e1)}, 7, {vr(e0)}")
    g(f"v_bfe_u32 {vr(e1)}, {vr(vLane)}, 4, 1")
    g(f"v_lshl_add_u32 {vr(e0)}, {vr(e1)}, 6, {vr(e0)}")
    g(f"v_add_u32 {vr(e0)}, {sr(sTmp)}, {vr(e0)}")
    g(f"v_mul_f32 {vr(vCW)}, {vr(CORR)}, {vr(vW)}")
    xreduce("v_add_f32", vL, vT1)
    g(f"v_mul_f32 {vr(vL)}, {vr(vL)}, {vr(vW)}")
    g(f"v_readlane_b32 {sr(sMh)}, {vr(MX)}, 0")
    g(f"v_readlane_b32 {sr(sN)}, {vr(MX)}, 1")
    g(f"s_mov_b64 exec, {sr(sEp,2)}")
    for r in range(4): outw(0, r)
    g("s_mov_b64 exec, 3")
    g(f"ds_write_b32 {vr(vG)}, {vr(vL)} offset:{MLDS}")
    g("s_mov_b64 exec, -1")
    g(f"s_and_b32 {sr(sOwn0)}, s2, {NP-1}")
    g(f"s_lshl_b32 {sr(sTmp)}, {sr(sOwn0)}, 1")
    g(f"s_add_u32 {sr(sTmp)}, {sr(sTmp)}, {sr(sWave)}")
    g(f"s_lshl_b32 {sr(sTmp2)}, {sr(sWave)}, 3")
    g(f"s_and_b32 {sr(sTmp2)}, {sr(sTmp2)}, 8")
    g(f"s_cmp_lt_u32 {sr(sWave)}, 2")
    g(f"s_cselect_b32 {sr(sTmp)}, {sr(sTmp)}, {sr(sTmp2)}")
    g(f"s_cselect_b32 {sr(sTmp2)}, 7, 63")
    g(f"v_and_b32 {vr(e2)}, {sr(sTmp2)}, {vr(vLane)}")
    g(f"v_lshl_add_u32 {vr(e2)}, {sr(sTmp)}, 3, {vr(e2)}")
    g(f"v_lshlrev_b32 {vr(e3)}, 3, {vr(e2)}")
    g(f"s_cmp_lt_u32 {sr(sTmp)}, 8")
    g(f"s_cselect_b32 {sr(sMh)}, {sr(sMh)}, {sr(sN)}")
    g(f"s_cselect_b32 {sr(sTmp2)}, 0, 16")
    g(f"v_mov_b32 {vr(e1)}, {sr(sTmp2)}")
    g(f"s_mul_i32 {sr(sIn)}, {sr(sBH)}, {GS}")
    g(f"s_add_u32 {sr(sIn)}, {sr(sIn)}, 0x{XBASE:x}")
    g(f"s_mul_i32 {sr(sOwn1)}, {sr(sOwn0)}, {PS_}")
    g(f"s_add_u32 {sr(sOwn1)}, {sr(sOwn1)}, {sr(sIn)}")
    g(f"v_lshrrev_b32 {vr(vP)}, 3, {vr(e2)}")
    g(f"v_and_b32 {vr(vOa)}, 0x70, {vr(vO16)}")
    g(f"s_lshl_b32 {sr(sTmp2)}, {sr(sTag)}, 1")
    g(f"v_add_u32 {vr(vP)}, {sr(sTmp2)}, {vr(vP)}")
    g(f"v_and_b32 {vr(vP)}, 15, {vr(vP)}")
    g(f"v_lshl_add_u32 {vr(vP)}, {vr(vP)}, 10, {vr(vOa)}")
    g(f"s_add_u32 {sr(sTmp)}, {sr(sTmp)}, {sr(sTmp2)}")
    g(f"s_and_b32 {sr(sTmp)}, {sr(sTmp)}, 15")
    g(f"s_lshl_b32 {sr(sTmp)}, {sr(sTmp)}, 10")
    g(f"s_add_u32 {sr(sIn)}, {sr(sIn)}, {sr(sTmp)}")
    g(f"s_lshl_b32 {sr(sOwn0)}, {sr(sOwn0)}, 3")
    g(f"s_lshl_b64 {sr(sOwnM,2)}, 0xff, {sr(sOwn0)}")
    g(f"s_cmp_lt_u32 {sr(sWave)}, 2")
    g(f"s_cselect_b64 {sr(sOwnM,2)}, {sr(sOwnM,2)}, -1")
    g(f"v_bfe_u32 {vr(vOa)}, {vr(vLane)}, 4, 1")
    g(f"v_lshl_add_u32 {vr(vOa)}, {vr(e2)}, 1, {vr(vOa)}")
    g(f"v_lshlrev_b32 {vr(vOa)}, 1, {vr(vOa)}")
    g(f"v_mov_b32 {vr(FO+3)}, {sr(sTag)}")
    g(f"s_lshl_b32 {sr(sTmp2)}, {sr(sBH)}, 9")
    srd(sOUT, 18, 16384)
    for n in range(8, 16):
        g(f"s_waitcnt vmcnt({15-n})")
        vcvt(n)
    est(0)
    g("s_nop 1")
    vmfma(1)
    g(f"s_not_b64 exec, {sr(sOwnM,2)}")
    g("s_cbranch_scc0 L_nop1")
    poll(PA)
    g.label("L_nop1")
    g(f"s_mov_b64 exec, {sr(sEp,2)}")
    g("s_nop 6")
    for r in range(4): outw(1, r)
    g(f"s_mov_b64 exec, {'-1' if cfg.stamp else sr(sOwnM,2)}")
    if cfg.tlog:
        tlog()
        g(f"s_lshl_b32 s89, {sr(sWave)}, 9")
        g(f"s_add_u32 s89, s89, {TLDS}")
        g(f"v_lshlrev_b32 {vr(TMP)}, 3, {vr(vLane)}")
        g(f"v_add_u32 {vr(TMP+1)}, s89, {vr(TMP)}")
        g(f"ds_read_b64 {vr(TMP+2,2)}, {vr(TMP+1)}")
        g(f"s_mul_i32 s89, s2, {WPW}")
        g(f"s_add_u32 s89, s89, {sr(sWave)}")
        g("s_lshl_b32 s89, s89, 9")
        g("s_add_u32 s89, s89, 0x1400000")
        g("s_waitcnt lgkmcnt(0)")
        g(f"buffer_store_dwordx2 {vr(TMP+2,2)}, {vr(TMP)}, {sr(sWS,4)}, s89 offen")
    def stamp(slot):
        g("s_memrealtime s[86:87]")
        g(f"s_mul_i32 s89, s2, {WPW}")
        g(f"s_add_u32 s89, s89, {sr(sWave)}")
        g("s_lshl_b32 s89, s89, 4")
        g(f"s_add_u32 s89, s89, 0x{0x1000000 + slot*0x100000:x}")
        g("s_waitcnt lgkmcnt(0)")
        g(f"v_mov_b32 {vr(TMP)}, s84"); g(f"v_mov_b32 {vr(TMP+1)}, s86"); g(f"v_mov_b32 {vr(TMP+2)}, s88"); g(f"v_mov_b32 {vr(TMP+3)}, s94")
        g("s_mov_b64 s[90:91], exec")
        g("s_mov_b64 exec, 1")
        g(f"buffer_store_dwordx4 {vr(TMP,4)}, off, {sr(sWS,4)}, s89")
        g("s_mov_b64 exec, s[90:91]")
    if cfg.stamp: stamp(0)
    g("s_waitcnt lgkmcnt(0)")
    g("s_barrier")
    est(1)
    OP = 48; ML = 64
    if cfg.stamp: g(f"s_mov_b64 exec, {sr(sOwnM,2)}")
    g(f"ds_read_b128 {vr(ML,4)}, {vr(e1)} offset:{MLDS}")
    for w in range(WPW):
        g(f"ds_read2st64_b64 {vr(OP+4*w,4)}, {vr(e3)} offset0:{CLDS//512+4*w} offset1:{CLDS//512+4*w+2}")
    lg = lambda n: g(f"s_waitcnt lgkmcnt({0 if cfg.est else n})")
    lg(4)
    pk(ML, ML, ML+2)
    g(f"v_add_f32 {vr(ML)}, {vr(ML)}, {vr(ML+1)}")
    lg(3)
    pk(OP, OP, OP+2)
    g(f"v_log_f32 {vr(FO+2)}, {vr(ML)}")
    lg(2)
    pk(OP+4, OP+4, OP+6)
    g(f"v_rcp_f32 {vr(ML)}, {vr(ML)}")
    lg(1)
    pk(OP+8, OP+8, OP+10)
    pk(OP, OP, OP+4)
    lg(0)
    pk(OP+12, OP+12, OP+14)
    g(f"v_add_f32 {vr(FO+2)}, {sr(sMh)}, {vr(FO+2)}")
    pk(OP+8, OP+8, OP+12)
    pk(OP, OP, OP+8)
    g(f"v_mul_f32 {vr(FO)}, {vr(OP)}, {vr(ML)}")
    g(f"v_mul_f32 {vr(FO+1)}, {vr(OP+1)}, {vr(ML)}")
    g(f"s_cmp_lt_u32 {sr(sWave)}, 2")
    g("s_cbranch_scc1 L_poll")
    g(f"buffer_store_dwordx4 {vr(FO,4)}, {vr(vP)}, {sr(sWS,4)}, {sr(sOwn1)} offen {cfg.wfl}")
    if cfg.stamp:
        g("s_memrealtime s[84:85]")
        g("s_waitcnt vmcnt(0)")
        stamp(3)
    if cfg.drt == 2:
        g("s_cmp_ge_u32 s2, 8")
        g("s_cbranch_scc1 L_end")
        g(f"s_cmp_lg_u32 {sr(sWave)}, 3")
        g("s_cbranch_scc1 L_end")
        g("s_sleep 127"); g("s_sleep 127")
        g("s_mov_b64 exec, 1")
        g("s_mov_b64 s[88:89], 0")
        g("s_mov_b32 s90, 0")
        g(f"s_lshl_b32 s91, s2, 7")
        g(f"s_add_u32 s91, s91, 0x{cfg.dbase:x}")
        g.label("L_dl")
        g("s_mov_b32 s94, 0x7fffffff")
        g("s_mov_b32 s95, 0")
        g.label("L_dr")
        g("v_mov_b32 v5, 0")
        g("s_memtime s[84:85]")
        g("s_waitcnt lgkmcnt(0)")
        g(f"buffer_atomic_add v5, off, {sr(sWS,4)}, s91 sc0 sc1")
        g("s_waitcnt vmcnt(0)")
        g("s_memtime s[86:87]")
        g("s_waitcnt lgkmcnt(0)")
        g("s_sub_u32 s86, s86, s84")
        g("s_min_u32 s94, s94, s86")
        g("s_add_u32 s95, s95, 1")
        g("s_cmp_lt_u32 s95, 6")
        g("s_cbranch_scc1 L_dr")
        g("s_lshr_b32 s94, s94, 2")
        g("s_min_u32 s94, s94, 255")
        g("s_mov_b32 s95, 0")
        g("s_lshl_b64 s[94:95], s[94:95], s90")
        g("s_or_b64 s[88:89], s[88:89], s[94:95]")
        g("s_add_u32 s91, s91, 4096")
        g("s_add_u32 s90, s90, 8")
        g("s_cmp_lt_u32 s90, 64")
        g("s_cbranch_scc1 L_dl")
        g("s_getreg_b32 s90, hwreg(HW_REG_XCC_ID)")
        g("s_and_b32 s90, s90, 7")
        g("s_lshl_b32 s90, s90, 3")
        g("s_atomic_add_x2 s[88:89], s[20:21], s90")
    g("s_endpgm")
    g.label("L_again")
    g("s_mov_b64 exec, vcc")
    if cfg.stamp or cfg.drt:
        g("s_add_u32 s88, s88, 1")
        g("s_cmp_lg_u32 s88, 1")
        g("s_cbranch_scc1 L_nf")
        g("s_memrealtime s[84:85]")
        g.label("L_nf")
    if cfg.psl2:
        g(f"s_bcnt1_i32_b64 {sr(sTmp)}, exec")
        g(f"s_cmp_le_u32 {sr(sTmp)}, {8*cfg.psl}")
        g("s_cbranch_scc1 L_nsl")
        g(f"s_sleep {cfg.psl2}")
        g.label("L_nsl")
    poll(PA)
    g("s_branch L_poll2")
    g.label("L_poll")
    if cfg.stamp or cfg.drt: g("s_mov_b32 s88, 0")
    est(2)
    g(f"s_not_b64 exec, {sr(sOwnM,2)}")
    g.label("L_poll2")
    g("s_waitcnt vmcnt(0)")
    g(f"v_cmp_ne_u32 vcc, {sr(sTag)}, {vr(PA+3)}")
    g("s_cbranch_vccnz L_again")
    g("s_mov_b64 exec, -1")
    est(3); est(4)
    if cfg.stamp or cfg.drt: g("s_memrealtime s[94:95]")
    A_, B_, W_, T_ = FO, FO+1, FO+2, ML
    g(f"v_max_f32_dpp {vr(T_)}, {vr(W_)}, {vr(W_)} row_ror:8{dpp}")
    for sw in (16, 32):
        g(f"v_mov_b32 {vr(T_+1)}, {vr(T_)}")
        g("s_nop 1")
        g(f"v_permlane{sw}_swap_b32 {vr(T_)}, {vr(T_+1)}")
        if cfg.psn: g("s_nop 0")
        g(f"v_max_f32 {vr(T_)}, {vr(T_)}, {vr(T_+1)}")
    g(f"v_sub_f32 {vr(W_)}, {vr(W_)}, {vr(T_)}")
    g(f"v_exp_f32 {vr(W_)}, {vr(W_)}")
    g("s_nop 0")
    g(f"v_mul_f32 {vr(A_)}, {vr(A_)}, {vr(W_)}")
    g(f"v_mul_f32 {vr(B_)}, {vr(B_)}, {vr(W_)}")
    g(f"v_add_f32_dpp {vr(T_)}, {vr(W_)}, {vr(W_)} row_ror:8{dpp}")
    g(f"v_add_f32_dpp {vr(W_)}, {vr(W_)}, {vr(W_)} row_ror:8{dpp}")
    g(f"v_permlane16_swap_b32 {vr(A_)}, {vr(B_)}")
    g(f"v_add_f32 {vr(A_)}, {vr(A_)}, {vr(B_)}")
    g(f"v_permlane16_swap_b32 {vr(W_)}, {vr(T_)}")
    g(f"v_add_f32 {vr(T_+1)}, {vr(W_)}, {vr(T_)}")
    g(f"v_add_f32 {vr(W_)}, {vr(W_)}, {vr(T_)}")
    g(f"v_add_f32_dpp {vr(B_)}, {vr(A_)}, {vr(A_)} row_ror:8{dpp}")
    g(f"v_add_f32_dpp {vr(A_)}, {vr(A_)}, {vr(A_)} row_ror:8{dpp}")
    g(f"v_permlane32_swap_b32 {vr(W_)}, {vr(T_+1)}")
    g(f"v_add_f32 {vr(W_)}, {vr(W_)}, {vr(T_+1)}")
    g(f"v_permlane32_swap_b32 {vr(A_)}, {vr(B_)}")
    g(f"v_rcp_f32 {vr(W_)}, {vr(W_)}")
    g(f"v_add_f32 {vr(A_)}, {vr(A_)}, {vr(B_)}")
    g("s_mov_b64 exec, 0x00ff00ff")
    g(f"v_mul_f32 {vr(A_)}, {vr(A_)}, {vr(W_)}")
    est(5)
    g(f"v_cvt_pk_bf16_f32 {vr(A_)}, {vr(A_)}, {vr(A_)}")
    g(f"buffer_store_short {vr(A_)}, {vr(vOa)}, {sr(sOUT,4)}, {sr(sTmp2)} offen{cfg.osc}")
    if cfg.drt == 1:
        g("s_cmp_eq_u32 s88, 0")
        g("s_cbranch_scc1 L_end")
        g("s_waitcnt lgkmcnt(0)")
        g("s_sub_u32 s89, s94, s84")
        g("s_getreg_b32 s90, hwreg(HW_REG_XCC_ID)")
        g("s_and_b32 s90, s90, 7")
        g("s_lshl_b32 s90, s90, 3")
        g("s_atomic_add_x2 s[88:89], s[20:21], s90")
    if cfg.stamp:
        est(6)
        g("s_waitcnt vmcnt(0)")
        est(7)
        stamp(1)
        if cfg.est:
            for k in range(8): g(f"v_mov_b32 v{32+k}, s{32+2*k}")
            g(f"s_lshl_b32 s89, {sr(sBH)}, 5")
            g("s_add_u32 s89, s89, 0x1200000")
            g("s_mov_b64 exec, 1")
            g(f"buffer_store_dwordx4 v[32:35], off, {sr(sWS,4)}, s89")
            g(f"buffer_store_dwordx4 v[36:39], off, {sr(sWS,4)}, s89 offset:16")
    g.label("L_end")
    g("s_endpgm")
    g.label("L_init")
    g(f"v_mul_u32_u24 {vr(t0)}, {CSTR}, {vr(vLane)}")
    g(f"s_mov_b64 exec, 0x{(1 << len(syncs)) - 1:x}")
    g(f"buffer_store_dwordx2 {vr(CORR,2)}, {vr(t0)}, {sr(sWS,4)}, {sr(sWOff)} offen sc1")
    g("s_mov_b64 exec, -1")
    g("s_branch L_noinit")
    g.label("L_slow")
    getm(" glc")
    g("s_waitcnt lgkmcnt(0)")
    weight("L_slow")
    g("s_branch L_tail2")
    g.label("L_lastk")
    srdp(sNx, 8)
    g(f"s_mov_b32 {sr(sNOff)}, {sr(sReg if cfg.loc else sBase)}")
    g(f"v_lshrrev_b32 {vr(t0)}, 3, {vr(j_)}")
    g(f"v_and_b32 {vr(t1)}, 7, {vr(j_)}")
    g(f"v_lshlrev_b32 {vr(t1)}, 4, {vr(t1)}")
    g(f"v_lshl_add_u32 {vr(t1)}, {vr(t0)}, 9, {vr(t1)}")
    g(f"v_lshl_add_u32 {vr(vNx)}, {vr(g_)}, 15, {vr(t1)}")
    g.label("L_copied")
    g(f"v_readfirstlane_b32 {sr(sTmp)}, {vr(vA)}")
    g(f"s_cmp_ge_u32 {sr(sTmp)}, {WPW}")
    g(f"v_mov_b32 {vr(vA)}, 1")
    g("s_cbranch_scc1 L_lastkb")
    g(f"ds_read_b32 {vr(vA)}, {vr(vZero)} offset:{BLDS}")
    g("s_waitcnt lgkmcnt(0)")
    g("s_branch L_copied")
    ctl_blocks("k")
    ctl_blocks("v")
    g.lines.insert(len(g.lines) - 1, "L_last:")
    notes = {
        "L_pc": "pull this kernel's own code into the L2, then lane/address set-up while the kernarg loads are in flight",
        "L_kloop": "phase K: 32 tiles of 32 tokens per wave; logits (log2 units, zero points folded into a bias) -> LDS, running max.\n"
                   "; Every step waits until at most 4..6 loads are in flight (more only congests the fabric) and issues the load needed 8 steps later;\n"
                   "; s4 = level of this tile: a wave behind the chip's average progress keeps more loads in flight, one ahead a little less",
        "L_vloop": "phase V: p = exp2(S - max), O += (p*v_scale) x V, the zero-point correction through one more MFMA",
        "L_tail": "second half of the last tile; scaled partial results -> LDS",
        "L_again": "waves 0/1: collect eight output pairs from the eight parts of this head pair (16-byte granules tagged for this launch)",
        "L_init": "one wave clears the progress records",
        "L_slow": "tag / maxima were not there yet when first looked at: wait for them",
        "L_lastk": "last K tile: the look-ahead moves on to V",
        "L_ckk": "per-tile hooks: progress records (publish / read), deferred set-up",
        "L_race": "workgroup 0: two requests 8 KB apart, the one whose memory is closer to this die answers first (placement of the inboxes, speed only)",
        "L_tag": "tag of this launch's hand-overs (d_debug[0], zero before); its low bits rotate the inboxes",
        "L_ctlk": "progress record read: complete and recent -> target time of the next tiles",
    }
    g.lines = [("; " + notes[l[:-1]] + "\n" + l) if l[:-1] in notes else l for l in g.lines]
    main = g.text()

    lds = TLDS + (2048 if cfg.tlog else 0)
    out = HEADER
    out += f"; @launch grid=({NWG},1,1) block=({WPW*64},1,1) lds={max(lds, cfg.lds)}\n"
    out += '.amdgcn_target "amdgcn-amd-amdhsa--gfx950"\n.text\n'
    out += f".globl {NAME}_kernel\n.p2align 8\n.type {NAME}_kernel,@function\n" + main
    out += '.section .rodata,"a"\n'
    out += (f".p2align 6\n.amdhsa_kernel {NAME}_kernel\n  .amdhsa_next_free_vgpr {NV}\n  .amdhsa_next_free_sgpr {NS}\n"
            f"  .amdhsa_accum_offset {NV}\n  .amdhsa_group_segment_fixed_size 0\n  .amdhsa_kernarg_size 80\n"
            "  .amdhsa_user_sgpr_count 2\n  .amdhsa_user_sgpr_kernarg_segment_ptr 1\n"
            "  .amdhsa_system_sgpr_workgroup_id_x 1\n.end_amdhsa_kernel\n")
    return out

if __name__ == "__main__":
    ap = argparse.ArgumentParser()
    ap.add_argument("-o", default="/dev/stdout")
    ap.add_argument("--stamp", type=int, default=0)
    ap.add_argument("--tlog", type=int, default=0)
    ap.add_argument("--pst", type=int, default=0)
    ap.add_argument("--d", type=int, default=5)
    ap.add_argument("--tiers", type=int, default=2)
    ap.add_argument("--first", type=int, default=6)
    ap.add_argument("--b2b", type=int, default=0)
    ap.add_argument("--lds", type=int, default=0)
    ap.add_argument("--ctlpos", type=int, default=8)
    ap.add_argument("--tpos", type=int, default=14)
    ap.add_argument("--rpos", type=int, default=12)
    ap.add_argument("--si", type=int, default=4)
    ap.add_argument("--s0", type=int, default=2)
    ap.add_argument("--rd", type=int, default=2)
    ap.add_argument("--rglc", type=int, default=0)
    ap.add_argument("--radd", type=int, default=0)
    ap.add_argument("--slow", type=int, default=4)
    ap.add_argument("--law", default="60:16,-25:-1,-50:-2,-80:-3")
    ap.add_argument("--cap", default="2:4")
    ap.add_argument("--wsc", type=int, default=1)
    ap.add_argument("--fslot", type=int, default=45)
    ap.add_argument("--diag", default="")
    ap.add_argument("--base", type=int, default=0)
    ap.add_argument("--law2", default="90:16")
    ap.add_argument("--tlb", type=int, default=0)
    ap.add_argument("--dnt", type=int, default=1)
    ap.add_argument("--tlbs", type=int, default=25)
    ap.add_argument("--est", type=int, default=0)
    ap.add_argument("--ebs", type=int, default=3)
    ap.add_argument("--ebl", type=int, default=0)
    ap.add_argument("--cpf", type=int, default=1)
    ap.add_argument("--rot", default="")
    ap.add_argument("--late", default="")
    ap.add_argument("--latecap", type=int, default=1)
    ap.add_argument("--eb", default="")
    ap.add_argument("--spec", type=int, default=1)
    ap.add_argument("--osc", default="")
    ap.add_argument("--bpos", type=int, default=0)
    ap.add_argument("--np", type=int, default=2)
    ap.add_argument("--nf", default="")
    ap.add_argument("--loc", type=int, default=0)
    ap.add_argument("--ema", type=int, default=0)
    ap.add_argument("--psn", type=int, default=0)
    ap.add_argument("--nr", type=int, default=4)
    ap.add_argument("--inv", type=int, default=0)
    ap.add_argument("--dv", type=int, default=0)
    ap.add_argument("--dbase", type=lambda x: int(x, 0), default=0x100000)
    ap.add_argument("--drt", type=int, default=0)
    ap.add_argument("--xoff", type=int, default=0)
    ap.add_argument("--pres", type=int, default=0)
    ap.add_argument("--prev", type=int, default=0)
    ap.add_argument("--prer", type=int, default=0)
    ap.add_argument("--prew", type=int, default=0)
    ap.add_argument("--pfl", default="sc1")
    ap.add_argument("--lay", default="1024:128:16384")
    ap.add_argument("--psl", type=int, default=3)
    ap.add_argument("--psl2", type=int, default=0)
    ap.add_argument("--wfl", default="sc1")
    ap.add_argument("--rfl", default="sc1")
    cfg = ap.parse_args()
    open(cfg.o, "w").write(build(cfg))
```

```python
import sys
sys.path.insert(0, "work")
from gen import Gen, HEADER, NAME
g = Gen()
g.label(f"{NAME}_kernel")
g("s_cmp_ge_u32 s2, 256")
g("s_cbranch_scc1 L_end")
g("s_load_dwordx4 s[20:23], s[0:1], 64")
g("s_memrealtime s[30:31]")
g("s_waitcnt lgkmcnt(0)")
g("s_mov_b32 s8, s22"); g("s_and_b32 s9, s23, 0xffff"); g("s_mov_b32 s10, 0x100000"); g("s_mov_b32 s11, 0x00020000")
g("s_load_dword s40, s[20:21], 0")
g("s_waitcnt lgkmcnt(0)")
g("s_cmp_lg_u32 s2, 0")
g("s_cbranch_scc1 L_sp")
g.label("L_w")
g("s_memrealtime s[32:33]")
g("s_waitcnt lgkmcnt(0)")
g("s_sub_u32 s32, s32, s30")
g("s_cmp_lt_u32 s32, 2000")
g("s_cbranch_scc1 L_w")
g("s_mov_b32 s41, 77")
g("s_atomic_add s41, s[20:21], 0")
g("s_waitcnt lgkmcnt(0)")
g.label("L_sp")
g("s_mov_b32 s42, 0")
g.label("L_l")
g("s_load_dword s41, s[20:21], 0 glc")
g("s_waitcnt lgkmcnt(0)")
g("s_add_u32 s42, s42, 1")
g("s_cmp_ge_u32 s42, 3000")
g("s_cbranch_scc1 L_d")
g("s_cmp_eq_u32 s41, 0")
g("s_cbranch_scc1 L_l")
g.label("L_d")
g("s_memrealtime s[32:33]")
g("s_waitcnt lgkmcnt(0)")
g("s_sub_u32 s32, s32, s30")
g("v_mov_b32 v4, s40"); g("v_mov_b32 v5, s41"); g("v_mov_b32 v6, s42"); g("v_mov_b32 v7, s32")
g("s_lshl_b32 s13, s2, 4")
g("s_mov_b64 exec, 1")
g("buffer_store_dwordx4 v[4:7], off, s[8:11], s13")
g.label("L_end")
g("s_endpgm")
out = HEADER
out += f"; @launch grid=(256,1,1) block=(64,1,1) lds=0\n"
out += '.amdgcn_target "amdgcn-amd-amdhsa--gfx950"\n.text\n'
out += f".globl {NAME}_kernel\n.p2align 8\n.type {NAME}_kernel,@function\n" + g.text()
out += '.section .rodata,"a"\n'
out += (f".p2align 6\n.amdhsa_kernel {NAME}_kernel\n  .amdhsa_next_free_vgpr 32\n  .amdhsa_next_free_sgpr 48\n"
        f"  .amdhsa_accum_offset 32\n  .amdhsa_group_segment_fixed_size 0\n  .amdhsa_kernarg_size 80\n"
        "  .amdhsa_user_sgpr_count 2\n  .amdhsa_user_sgpr_kernarg_segment_ptr 1\n"
        "  .amdhsa_system_sgpr_workgroup_id_x 1\n.end_amdhsa_kernel\n")
open("glc.s", "w").write(out)
```

```python
import sys, argparse, math, struct
from gen import Gen, vr, sr, HEADER, NAME, f32bits

def build(cfg):
    WPW = 4; NWG = 256; NP = 8
    MLBASE = 32 * NP * 1024
    I = cfg.si; LI = int(math.log2(I)); RD = cfg.rd
    syncs = list(range(cfg.s0, 64 - RD, I))
    wmask = sum(1 << c for c in syncs); rmask = sum(1 << (c + RD) for c in syncs)
    assert len(syncs) <= 32 and (wmask & rmask) == 0 and 1 << LI == I
    SU = [1, 3, 5, 29]
    FS = [cfg.fslot, cfg.fslot + 2]
    omask = sum(1 << c for c in SU + FS)
    assert all(c % 2 == 0 for c in syncs) and RD % 2 == 0 and cfg.fslot % 2 == 1 and cfg.fslot > 32
    CBASE = 0x50000; CSTR = 4352
    XBASE = 0x80000 + cfg.xoff
    RS, PS_, GS = [int(x) for x in cfg.lay.split(":")]
    assert cfg.lay == "1024:128:16384"
    XB2 = 32 * GS
    WSBYTES = XBASE + 2 * XB2
    D, LA = cfg.d, 8
    assert D + cfg.tiers <= LA
    nt = " nt"
    g = Gen()
    vB, vKC, vVA, vNx, vZero, vS, vLds, vLane, vM, vL, vT1, vBias = range(12)
    vSelS, vSelZ, vMa, vMb = 12, 13, 14, 15
    Q = 16
    NB = 32
    TK = 36
    TV = 36
    DK = 52
    X = 68
    VS = 72; VZ = 76; U = 80; P = 84; ZA = 86; WP = 88
    vA, vOne, vO16, vO8 = 92, 93, 94, 95
    O = 96
    CORR = 128
    RAW = 132
    SM = 196
    vW, vG, vCW, vP, vOa, vCnt, vIn = range(220, 227)
    MX = 228
    TMP = 244
    PT = 204
    NV = 256
    sK, sV, sVS, sVZ, sQ, sKS, sKZ, sWS, sDBG, sOUT, sNx = 24, 28, 32, 36, 40, 44, 48, 52, 76, 76, 96
    sWave, sUnit, sCur, sNOff, sDelta, sN, sTmp, sTmp2, sBH, sBase = 56, 57, 58, 59, 60, 61, 62, 63, 64, 65
    sJ4 = 66; sHi = 68; sC = 69; sExec = 70; sHd = 80; sEp = 82; sCk = 92
    sL, sPend, sSlot, sWOff, sROff = 4, 5, 13, 100, 101
    sTgt, sA, sRate, sPm, sPrev, sOk, sEn, sCr, sFlag = 12, 11, 10, 14, 3, 28, 29, 30, 31
    sOwn0, sOwn1 = 16, 17
    sT, sSy, sSw, sCkW = 40, 42, 44, 46
    sReg = 72
    sOwnM, sRdy, sTag, sIn, sMh = 48, 50, 51, 73, 74
    NS = 102
    LV = 32768
    CLDS = 49152
    MLDS = CLDS + 8192
    XLDS = MLDS + 32
    BLDS = MLDS + WPW * 16
    TLDS = BLDS + 16
    dpp = " row_mask:0xf bank_mask:0xf"

    g.label(f"{NAME}_kernel")
    g(f"s_cmp_ge_u32 s2, {NWG}")
    g("s_cbranch_scc1 L_end")
    g("s_load_dwordx4 s[4:7], s[0:1], 0")
    g("s_load_dwordx4 s[8:11], s[0:1], 16")
    g("s_load_dwordx8 s[12:19], s[0:1], 32")
    g("s_load_dwordx4 s[20:23], s[0:1], 64")
    if cfg.cpf:
        g(f"s_getpc_b64 {sr(sExec,2)}")
        g.label("L_pc")
        g(f"v_lshlrev_b32 {vr(TMP+4)}, 6, v0")
        g(f"v_min_u32 {vr(TMP+4)}, L_last-L_pc, {vr(TMP+4)}")
        g(f"global_load_dword {vr(TMP+5)}, {vr(TMP+4)}, {sr(sExec,2)}")
    if cfg.stamp:
        g("s_memrealtime s[84:85]")
        g("s_getreg_b32 s88, hwreg(HW_REG_XCC_ID)")
    w_, j_, g_, a_, b_, g1, g2, hd, pr, t0, t1, oS, l8, qa = range(PT, PT + 14)
    g(f"v_and_b32 {vr(vLane)}, 63, v0")
    g(f"v_lshrrev_b32 {vr(w_)}, 6, v0")
    g(f"v_and_b32 {vr(j_)}, 15, {vr(vLane)}")
    g(f"v_lshrrev_b32 {vr(g_)}, 4, {vr(vLane)}")
    g(f"v_readfirstlane_b32 {sr(sWave)}, {vr(w_)}")
    g(f"v_lshrrev_b32 {vr(a_)}, 2, {vr(j_)}")
    g(f"v_and_b32 {vr(b_)}, 3, {vr(j_)}")
    g(f"v_and_b32 {vr(g1)}, 1, {vr(g_)}")
    g(f"v_lshrrev_b32 {vr(g2)}, 1, {vr(g_)}")
    g(f"v_lshlrev_b32 {vr(t0)}, 15, {vr(a_)}")
    g(f"v_lshl_add_u32 {vr(t0)}, {vr(g2)}, 9, {vr(t0)}")
    g(f"v_lshl_add_u32 {vr(t0)}, {vr(g1)}, 6, {vr(t0)}")
    g(f"v_lshl_add_u32 {vr(vKC)}, {vr(b_)}, 4, {vr(t0)}")
    g(f"v_lshlrev_b32 {vr(l8)}, 3, {vr(vLane)}")
    g(f"v_and_b32 {vr(oS)}, 0xff, {vr(l8)}")
    g(f"v_lshlrev_b32 {vr(vO16)}, 4, {vr(vLane)}")
    bm = [int(x) for x in cfg.bmap.split(",")]
    if bm == [6, 7, 0, 1, 2]:
        g(f"s_and_b32 {sr(sBH)}, s2, 7")
        g(f"s_lshr_b32 {sr(sTmp)}, s2, 6")
        g(f"s_lshl2_add_u32 {sr(sBH)}, {sr(sBH)}, {sr(sTmp)}")
    elif bm == [0, 6, 7, 1, 2]:
        g(f"s_and_b32 {sr(sBH)}, s2, 1")
        g(f"s_lshr_b32 {sr(sTmp)}, s2, 6")
        g(f"s_lshl1_add_u32 {sr(sBH)}, {sr(sTmp)}, {sr(sBH)}")
        g(f"s_bfe_u32 {sr(sTmp)}, s2, 0x20001")
        g(f"s_lshl3_add_u32 {sr(sBH)}, {sr(sTmp)}, {sr(sBH)}")
    elif bm == [0, 1, 2, 6, 7]:
        g(f"s_and_b32 {sr(sBH)}, s2, 7")
        g(f"s_lshr_b32 {sr(sTmp)}, s2, 6")
        g(f"s_lshl3_add_u32 {sr(sBH)}, {sr(sTmp)}, {sr(sBH)}")
    else:
        g(f"s_bfe_u32 {sr(sBH)}, s2, 0x{0x10000 | bm[4]:x}")
        for i in (3, 2, 1, 0):
            g(f"s_bfe_u32 {sr(sTmp)}, s2, 0x{0x10000 | bm[i]:x}")
            g(f"s_lshl1_add_u32 {sr(sBH)}, {sr(sBH)}, {sr(sTmp)}")
    g(f"s_bfe_u32 {sr(sReg)}, s2, 0x30003")
    g(f"s_lshl3_add_u32 {sr(sReg)}, {sr(sBH)}, {sr(sReg)}")
    g(f"s_lshr_b32 {sr(sUnit)}, {sr(sReg)}, 2")
    g(f"s_lshl_b32 {sr(sBase)}, {sr(sReg)}, 9")
    g(f"s_add_u32 {sr(sBase)}, {sr(sBase)}, {sr(sWave)}")
    g(f"s_lshl_b32 {sr(sBase)}, {sr(sBase)}, 12")
    sMask = 75
    if cfg.fl:
        lo_, sb_ = [int(x) for x in cfg.fl.split(":")]
        g(f"s_bfe_u32 {sr(sMask)}, s2, 0x{0x10000 | sb_:x}")
        g(f"s_lshl_b32 {sr(sMask)}, {sr(sMask)}, {lo_}")
        g(f"s_or_b32 {sr(sBase)}, {sr(sBase)}, {sr(sMask)}")
    g(f"s_lshl_b32 {sr(sTmp)}, {sr(sBH)}, 9")
    g(f"s_lshl_b32 {sr(sTmp2)}, {sr(sUnit)}, 8")
    for d in (sK, sQ, sKS, sKZ, sVS, sVZ, sWS):
        g(f"s_mov_b32 {sr(d+3)}, 0x00020000")
    g(f"s_mov_b32 {sr(sK+2)}, 0x20000000")
    for d in (sQ, sKS, sKZ): g(f"s_mov_b32 {sr(d+2)}, 0x4000")
    for d in (sVS, sVZ): g(f"s_mov_b32 {sr(d+2)}, 0x200000")
    g(f"s_mov_b32 {sr(sWS+2)}, 0x{WSBYTES if not (cfg.stamp or cfg.drt) else 0x2000000:x}")
    g(f"s_lshl_b32 {sr(sN)}, {sr(sReg)}, 13")
    g(f"s_lshl_b32 {sr(sDelta)}, {sr(sWave)}, 11")
    g(f"s_add_u32 {sr(sN)}, {sr(sN)}, {sr(sDelta)}")
    g(f"s_add_u32 m0, {sr(sDelta)}, {LV}")
    if cfg.tlog:
        g(f"s_lshl_b32 s89, {sr(sWave)}, 9")
        g(f"s_add_u32 s89, s89, {TLDS}")
    g("s_waitcnt lgkmcnt(0)")
    def pst():
        if not cfg.pst: return
        g("s_memrealtime s[90:91]")
        g("s_waitcnt lgkmcnt(0)")
        g("s_lshl_b32 s90, s90, 7")
        g(f"v_mov_b32 {vr(TMP+2)}, s90")
        g(f"v_mov_b32 {vr(TMP+3)}, s89")
        g(f"ds_write_b32 {vr(TMP+3)}, {vr(TMP+2)}")
        g("s_add_u32 s89, s89, 4")
    pst()
    def srdp(d, p):
        g(f"s_mov_b32 {sr(d)}, {sr(p)}")
        g(f"s_and_b32 {sr(d+1)}, {sr(p+1)}, 0xffff")
    def srd(d, p, nbytes):
        srdp(d, p)
        g(f"s_mov_b32 {sr(d+2)}, 0x{nbytes:x}")
        g(f"s_mov_b32 {sr(d+3)}, 0x00020000")
    def big(n, va, sd, so):
        s_, u = n >> 2, n & 3
        g(f"buffer_load_dwordx4 {vr(RAW+4*n,4)}, {vr(va)}, {sr(sd,4)}, {sr(so)} offen offset:{u*1024+s_*128}{nt}")
    RQ, RKS, RZ = SM, SM + 2, SM + 4
    F = cfg.first
    srdp(sK, 6)
    for n in range(F):
        big(n, vKC, sK, sBase)
    pst()
    srdp(sQ, 4); srdp(sKS, 10); srdp(sKZ, 12)
    g(f"buffer_load_dwordx2 {vr(RQ,2)}, {vr(l8)}, {sr(sQ,4)}, {sr(sTmp)} offen{nt if cfg.dnt > 1 else ''}")
    g(f"buffer_load_dwordx2 {vr(RKS,2)}, {vr(oS)}, {sr(sKS,4)}, {sr(sTmp2)} offen{nt if cfg.dnt > 1 else ''}")
    g(f"buffer_load_dwordx2 {vr(RZ,2)}, {vr(oS)}, {sr(sKZ,4)}, {sr(sTmp2)} offen{nt if cfg.dnt > 1 else ''}")
    srdp(sVS, 14); srdp(sVZ, 16)
    for x in range(2):
        g(f"buffer_load_dwordx4 {vr(vO16)}, {sr(sVS,4)}, {sr(sN)} offen offset:{1024*x}{nt if cfg.dnt else ''} lds")
    g(f"s_add_u32 m0, {sr(sDelta)}, {LV+8192}")
    srdp(sWS, 22)
    for x in range(2):
        g(f"buffer_load_dwordx4 {vr(vO16)}, {sr(sVZ,4)}, {sr(sN)} offen offset:{1024*x}{nt if cfg.dnt else ''} lds")
    pst()
    srd(sNx, 6, 0x20000000)
    g(f"s_mov_b32 {sr(sHi)}, 0xffff0000")
    g(f"s_mov_b32 {sr(sC)}, 0x{f32bits((128.0 ** -0.5) * math.log2(math.e)):08x}")
    g(f"v_and_b32 {vr(hd)}, 1, {vr(j_)}")
    g(f"v_bfe_u32 {vr(pr)}, {vr(j_)}, 1, 1")
    g(f"v_mov_b32 {vr(vNx)}, {vr(vKC)}")
    g(f"v_lshl_add_u32 {vr(t0)}, {vr(g_)}, 2, {vr(b_)}")
    g(f"v_lshlrev_b32 {vr(t0)}, 4, {vr(t0)}")
    g(f"v_lshl_add_u32 {vr(vLds)}, {vr(w_)}, 13, {vr(t0)}")
    g(f"v_xor_b32 {vr(t0)}, {vr(pr)}, {vr(g2)}")
    g(f"v_lshl_add_u32 {vr(qa)}, {vr(g1)}, 2, {vr(a_)}")
    g(f"v_lshl_add_u32 {vr(qa)}, {vr(hd)}, 5, {vr(qa)}")
    g(f"v_lshl_add_u32 {vr(qa)}, {vr(t0)}, 6, {vr(qa)}")
    g(f"v_lshl_add_u32 {vr(qa)}, {vr(w_)}, 7, {vr(qa)}")
    g(f"v_lshlrev_b32 {vr(qa)}, 4, {vr(qa)}")
    g(f"v_add_u32 {vr(qa)}, {CLDS}, {vr(qa)}")
    g(f"v_lshl_add_u32 {vr(l8)}, {vr(w_)}, 11, {vr(vO16)}")
    for r in range(4): g(f"v_mov_b32 {vr(CORR+r)}, 0")
    g(f"v_cmp_gt_u32 {sr(sJ4,2)}, 4, {vr(j_)}")
    g(f"v_cmp_ne_u32 {sr(sHd,2)}, 0, {vr(hd)}")
    g(f"ds_write_b128 {vr(l8)}, {vr(CORR,4)} offset:{CLDS+1024}")
    g(f"v_mov_b32 {vr(vZero)}, 0")
    g(f"ds_write_b32 {vr(CORR)}, {vr(CORR)} offset:{BLDS}")
    g(f"v_mov_b32 {vr(vM)}, 0xff7fffff")
    g(f"s_mov_b32 {sr(sWOff)}, 0x{CBASE:x}")
    g(f"s_mov_b32 {sr(sROff)}, 0x{CBASE:x}")
    def setup(k):
        if k == 0:
            g(f"v_lshrrev_b32 {vr(t0)}, 3, {vr(j_)}")
            g(f"v_mul_u32_u24 {vr(t0)}, 0x0202, {vr(t0)}")
            g(f"v_lshl_add_u32 {vr(t0)}, {vr(t0)}, 16, {vr(t0)}")
            g(f"v_add_u32 {vr(vSelZ)}, 0x05040100, {vr(t0)}")
            g(f"v_mul_u32_u24 {vr(t0)}, 0x0202, {vr(pr)}")
            g(f"v_lshlrev_b32 {vr(t0)}, 16, {vr(t0)}")
            g(f"v_add_u32 {vr(vSelS)}, 0x01000c0c, {vr(t0)}")
            g(f"v_bfe_u32 {vr(t0)}, {vr(j_)}, 2, 1")
            g(f"v_sub_u32 {vr(vMb)}, 0, {vr(t0)}")
            g(f"v_not_b32 {vr(vMa)}, {vr(vMb)}")
            g(f"v_lshlrev_b32 {vr(vVA)}, 7, {vr(g_)}")
            g(f"s_bfe_u32 {sr(sTmp)}, {sr(sBase)}, 0xd0008")
            g(f"v_add_u32 {vr(vVA)}, {LV}, {vr(vVA)}")
            g(f"v_add_u32 {vr(vS)}, {sr(sTmp)}, {vr(vVA)}")
            g(f"v_cmp_eq_u32 {sr(sEp,2)}, {vr(pr)}, {vr(g2)}")
            g(f"v_cmp_gt_u32 vcc, 8, {vr(j_)}")
            g(f"v_mov_b32 {vr(vL)}, 0")
            g(f"s_and_b64 {sr(sEp,2)}, {sr(sEp,2)}, vcc")
            g(f"s_mov_b32 {sr(sRdy)}, 0")
            g(f"s_lshl_b32 {sr(sTmp)}, {sr(sWave)}, 2")
            g(f"v_lshl_add_u32 {vr(vG)}, {vr(hd)}, 4, {sr(sTmp)}")
            g(f"s_or_b32 {sr(sTmp)}, s2, {sr(sWave)}")
            g("s_cbranch_scc1 L_nckk")
            g(f"s_or_b32 {sr(sTag)}, {sr(sT)}, 1")
            g(f"s_atomic_add {sr(sTag)}, s[20:21], 0")
        elif k in (1, 2):
            if k == 1:
                g(f"v_mov_b32 {vr(vA)}, 1")
                g("s_mov_b64 exec, 1")
                g(f"ds_add_u32 {vr(vZero)}, {vr(vA)} offset:{BLDS}")
                g("s_mov_b64 exec, -1")
            for r in range(16): g(f"v_mov_b32 {vr(O+16*(k-1)+r)}, 0")
        elif k == 3:
            g(f"ds_read_b32 {vr(vA)}, {vr(vZero)} offset:{BLDS}")
    g(f"s_or_b32 {sr(sTmp)}, s2, {sr(sWave)}")
    g(f"s_cmp_eq_u32 {sr(sTmp)}, 0")
    g("s_cbranch_scc1 L_init")
    g.label("L_noinit")
    g(f"s_mov_b32 {sr(sCur)}, {sr(sBase)}")
    g(f"s_mov_b32 {sr(sDelta)}, 0x4000")
    g(f"s_mov_b32 {sr(sPend)}, 0")
    g(f"s_mov_b32 {sr(sSlot)}, 0")
    for r in (sTgt, sRate, sPrev): g(f"s_mov_b32 {sr(r)}, 0")
    for r in (sOk, sCr, sT): g(f"s_mov_b64 {sr(r,2)}, 0")
    g(f"s_and_b32 {sr(sTmp)}, s2, 0x38")
    g(f"s_lshr_b32 {sr(sTmp2)}, s2, 6")
    g(f"s_xor_b32 {sr(sTmp2)}, {sr(sTmp2)}, {sr(sWave)}")
    g(f"s_or_b32 {sr(sTmp)}, {sr(sTmp)}, {sr(sTmp2)}")
    g(f"s_cmp_eq_u32 {sr(sTmp)}, 0")
    g(f"s_cselect_b32 {sr(sCkW)}, 0x{wmask & 0xffffffff:x}, 0")
    g(f"s_cselect_b32 {sr(sCkW+1)}, 0x{wmask >> 32:x}, 0")
    g(f"s_or_b32 {sr(sCk)}, {sr(sCkW)}, 0x{(rmask | omask) & 0xffffffff:x}")
    g(f"s_or_b32 {sr(sCk+1)}, {sr(sCkW+1)}, 0x{(rmask | omask) >> 32:x}")
    pst()

    def xreduce(op, v, t, both=True):
        g(f"v_mov_b32 {vr(t)}, {vr(v)}")
        g("s_nop 1")
        g(f"v_permlane16_swap_b32 {vr(v)}, {vr(t)}")
        g("s_nop 1")
        g(f"{op} {vr(v)}, {vr(v)}, {vr(t)}")
        if not both: return
        g(f"v_mov_b32 {vr(t)}, {vr(v)}")
        g("s_nop 1")
        g(f"v_permlane32_swap_b32 {vr(v)}, {vr(t)}")
        g("s_nop 1")
        g(f"{op} {vr(v)}, {vr(v)}, {vr(t)}")
    def prep(part):
        a0, a1, b0, b1, z0, z1, h0, h1 = range(VS, VS + 8)
        HL = U
        for y in range(2 if part == 0 else 0):
            g(f"v_lshlrev_b32 v{a0}, 16, {vr(RQ+y)}")
            g(f"v_and_b32 v{a1}, {sr(sHi)}, {vr(RQ+y)}")
            g(f"v_lshlrev_b32 v{b0}, 16, {vr(RKS+y)}")
            g(f"v_and_b32 v{b1}, {sr(sHi)}, {vr(RKS+y)}")
            g(f"v_lshlrev_b32 v{z0}, 16, {vr(RZ+y)}")
            g(f"v_and_b32 v{z1}, {sr(sHi)}, {vr(RZ+y)}")
            g(f"v_mul_f32 v{a0}, v{a0}, v{b0}")
            g(f"v_mul_f32 v{a1}, v{a1}, v{b1}")
            g(f"v_mul_f32 v{a0}, {sr(sC)}, v{a0}")
            g(f"v_mul_f32 v{a1}, {sr(sC)}, v{a1}")
            g(f"v_cvt_pk_bf16_f32 {vr(HL+y)}, v{a0}, v{a1}")
            if y == 0: g(f"v_mul_f32 {vr(vBias)}, v{a0}, v{z0}")
            else: g(f"v_fmac_f32 {vr(vBias)}, v{a0}, v{z0}")
            g(f"v_fmac_f32 {vr(vBias)}, v{a1}, v{z1}")
            g(f"v_lshlrev_b32 v{h0}, 16, {vr(HL+y)}")
            g(f"v_and_b32 v{h1}, {sr(sHi)}, {vr(HL+y)}")
            g(f"v_sub_f32 v{a0}, v{a0}, v{h0}")
            g(f"v_sub_f32 v{a1}, v{a1}, v{h1}")
            g(f"v_cvt_pk_bf16_f32 {vr(HL+2+y)}, v{a0}, v{a1}")
        if part == 0:
            g(f"ds_write_b128 {vr(l8)}, {vr(HL,4)} offset:{CLDS}")
            return
        for m in range(2):
            g(f"ds_read2_b64 {vr(Q+8*m,4)}, {vr(qa)} offset0:{32*m} offset1:{32*m+16}")
            g(f"ds_read2_b64 {vr(Q+8*m+4,4)}, {vr(qa)} offset0:{32*m+1} offset1:{32*m+17}")
        for r in (1, 2, 4, 8):
            g(f"v_add_f32_dpp {vr(vBias)}, {vr(vBias)}, {vr(vBias)} row_ror:{r}{dpp}")
            g("s_nop 1")
        xreduce("v_add_f32", vBias, vT1, both=False)
        g(f"v_mul_f32 {vr(vBias)}, 0xbe800000, {vr(vBias)}")
        g("s_nop 0")
        g(f"v_readlane_b32 {sr(sTmp)}, {vr(vBias)}, 0")
        g(f"v_readlane_b32 {sr(sTmp2)}, {vr(vBias)}, 32")
        g("s_nop 1")
        g(f"v_mov_b32 {vr(NB)}, {sr(sTmp)}")
        g(f"v_mov_b32 {vr(vT1)}, {sr(sTmp2)}")
        g(f"v_cndmask_b32 {vr(NB)}, {vr(NB)}, {vr(vT1)}, {sr(sHd,2)}")
        for r in range(1, 4):
            g(f"v_mov_b32 {vr(NB+r)}, {vr(NB)}")

    def tlog():
        if not cfg.tlog: return
        g("s_memrealtime s[90:91]")
        g("s_waitcnt lgkmcnt(0)")
        g("s_lshl_b32 s90, s90, 7")
        g(f"s_add_u32 s91, {sr(sL)}, 32")
        g("s_and_b32 s91, s91, 127")
        g("s_or_b32 s90, s90, s91")
        g(f"v_mov_b32 {vr(TMP)}, s90")
        g(f"v_mov_b32 {vr(TMP+1)}, s89")
        g(f"ds_write_b32 {vr(TMP+1)}, {vr(TMP)}")
        g("s_add_u32 s89, s89, 4")
    def br4(n): return int(f"{n:04b}"[::-1], 2)
    def issue(ph, n, va, sd):
        tiers = 3 if ph == "v" and cfg.ebl and cfg.ebs <= n < 8 else cfg.tiers
        for t in range(tiers, 0, -1):
            g(f"s_cmp_gt_i32 {sr(sL)}, {br4(n) + 16*(t-1)}")
            g(f"s_cbranch_scc1 L_{ph}w{n}_{t}")
        if cfg.slow and br4(n) < cfg.slow:
            g(f"s_cmp_lt_i32 {sr(sL)}, {-br4(n)}")
            g(f"s_cbranch_scc0 L_{ph}w{n}_0")
            g(f"s_waitcnt vmcnt({D-2})")
        for t in range(tiers + 1):
            g.label(f"L_{ph}w{n}_{t}")
            g(f"s_waitcnt vmcnt({D-1+t})")
        if n < 16 - LA: big(n + LA, va, sd, sCur)
        else: big(n + LA - 16, vNx, sNx, sNOff)
    def top(ph):
        g("s_waitcnt lgkmcnt(0)")
        g(f"s_lshl_b32 {sr(sA)}, {sr(sT)}, 5")
        g(f"s_sub_u32 {sr(sA)}, {sr(sA)}, {sr(sTgt)}")
        g(f"s_add_u32 {sr(sTgt)}, {sr(sTgt)}, {sr(sRate)}")
        g(f"s_and_b32 {sr(sA)}, {sr(sA)}, {sr(sEn)}")
        g(f"s_mov_b32 {sr(sL)}, {cfg.base}")
        for e in cfg.law.split(","):
            th, lv = [int(x) for x in e.split(":")]
            g(f"s_cmp_{'gt' if th > 0 else 'lt'}_i32 {sr(sA)}, {th * 32}")
            g(f"s_cselect_b32 {sr(sL)}, {lv}, {sr(sL)}")
        def late():
            for e in cfg.late.split(","):
                sl, th, lv = [int(x) for x in e.split(":")]
                g(f"s_cmp_ge_u32 {sr(sSlot)}, {sl}")
                g(f"s_cselect_b32 {sr(sTmp2)}, {sr(sA)}, 0")
                g(f"s_cmp_{'gt' if th > 0 else 'lt'}_i32 {sr(sTmp2)}, {th * 32}")
                g(f"s_cselect_b32 {sr(sL)}, {lv}, {sr(sL)}")
        if cfg.late and ph == "v" and cfg.latecap: late()
        if cfg.cap:
            cc, cm = [int(x) for x in cfg.cap.split(":")]
            g(f"s_add_u32 {sr(sCr)}, {sr(sCr)}, 1")
            g(f"s_min_u32 {sr(sCr)}, {sr(sCr)}, {cm}")
            g(f"s_cmp_ge_u32 {sr(sCr)}, {cc}")
            g(f"s_cselect_b32 {sr(sTmp2)}, 64, 0")
            g(f"s_min_i32 {sr(sL)}, {sr(sL)}, {sr(sTmp2)}")
            g(f"s_cmp_gt_i32 {sr(sL)}, 0")
            g(f"s_cselect_b32 {sr(sTmp2)}, {cc}, 0")
            g(f"s_sub_u32 {sr(sCr)}, {sr(sCr)}, {sr(sTmp2)}")
        if cfg.law2:
            for e in cfg.law2.split(","):
                th, lv = [int(x) for x in e.split(":")]
                g(f"s_cmp_gt_i32 {sr(sA)}, {th * 32}")
                g(f"s_cselect_b32 {sr(sL)}, {lv}, {sr(sL)}")
        if cfg.late and ph == "v" and not cfg.latecap: late()
        if cfg.diag and ph == cfg.diag[0]:
            g(f"s_bitcmp{cfg.diag[1]}_b32 s2, 7")
            g(f"s_cselect_b32 {sr(sL)}, -4, {sr(sL)}")
        if ph == "v" and cfg.eb:
            for e in cfg.eb.split(","):
                sl, am = e.split(":")
                g(f"s_cmp_ge_u32 {sr(sSlot)}, {sl}")
                g(f"s_cselect_b32 {sr(sA)}, {am}, 0")
                g(f"s_add_u32 {sr(sL)}, {sr(sL)}, {sr(sA)}")
        tlog()
    def ctl_hooks(ph, n):
        if n == 0:
            g(f"s_bitcmp1_b64 {sr(sCk,2)}, {sr(sSlot)}")
            g(f"s_cbranch_scc1 L_ck{ph}")
            g.label(f"L_nck{ph}")
            g(f"s_add_u32 {sr(sSlot)}, {sr(sSlot)}, 1")
        if n == cfg.ctlpos:
            g(f"s_cmp_lg_u32 {sr(sPend)}, 0")
            g(f"s_cbranch_scc1 L_ctl{ph}")
            g.label(f"L_cb{ph}")
        if n == cfg.tpos:
            g(f"s_memrealtime {sr(sT,2)}")
    def getm(fl):
        g(f"s_load_dword {sr(sTag)}, s[20:21], {128 if cfg.drt else 0}{fl}")
        g(f"v_and_b32 {vr(vW)}, 16, {vr(vG)}")
        g(f"ds_read_b32 {vr(vCnt)}, {vr(vZero)} offset:{BLDS}")
        g(f"ds_read_b128 {vr(MX,4)}, {vr(vW)} offset:{XLDS}")
    def weight(no):
        g(f"v_readfirstlane_b32 {sr(sTmp)}, {vr(vCnt)}")
        g(f"v_max_f32 {vr(MX)}, {vr(MX)}, {vr(MX+1)}")
        g(f"s_cmp_eq_u32 {sr(sTag)}, 0")
        g(f"s_cbranch_scc1 {no}")
        g(f"s_cmp_lg_u32 {sr(sTmp)}, {2*WPW}")
        g(f"s_cbranch_scc1 {no}")
        g(f"v_max3_f32 {vr(MX)}, {vr(MX)}, {vr(MX+2)}, {vr(MX+3)}")
        g(f"v_sub_f32 {vr(vW)}, {vr(vM)}, {vr(MX)}")
        g(f"v_exp_f32 {vr(vW)}, {vr(vW)}")
        g(f"s_mov_b32 {sr(sRdy)}, 2")
    def ctl_blocks(ph):
        g.label(f"L_ck{ph}")
        g(f"s_bitcmp1_b32 {sr(sSlot)}, 0")
        g(f"s_cbranch_scc1 L_odd{ph}")
        g(f"s_bitcmp1_b64 {sr(sCkW,2)}, {sr(sSlot)}")
        g(f"s_cbranch_scc1 L_pub{ph}")
        g(f"s_load_dwordx2 {sr(sSy,2)}, s[22:23], {sr(sROff)}{' glc' if cfg.rglc else ''}")
        g(f"s_mov_b32 {sr(sPend)}, 1")
        g(f"s_add_u32 {sr(sROff)}, {sr(sROff)}, {CSTR}")
        g(f"s_branch L_nck{ph}")
        g.label(f"L_pub{ph}")
        g(f"s_mov_b32 {sr(sSw)}, 1")
        g(f"s_mov_b32 {sr(sSw+1)}, {sr(sT)}")
        g(f"s_atomic_add_x2 {sr(sSw,2)}, s[22:23], {sr(sWOff)}")
        g(f"s_add_u32 {sr(sWOff)}, {sr(sWOff)}, {CSTR}")
        g(f"s_branch L_nck{ph}")
        g.label(f"L_odd{ph}")
        if ph == "k":
            for k in range(1, len(SU)):
                g(f"s_cmp_eq_u32 {sr(sSlot)}, {SU[k]}")
                g(f"s_cbranch_scc1 L_su{k}")
            for k in range(len(SU)):
                g.label(f"L_su{k}")
                setup(k)
                g(f"s_branch L_nck{ph}")
        else:
            g(f"s_cmp_eq_u32 {sr(sSlot)}, {FS[1]}")
            g("s_cbranch_scc1 L_fs1")
            getm("")
            g(f"s_branch L_nck{ph}")
            g.label("L_fs1")
            weight(f"L_nck{ph}")
            g(f"s_branch L_nck{ph}")
        g.label(f"L_ctl{ph}")
        g(f"s_mov_b32 {sr(sPend)}, 0")
        g(f"s_lshl_b32 {sr(sTmp)}, {sr(sT)}, 5")
        g(f"s_mov_b32 {sr(sTmp2)}, {sr(sOk)}")
        g("s_waitcnt lgkmcnt(0)")
        g(f"s_sub_u32 {sr(sTmp)}, {sr(sTmp)}, {sr(sSy+1)}")
        g(f"s_cmp_lt_u32 {sr(sTmp)}, {32 * 2000}")
        g(f"s_cselect_b32 {sr(sOk)}, {sr(sSy)}, 0")
        g(f"s_cmp_eq_u32 {sr(sOk)}, 32")
        g(f"s_cselect_b32 {sr(sOk)}, 1, 0")
        g(f"s_sub_u32 {sr(sTmp)}, {sr(sSy+1)}, {sr(sPrev)}")
        g(f"s_mov_b32 {sr(sPrev)}, {sr(sSy+1)}")
        g(f"s_and_b32 {sr(sTmp2)}, {sr(sTmp2)}, {sr(sOk)}")
        g(f"s_cbranch_scc0 L_cb{ph}")
        if cfg.ema:
            g(f"s_lshr_b32 {sr(sTmp)}, {sr(sTmp)}, {LI}")
            g(f"s_sub_u32 {sr(sTmp)}, {sr(sTmp)}, {sr(sRate)}")
            g(f"s_and_b32 {sr(sTmp2)}, {sr(sEn)}, {cfg.ema}")
            g(f"s_ashr_i32 {sr(sTmp)}, {sr(sTmp)}, {sr(sTmp2)}")
            g(f"s_add_u32 {sr(sRate)}, {sr(sRate)}, {sr(sTmp)}")
        else:
            g(f"s_lshr_b32 {sr(sRate)}, {sr(sTmp)}, {LI}")
        if cfg.radd: g(f"s_add_u32 {sr(sRate)}, {sr(sRate)}, {cfg.radd}")
        g(f"s_mul_i32 {sr(sTmp)}, {sr(sRate)}, {RD + 1}")
        g(f"s_add_u32 {sr(sTgt)}, {sr(sSy+1)}, {sr(sTmp)}")
        g(f"s_mov_b32 {sr(sEn)}, -1")
        g(f"s_branch L_cb{ph}")
    def cvt4(R):
        for i in range(4):
            g(f"v_cvt_f32_i32 {vr(R+i)}, {vr(R+i)}")
    def kmfma(n):
        s_, u = n >> 2, n & 3
        m = s_ >> 1
        Dd = DK + 4*u; T = TK + 4*u
        g(f"v_mfma_f32_16x16x32_bf16 {vr(Dd,4)}, {vr(T,4)}, {vr(Q+8*m,4)}, {vr(NB,4) if m == 0 else vr(Dd,4)}")
        g(f"v_mfma_f32_16x16x32_bf16 {vr(Dd,4)}, {vr(T,4)}, {vr(Q+8*m+4,4)}, {vr(Dd,4)}")
    def red(u, k):
        Dd = DK + 4*u
        g(f"v_add_f32_dpp {vr(X+u)}, {vr(Dd+1+k)}, {vr(Dd) if k == 0 else vr(X+u)} row_ror:{12-4*k}{dpp}")
    def kcvt(n):
        s_, u = n >> 2, n & 3
        R = RAW + 4*n
        cvt4(R)
        for y in range(2):
            g(f"v_cvt_pk_bf16_f32 {vr(TK+4*u+2*(s_&1)+y)}, {vr(R+2*y)}, {vr(R+2*y+1)}")
    assert 5 <= F <= 8
    g("s_waitcnt lgkmcnt(0)")
    g("s_barrier")
    for part in range(2):
        g(f"s_waitcnt vmcnt(4)")
        pst()
        for n in range(F, 8) if part == 0 and cfg.b2b else [F + part] if not cfg.b2b and F + part < 8 else []:
            big(n, vKC, sK, sBase)
        prep(part)
    assert cfg.b2b or F >= 6
    g(".p2align 6")
    g.label("L_kloop")
    if cfg.fl:
        g(f"s_xor_b32 {sr(sNOff)}, {sr(sCur)}, {sr(sMask)}")
        g(f"s_add_u32 {sr(sNOff)}, {sr(sNOff)}, {sr(sDelta)}")
        g(f"s_xor_b32 {sr(sNOff)}, {sr(sNOff)}, {sr(sMask)}")
    else:
        g(f"s_add_u32 {sr(sNOff)}, {sr(sCur)}, {sr(sDelta)}")
    g(f"s_xor_b32 {sr(sDelta)}, {sr(sDelta)}, 0x18000")
    g(f"s_cmp_eq_u32 {sr(sSlot)}, 31")
    g("s_cbranch_scc1 L_lastk")
    g.label("L_lastkb")
    top("k")
    for n in range(16):
        issue("k", n, vKC, sK)
        if n > 0 and ((n-1) >> 2) & 1: kmfma(n-1)
        ctl_hooks("k", n)
        kcvt(n)
    Dd = DK + 12; T = TK + 12
    red(0, 0); red(1, 0)
    g(f"v_mfma_f32_16x16x32_bf16 {vr(Dd,4)}, {vr(T,4)}, {vr(Q+8,4)}, {vr(Dd,4)}")
    red(0, 1); red(1, 1)
    g(f"v_mfma_f32_16x16x32_bf16 {vr(Dd,4)}, {vr(T,4)}, {vr(Q+12,4)}, {vr(Dd,4)}")
    red(0, 2); red(1, 2); red(2, 0)
    g(f"s_mov_b32 {sr(sCur)}, {sr(sNOff)}")
    g(f"v_max3_f32 {vr(vM)}, {vr(vM)}, {vr(X)}, {vr(X+1)}")
    red(2, 1)
    g("s_nop 1")
    red(2, 2); red(3, 0)
    g("s_nop 1")
    red(3, 1)
    g("s_nop 1")
    red(3, 2)
    g(f"s_mov_b64 exec, {sr(sJ4,2)}")
    g(f"v_max3_f32 {vr(vM)}, {vr(vM)}, {vr(X+2)}, {vr(X+3)}")
    g(f"ds_write_b128 {vr(vLds)}, {vr(X,4)}")
    g("s_mov_b64 exec, -1")
    g(f"v_add_u32 {vr(vLds)}, 256, {vr(vLds)}")
    g(f"s_cmp_lt_u32 {sr(sSlot)}, 32")
    g("s_cbranch_scc1 L_kloop")
    if cfg.stamp:
        g("s_memrealtime s[94:95]")
    def readS():
        g(f"ds_read_b128 {vr(X,4)}, {vr(vLds)}")
        g(f"ds_read_b128 {vr(VS,4)}, {vr(vS)}")
        g(f"ds_read_b128 {vr(VZ,4)}, {vr(vS)} offset:8192")
    g(f"v_subrev_u32 {vr(vLds)}, 0x2000, {vr(vLds)}")
    readS()
    g(f"v_max_f32_dpp {vr(vM)}, {vr(vM)}, {vr(vM)} quad_perm:[2,3,0,1]{dpp}")
    xreduce("v_max_f32", vM, vT1)
    g(f"s_mov_b32 {sr(sDelta)}, 0x4000")
    g(f"v_readlane_b32 {sr(sTmp)}, {vr(vM)}, 0")
    g(f"v_readlane_b32 {sr(sTmp2)}, {vr(vM)}, 1")
    g("s_nop 0")
    g("s_nop 0")
    g(f"v_mov_b32 {vr(vM)}, {sr(sTmp)}")
    g(f"v_mov_b32 {vr(vT1)}, {sr(sTmp2)}")
    g(f"v_cndmask_b32 {vr(vM)}, {vr(vM)}, {vr(vT1)}, {sr(sHd,2)}")
    g("s_mov_b64 exec, 3")
    g(f"ds_write_b32 {vr(vG)}, {vr(vM)} offset:{XLDS}")
    g("s_mov_b64 exec, 1")
    g(f"ds_add_u32 {vr(vZero)}, {vr(vA)} offset:{BLDS}")
    g("s_mov_b64 exec, -1")
    def vmfma(m):
        for c in range(4):
            acc = O + (m*4+c)*4
            g(f"v_mfma_f32_16x16x32_bf16 {vr(acc,4)}, {vr(TV+4*c,4)}, {vr(WP,4)}, {vr(acc,4)}")
    def soft(n):
        if n == 0:
            for e in range(4): g(f"v_sub_f32 {vr(X+e)}, {vr(X+e)}, {vr(vM)}")
            for e in range(2): g(f"v_exp_f32 {vr(X+e)}, {vr(X+e)}")
        elif n == 1:
            for e in range(2, 4): g(f"v_exp_f32 {vr(X+e)}, {vr(X+e)}")
        elif n == 2:
            for e in range(4): g(f"v_perm_b32 {vr(U+e)}, {vr(VS+e)}, {vr(VS+e)}, {vr(vSelS)}")
            for e in range(4): g(f"v_mul_f32 {vr(U+e)}, {vr(X+e)}, {vr(U+e)}")
        elif n == 3:
            for y in range(2): g(f"v_cvt_pk_bf16_f32 {vr(P+y)}, {vr(U+2*y)}, {vr(U+2*y+1)}")
            for y in range(2): g(f"v_perm_b32 {vr(ZA+y)}, {vr(VZ+2*y+1)}, {vr(VZ+2*y)}, {vr(vSelZ)}")
        elif n == 4:
            for y in range(2): g(f"v_and_b32 {vr(WP+y)}, {vr(vMa)}, {vr(P+y)}")
            for y in range(2): g(f"v_and_b32 {vr(WP+2+y)}, {vr(vMb)}, {vr(P+y)}")
            g(f"v_mfma_f32_16x16x16_bf16 {vr(CORR,4)}, {vr(ZA,2)}, {vr(P,2)}, {vr(CORR,4)}")
        elif n == 5:
            g(f"v_add_f32 {vr(X)}, {vr(X)}, {vr(X+1)}")
            g(f"v_add_f32 {vr(X+2)}, {vr(X+2)}, {vr(X+3)}")
            g(f"v_add_f32 {vr(vL)}, {vr(vL)}, {vr(X)}")
            g(f"v_add_f32 {vr(vL)}, {vr(vL)}, {vr(X+2)}")
        elif n == 6:
            g(f"v_add_u32 {vr(vLds)}, 256, {vr(vLds)}")
            g(f"s_bfe_u32 {sr(sN)}, {sr(sNOff)}, 0xd0008")
            g(f"v_add_u32 {vr(vS)}, {sr(sN)}, {vr(vVA)}")
        elif n == cfg.rpos:
            readS()
    g(".p2align 6")
    g.label("L_vloop")
    if cfg.fl:
        g(f"s_xor_b32 {sr(sNOff)}, {sr(sCur)}, {sr(sMask)}")
        g(f"s_add_u32 {sr(sNOff)}, {sr(sNOff)}, {sr(sDelta)}")
        g(f"s_xor_b32 {sr(sNOff)}, {sr(sNOff)}, {sr(sMask)}")
    else:
        g(f"s_add_u32 {sr(sNOff)}, {sr(sCur)}, {sr(sDelta)}")
    g(f"s_xor_b32 {sr(sDelta)}, {sr(sDelta)}, 0x18000")
    top("v")
    def vcvt(n):
        s_, u = n >> 2, n & 3
        R = RAW + 4*n
        cvt4(R)
        if u & 1:
            for c in range(4):
                g(f"v_cvt_pk_bf16_f32 {vr(TV+4*c+2*(s_&1)+(u>>1))}, {vr(R-4+c)}, {vr(R+c)}")
    for n in range(16):
        if n == 8:
            g(f"s_cmp_eq_u32 {sr(sSlot)}, 64")
            g("s_cbranch_scc1 L_tail")
        if cfg.ebl and n == cfg.ebs:
            assert n > 0
            g(f"s_cmp_eq_u32 {sr(sSlot)}, 64")
            g(f"s_cselect_b32 {sr(sL)}, {cfg.ebl}, {sr(sL)}")
        issue("v", n, vNx, sNx)
        if n == 8: vmfma(0)
        ctl_hooks("v", n)
        vcvt(n)
        soft(n)
    g(f"s_mov_b32 {sr(sCur)}, {sr(sNOff)}")
    g("s_nop 0")
    vmfma(1)
    g("s_branch L_vloop")
    sOff0, sOff1 = sCur, sNOff
    FO = 196; PA = FO
    def poll(P, so=sIn): g(f"buffer_load_dwordx4 {vr(P,4)}, {vr(vO16)}, {sr(sWS,4)}, {sr(so)} offen {cfg.rfl}")
    def pk(d, a, b): g(f"v_pk_add_f32 {vr(d,2)}, {vr(a,2)}, {vr(b,2)}")
    def est(k):
        if cfg.est: g(f"s_memrealtime s[{32+2*k}:{33+2*k}]")
    g.label("L_tail")
    g(f"s_cmp_lg_u32 {sr(sRdy)}, 2")
    g("s_cbranch_scc1 L_slow")
    g.label("L_tail2")
    vmfma(0)
    e0, e1, e2, e3 = Q, Q+1, Q+2, Q+3
    def outw(m, r):
        T = (DK if m == 0 else 20) + 4*r
        for c in range(4):
            g(f"v_fma_f32 {vr(T+c)}, {vr(O+(m*4+c)*4+r)}, {vr(vW)}, -{vr(vCW)}")
        g(f"ds_write_b128 {vr(e0)}, {vr(T,4)} offset:{m*256+r*16}")
    g(f"v_add_f32_dpp {vr(vL)}, {vr(vL)}, {vr(vL)} quad_perm:[2,3,0,1]{dpp}")
    g(f"s_lshl_b32 {sr(sTmp)}, {sr(sWave)}, 11")
    g(f"s_add_u32 {sr(sTmp)}, {sr(sTmp)}, {CLDS}")
    g(f"v_and_b32 {vr(e0)}, 3, {vr(vLane)}")
    g(f"v_lshlrev_b32 {vr(e0)}, 9, {vr(e0)}")
    g(f"v_bfe_u32 {vr(e1)}, {vr(vLane)}, 2, 1")
    g(f"v_lshl_add_u32 {vr(e0)}, {vr(e1)}, 7, {vr(e0)}")
    g(f"v_bfe_u32 {vr(e1)}, {vr(vLane)}, 4, 1")
    g(f"v_lshl_add_u32 {vr(e0)}, {vr(e1)}, 6, {vr(e0)}")
    g(f"v_add_u32 {vr(e0)}, {sr(sTmp)}, {vr(e0)}")
    g(f"v_mul_f32 {vr(vCW)}, {vr(CORR)}, {vr(vW)}")
    xreduce("v_add_f32", vL, vT1)
    g(f"v_mul_f32 {vr(vL)}, {vr(vL)}, {vr(vW)}")
    g(f"v_readlane_b32 {sr(sMh)}, {vr(MX)}, 0")
    g(f"v_readlane_b32 {sr(sN)}, {vr(MX)}, 1")
    g(f"s_mov_b64 exec, {sr(sEp,2)}")
    for r in range(4): outw(0, r)
    g("s_mov_b64 exec, 3")
    g(f"ds_write_b32 {vr(vG)}, {vr(vL)} offset:{MLDS}")
    g("s_mov_b64 exec, -1")
    g(f"s_and_b32 {sr(sOwn0)}, {sr(sReg)}, {NP-1}")
    g(f"s_lshl_b32 {sr(sTmp)}, {sr(sOwn0)}, 1")
    g(f"s_add_u32 {sr(sTmp)}, {sr(sTmp)}, {sr(sWave)}")
    g(f"s_lshl_b32 {sr(sTmp2)}, {sr(sWave)}, 3")
    g(f"s_and_b32 {sr(sTmp2)}, {sr(sTmp2)}, 8")
    g(f"s_cmp_lt_u32 {sr(sWave)}, 2")
    g(f"s_cselect_b32 {sr(sTmp)}, {sr(sTmp)}, {sr(sTmp2)}")
    g(f"s_cselect_b32 {sr(sTmp2)}, 7, 63")
    g(f"v_and_b32 {vr(e2)}, {sr(sTmp2)}, {vr(vLane)}")
    g(f"v_lshl_add_u32 {vr(e2)}, {sr(sTmp)}, 3, {vr(e2)}")
    g(f"v_lshlrev_b32 {vr(e3)}, 3, {vr(e2)}")
    g(f"s_cmp_lt_u32 {sr(sTmp)}, 8")
    g(f"s_cselect_b32 {sr(sMh)}, {sr(sMh)}, {sr(sN)}")
    g(f"s_cselect_b32 {sr(sTmp2)}, 0, 16")
    g(f"v_mov_b32 {vr(e1)}, {sr(sTmp2)}")
    g(f"s_mul_i32 {sr(sIn)}, {sr(sBH)}, {GS}")
    g(f"s_add_u32 {sr(sIn)}, {sr(sIn)}, 0x{XBASE:x}")
    g(f"s_mul_i32 {sr(sOwn1)}, {sr(sOwn0)}, {PS_}")
    g(f"s_add_u32 {sr(sOwn1)}, {sr(sOwn1)}, {sr(sIn)}")
    g(f"v_lshrrev_b32 {vr(vP)}, 3, {vr(e2)}")
    g(f"v_and_b32 {vr(vOa)}, 0x70, {vr(vO16)}")
    g(f"v_lshl_add_u32 {vr(vP)}, {vr(vP)}, 10, {vr(vOa)}")
    g(f"s_lshl_b32 {sr(sTmp)}, {sr(sTmp)}, 10")
    g(f"s_add_u32 {sr(sCur)}, {sr(sOwn1)}, 0x{XB2:x}")
    g(f"s_mov_b32 {sr(sDelta)}, 0")
    g(f"s_add_u32 {sr(sIn)}, {sr(sIn)}, {sr(sTmp)}")
    g(f"s_lshl_b32 {sr(sOwn0)}, {sr(sOwn0)}, 3")
    g(f"s_lshl_b64 {sr(sOwnM,2)}, 0xff, {sr(sOwn0)}")
    g(f"s_cmp_lt_u32 {sr(sWave)}, 2")
    g(f"s_cselect_b64 {sr(sOwnM,2)}, {sr(sOwnM,2)}, -1")
    g(f"v_bfe_u32 {vr(vOa)}, {vr(vLane)}, 4, 1")
    g(f"v_lshl_add_u32 {vr(vOa)}, {vr(e2)}, 1, {vr(vOa)}")
    g(f"v_lshlrev_b32 {vr(vOa)}, 1, {vr(vOa)}")
    g(f"v_mov_b32 {vr(FO+3)}, {sr(sTag)}")
    g(f"s_lshl_b32 {sr(sTmp2)}, {sr(sBH)}, 9")
    srd(sOUT, 18, 16384)
    for n in range(8, 16):
        g(f"s_waitcnt vmcnt({15-n})")
        vcvt(n)
    est(0)
    g("s_nop 1")
    vmfma(1)
    g(f"s_not_b64 exec, {sr(sOwnM,2)}")
    g("s_cbranch_scc0 L_nop1")
    poll(PA)
    g.label("L_nop1")
    g(f"s_mov_b64 exec, {sr(sEp,2)}")
    g("s_nop 6")
    for r in range(4): outw(1, r)
    g(f"s_mov_b64 exec, {'-1' if cfg.stamp else sr(sOwnM,2)}")
    if cfg.tlog:
        tlog()
        g(f"s_lshl_b32 s89, {sr(sWave)}, 9")
        g(f"s_add_u32 s89, s89, {TLDS}")
        g(f"v_lshlrev_b32 {vr(TMP)}, 3, {vr(vLane)}")
        g(f"v_add_u32 {vr(TMP+1)}, s89, {vr(TMP)}")
        g(f"ds_read_b64 {vr(TMP+2,2)}, {vr(TMP+1)}")
        g(f"s_mul_i32 s89, s2, {WPW}")
        g(f"s_add_u32 s89, s89, {sr(sWave)}")
        g("s_lshl_b32 s89, s89, 9")
        g("s_add_u32 s89, s89, 0x1400000")
        g("s_waitcnt lgkmcnt(0)")
        g(f"buffer_store_dwordx2 {vr(TMP+2,2)}, {vr(TMP)}, {sr(sWS,4)}, s89 offen")
    def stamp(slot):
        g("s_memrealtime s[86:87]")
        g(f"s_mul_i32 s89, s2, {WPW}")
        g(f"s_add_u32 s89, s89, {sr(sWave)}")
        g("s_lshl_b32 s89, s89, 4")
        g(f"s_add_u32 s89, s89, 0x{0x1000000 + slot*0x100000:x}")
        g("s_waitcnt lgkmcnt(0)")
        g(f"v_mov_b32 {vr(TMP)}, s84"); g(f"v_mov_b32 {vr(TMP+1)}, s86"); g(f"v_mov_b32 {vr(TMP+2)}, s88"); g(f"v_mov_b32 {vr(TMP+3)}, s94")
        g("s_mov_b64 s[90:91], exec")
        g("s_mov_b64 exec, 1")
        g(f"buffer_store_dwordx4 {vr(TMP,4)}, off, {sr(sWS,4)}, s89")
        g("s_mov_b64 exec, s[90:91]")
    if cfg.stamp: stamp(0)
    g("s_waitcnt lgkmcnt(0)")
    g("s_barrier")
    est(1)
    OP = 48; ML = 64
    if cfg.stamp: g(f"s_mov_b64 exec, {sr(sOwnM,2)}")
    g(f"ds_read_b128 {vr(ML,4)}, {vr(e1)} offset:{MLDS}")
    for w in range(WPW):
        g(f"ds_read2st64_b64 {vr(OP+4*w,4)}, {vr(e3)} offset0:{CLDS//512+4*w} offset1:{CLDS//512+4*w+2}")
    lg = lambda n: g(f"s_waitcnt lgkmcnt({0 if cfg.est else n})")
    lg(4)
    pk(ML, ML, ML+2)
    g(f"v_add_f32 {vr(ML)}, {vr(ML)}, {vr(ML+1)}")
    lg(3)
    pk(OP, OP, OP+2)
    g(f"v_log_f32 {vr(FO+2)}, {vr(ML)}")
    lg(2)
    pk(OP+4, OP+4, OP+6)
    g(f"v_rcp_f32 {vr(ML)}, {vr(ML)}")
    lg(1)
    pk(OP+8, OP+8, OP+10)
    pk(OP, OP, OP+4)
    lg(0)
    pk(OP+12, OP+12, OP+14)
    g(f"v_add_f32 {vr(FO+2)}, {sr(sMh)}, {vr(FO+2)}")
    pk(OP+8, OP+8, OP+12)
    pk(OP, OP, OP+8)
    g(f"v_mul_f32 {vr(FO)}, {vr(OP)}, {vr(ML)}")
    g(f"v_mul_f32 {vr(FO+1)}, {vr(OP+1)}, {vr(ML)}")
    g(f"s_cmp_lt_u32 {sr(sWave)}, 2")
    g("s_cbranch_scc1 L_poll")
    g(f"buffer_store_dwordx4 {vr(FO,4)}, {vr(vP)}, {sr(sWS,4)}, {sr(sOwn1)} offen {cfg.wfl}")
    g(f"buffer_store_dwordx4 {vr(FO,4)}, {vr(vP)}, {sr(sWS,4)}, {sr(sCur)} offen sc1")
    if cfg.stamp:
        g("s_memrealtime s[84:85]")
        g("s_waitcnt vmcnt(0)")
        stamp(3)
    if cfg.drt == 2:
        g("s_cmp_ge_u32 s2, 8")
        g("s_cbranch_scc1 L_end")
        g(f"s_cmp_lg_u32 {sr(sWave)}, 3")
        g("s_cbranch_scc1 L_end")
        g("s_sleep 127"); g("s_sleep 127")
        g("s_mov_b64 exec, 1")
        g("s_mov_b64 s[88:89], 0")
        g("s_mov_b32 s90, 0")
        g(f"s_lshl_b32 s91, s2, 7")
        g(f"s_add_u32 s91, s91, 0x{cfg.dbase:x}")
        g.label("L_dl")
        g("s_mov_b32 s94, 0x7fffffff")
        g("s_mov_b32 s95, 0")
        g.label("L_dr")
        g("v_mov_b32 v5, 0")
        g("s_memtime s[84:85]")
        g("s_waitcnt lgkmcnt(0)")
        g(f"buffer_atomic_add v5, off, {sr(sWS,4)}, s91 sc0 sc1")
        g("s_waitcnt vmcnt(0)")
        g("s_memtime s[86:87]")
        g("s_waitcnt lgkmcnt(0)")
        g("s_sub_u32 s86, s86, s84")
        g("s_min_u32 s94, s94, s86")
        g("s_add_u32 s95, s95, 1")
        g("s_cmp_lt_u32 s95, 6")
        g("s_cbranch_scc1 L_dr")
        g("s_lshr_b32 s94, s94, 2")
        g("s_min_u32 s94, s94, 255")
        g("s_mov_b32 s95, 0")
        g("s_lshl_b64 s[94:95], s[94:95], s90")
        g("s_or_b64 s[88:89], s[88:89], s[94:95]")
        g("s_add_u32 s91, s91, 4096")
        g("s_add_u32 s90, s90, 8")
        g("s_cmp_lt_u32 s90, 64")
        g("s_cbranch_scc1 L_dl")
        g("s_getreg_b32 s90, hwreg(HW_REG_XCC_ID)")
        g("s_and_b32 s90, s90, 7")
        g("s_lshl_b32 s90, s90, 3")
        g("s_atomic_add_x2 s[88:89], s[20:21], s90")
    g("s_endpgm")
    g.label("L_again")
    g("s_mov_b64 exec, vcc")
    if cfg.stamp or cfg.drt:
        g("s_add_u32 s88, s88, 1")
        g("s_cmp_lg_u32 s88, 1")
        g("s_cbranch_scc1 L_nf")
        g("s_memrealtime s[84:85]")
        g.label("L_nf")
    if cfg.psl2:
        g(f"s_bcnt1_i32_b64 {sr(sTmp)}, exec")
        g(f"s_cmp_le_u32 {sr(sTmp)}, {8*cfg.psl}")
        g("s_cbranch_scc1 L_nsl")
        g(f"s_sleep {cfg.psl2}")
        g.label("L_nsl")
    g(f"s_add_u32 {sr(sDelta)}, {sr(sDelta)}, 1")
    g(f"s_and_b32 {sr(sTmp)}, {sr(sDelta)}, {cfg.bper - 1}")
    g(f"s_cselect_b32 {sr(sTmp)}, 0, 0x{XB2:x}")
    g(f"s_add_u32 {sr(sTmp)}, {sr(sTmp)}, {sr(sIn)}")
    poll(PA, sTmp)
    g("s_branch L_poll2")
    g.label("L_poll")
    if cfg.stamp or cfg.drt: g("s_mov_b32 s88, 0")
    est(2)
    g(f"s_not_b64 exec, {sr(sOwnM,2)}")
    g.label("L_poll2")
    g("s_waitcnt vmcnt(0)")
    g(f"v_cmp_ne_u32 vcc, {sr(sTag)}, {vr(PA+3)}")
    g("s_cbranch_vccnz L_again")
    g("s_mov_b64 exec, -1")
    est(3); est(4)
    if cfg.stamp or cfg.drt: g("s_memrealtime s[94:95]")
    A_, B_, W_, T_ = FO, FO+1, FO+2, ML
    g(f"v_max_f32_dpp {vr(T_)}, {vr(W_)}, {vr(W_)} row_ror:8{dpp}")
    for sw in (16, 32):
        g(f"v_mov_b32 {vr(T_+1)}, {vr(T_)}")
        g("s_nop 1")
        g(f"v_permlane{sw}_swap_b32 {vr(T_)}, {vr(T_+1)}")
        if cfg.psn: g("s_nop 0")
        g(f"v_max_f32 {vr(T_)}, {vr(T_)}, {vr(T_+1)}")
    g(f"v_sub_f32 {vr(W_)}, {vr(W_)}, {vr(T_)}")
    g(f"v_exp_f32 {vr(W_)}, {vr(W_)}")
    g("s_nop 0")
    g(f"v_mul_f32 {vr(A_)}, {vr(A_)}, {vr(W_)}")
    g(f"v_mul_f32 {vr(B_)}, {vr(B_)}, {vr(W_)}")
    g(f"v_add_f32_dpp {vr(T_)}, {vr(W_)}, {vr(W_)} row_ror:8{dpp}")
    g(f"v_add_f32_dpp {vr(W_)}, {vr(W_)}, {vr(W_)} row_ror:8{dpp}")
    g(f"v_permlane16_swap_b32 {vr(A_)}, {vr(B_)}")
    g(f"v_add_f32 {vr(A_)}, {vr(A_)}, {vr(B_)}")
    g(f"v_permlane16_swap_b32 {vr(W_)}, {vr(T_)}")
    g(f"v_add_f32 {vr(T_+1)}, {vr(W_)}, {vr(T_)}")
    g(f"v_add_f32 {vr(W_)}, {vr(W_)}, {vr(T_)}")
    g(f"v_add_f32_dpp {vr(B_)}, {vr(A_)}, {vr(A_)} row_ror:8{dpp}")
    g(f"v_add_f32_dpp {vr(A_)}, {vr(A_)}, {vr(A_)} row_ror:8{dpp}")
    g(f"v_permlane32_swap_b32 {vr(W_)}, {vr(T_+1)}")
    g(f"v_add_f32 {vr(W_)}, {vr(W_)}, {vr(T_+1)}")
    g(f"v_permlane32_swap_b32 {vr(A_)}, {vr(B_)}")
    g(f"v_rcp_f32 {vr(W_)}, {vr(W_)}")
    g(f"v_add_f32 {vr(A_)}, {vr(A_)}, {vr(B_)}")
    g("s_mov_b64 exec, 0x00ff00ff")
    g(f"v_mul_f32 {vr(A_)}, {vr(A_)}, {vr(W_)}")
    est(5)
    g(f"v_cvt_pk_bf16_f32 {vr(A_)}, {vr(A_)}, {vr(A_)}")
    g(f"buffer_store_short {vr(A_)}, {vr(vOa)}, {sr(sOUT,4)}, {sr(sTmp2)} offen{cfg.osc}")
    if cfg.drt == 1:
        g("s_cmp_eq_u32 s88, 0")
        g("s_cbranch_scc1 L_end")
        g("s_waitcnt lgkmcnt(0)")
        g("s_sub_u32 s89, s94, s84")
        g("s_getreg_b32 s90, hwreg(HW_REG_XCC_ID)")
        g("s_and_b32 s90, s90, 7")
        g("s_lshl_b32 s90, s90, 3")
        g("s_atomic_add_x2 s[88:89], s[20:21], s90")
    if cfg.stamp:
        est(6)
        g("s_waitcnt vmcnt(0)")
        est(7)
        stamp(1)
        if cfg.est:
            for k in range(8): g(f"v_mov_b32 v{32+k}, s{32+2*k}")
            g(f"s_lshl_b32 s89, {sr(sBH)}, 5")
            g("s_add_u32 s89, s89, 0x1200000")
            g("s_mov_b64 exec, 1")
            g(f"buffer_store_dwordx4 v[32:35], off, {sr(sWS,4)}, s89")
            g(f"buffer_store_dwordx4 v[36:39], off, {sr(sWS,4)}, s89 offset:16")
    g.label("L_end")
    g("s_endpgm")
    g.label("L_init")
    g(f"v_mul_u32_u24 {vr(t0)}, {CSTR}, {vr(vLane)}")
    g(f"s_mov_b64 exec, 0x{(1 << len(syncs)) - 1:x}")
    g(f"buffer_store_dwordx2 {vr(CORR,2)}, {vr(t0)}, {sr(sWS,4)}, {sr(sWOff)} offen sc1")
    g("s_mov_b64 exec, -1")
    g("s_branch L_noinit")
    g.label("L_slow")
    getm(" glc")
    g("s_waitcnt lgkmcnt(0)")
    weight("L_slow")
    g("s_branch L_tail2")
    g.label("L_lastk")
    srdp(sNx, 8)
    g(f"s_mov_b32 {sr(sNOff)}, {sr(sBase)}")
    g(f"v_lshrrev_b32 {vr(t0)}, 3, {vr(j_)}")
    g(f"v_and_b32 {vr(t1)}, 7, {vr(j_)}")
    g(f"v_lshlrev_b32 {vr(t1)}, 4, {vr(t1)}")
    g(f"v_lshl_add_u32 {vr(t1)}, {vr(t0)}, 9, {vr(t1)}")
    g(f"v_lshl_add_u32 {vr(vNx)}, {vr(g_)}, 15, {vr(t1)}")
    g.label("L_copied")
    g(f"v_readfirstlane_b32 {sr(sTmp)}, {vr(vA)}")
    g(f"s_cmp_ge_u32 {sr(sTmp)}, {WPW}")
    g(f"v_mov_b32 {vr(vA)}, 1")
    g("s_cbranch_scc1 L_lastkb")
    g(f"ds_read_b32 {vr(vA)}, {vr(vZero)} offset:{BLDS}")
    g("s_waitcnt lgkmcnt(0)")
    g("s_branch L_copied")
    ctl_blocks("k")
    ctl_blocks("v")
    g.lines.insert(len(g.lines) - 1, "L_last:")
    notes = {
        "L_pc": "pull this kernel's own code into the L2, then lane/address set-up while the kernarg loads are in flight",
        "L_kloop": "phase K: 32 tiles of 32 tokens per wave; logits (log2 units, zero points folded into a bias) -> LDS, running max.\n"
                   "; Every step waits until at most 4..6 loads are in flight (more only congests the fabric) and issues the load needed 8 steps later;\n"
                   "; s4 = level of this tile: a wave behind the chip's average progress keeps more loads in flight, one ahead a little less",
        "L_vloop": "phase V: p = exp2(S - max), O += (p*v_scale) x V, the zero-point correction through one more MFMA",
        "L_tail": "second half of the last tile; scaled partial results -> LDS",
        "L_again": "waves 0/1: collect eight output pairs from the eight parts of this head pair (16-byte granules tagged for this launch)",
        "L_init": "one wave clears the progress records",
        "L_slow": "tag / maxima were not there yet when first looked at: wait for them",
        "L_lastk": "last K tile: the look-ahead moves on to V",
        "L_ckk": "per-tile hooks: progress records (publish / read), deferred set-up",
        "L_race": "workgroup 0: two requests 8 KB apart, the one whose memory is closer to this die answers first (placement of the inboxes, speed only)",
        "L_tag": "tag of this launch's hand-overs (d_debug[0], zero before); its low bits rotate the inboxes",
        "L_ctlk": "progress record read: complete and recent -> target time of the next tiles",
    }
    g.lines = [("; " + notes[l[:-1]] + "\n" + l) if l[:-1] in notes else l for l in g.lines]
    main = g.text()

    lds = TLDS + (2048 if cfg.tlog else 0)
    out = HEADER
    out += f"; @launch grid=({NWG},1,1) block=({WPW*64},1,1) lds={max(lds, cfg.lds)}\n"
    out += '.amdgcn_target "amdgcn-amd-amdhsa--gfx950"\n.text\n'
    out += f".globl {NAME}_kernel\n.p2align 8\n.type {NAME}_kernel,@function\n" + main
    out += '.section .rodata,"a"\n'
    out += (f".p2align 6\n.amdhsa_kernel {NAME}_kernel\n  .amdhsa_next_free_vgpr {NV}\n  .amdhsa_next_free_sgpr {NS}\n"
            f"  .amdhsa_accum_offset {NV}\n  .amdhsa_group_segment_fixed_size 0\n  .amdhsa_kernarg_size 80\n"
            "  .amdhsa_user_sgpr_count 2\n  .amdhsa_user_sgpr_kernarg_segment_ptr 1\n"
            "  .amdhsa_system_sgpr_workgroup_id_x 1\n.end_amdhsa_kernel\n")
    return out

if __name__ == "__main__":
    ap = argparse.ArgumentParser()
    ap.add_argument("-o", default="/dev/stdout")
    ap.add_argument("--stamp", type=int, default=0)
    ap.add_argument("--tlog", type=int, default=0)
    ap.add_argument("--pst", type=int, default=0)
    ap.add_argument("--d", type=int, default=5)
    ap.add_argument("--tiers", type=int, default=2)
    ap.add_argument("--first", type=int, default=6)
    ap.add_argument("--b2b", type=int, default=0)
    ap.add_argument("--lds", type=int, default=0)
    ap.add_argument("--ctlpos", type=int, default=8)
    ap.add_argument("--tpos", type=int, default=14)
    ap.add_argument("--rpos", type=int, default=12)
    ap.add_argument("--si", type=int, default=4)
    ap.add_argument("--s0", type=int, default=2)
    ap.add_argument("--rd", type=int, default=2)
    ap.add_argument("--rglc", type=int, default=0)
    ap.add_argument("--radd", type=int, default=0)
    ap.add_argument("--slow", type=int, default=4)
    ap.add_argument("--law", default="60:16,-25:-1,-50:-2,-80:-3")
    ap.add_argument("--cap", default="2:4")
    ap.add_argument("--wsc", type=int, default=1)
    ap.add_argument("--fslot", type=int, default=45)
    ap.add_argument("--diag", default="")
    ap.add_argument("--base", type=int, default=0)
    ap.add_argument("--law2", default="90:16")
    ap.add_argument("--tlb", type=int, default=0)
    ap.add_argument("--dnt", type=int, default=1)
    ap.add_argument("--tlbs", type=int, default=25)
    ap.add_argument("--est", type=int, default=0)
    ap.add_argument("--ebs", type=int, default=3)
    ap.add_argument("--ebl", type=int, default=0)
    ap.add_argument("--cpf", type=int, default=1)
    ap.add_argument("--rot", default="")
    ap.add_argument("--late", default="")
    ap.add_argument("--latecap", type=int, default=1)
    ap.add_argument("--eb", default="")
    ap.add_argument("--spec", type=int, default=1)
    ap.add_argument("--osc", default="")
    ap.add_argument("--bpos", type=int, default=0)
    ap.add_argument("--np", type=int, default=2)
    ap.add_argument("--nf", default="")
    ap.add_argument("--loc", type=int, default=0)
    ap.add_argument("--ema", type=int, default=0)
    ap.add_argument("--psn", type=int, default=0)
    ap.add_argument("--nr", type=int, default=4)
    ap.add_argument("--inv", type=int, default=0)
    ap.add_argument("--dv", type=int, default=0)
    ap.add_argument("--dbase", type=lambda x: int(x, 0), default=0x100000)
    ap.add_argument("--drt", type=int, default=0)
    ap.add_argument("--xoff", type=int, default=0)
    ap.add_argument("--pres", type=int, default=0)
    ap.add_argument("--prev", type=int, default=0)
    ap.add_argument("--prer", type=int, default=0)
    ap.add_argument("--prew", type=int, default=0)
    ap.add_argument("--pfl", default="sc1")
    ap.add_argument("--lay", default="1024:128:16384")
    ap.add_argument("--psl", type=int, default=3)
    ap.add_argument("--psl2", type=int, default=0)
    ap.add_argument("--wfl", default="")
    ap.add_argument("--bper", type=int, default=16)
    ap.add_argument("--fl", default="")
    ap.add_argument("--bmap", default="6,7,0,1,2")
    ap.add_argument("--rfl", default="sc1")
    cfg = ap.parse_args()
    open(cfg.o, "w").write(build(cfg))
```
